```python
import torch

def _softmax(x, axis=-1):
    return torch.softmax(x, dim=axis)
def _gelu(x):
    return torch.nn.functional.gelu(x, approximate="tanh")
def _silu(x):
    return torch.nn.functional.silu(x)
def _sigmoid(x):
    return torch.sigmoid(x)
def _layernorm(x, axis=-1, eps=1e-5):
    m = x.mean(dim=axis, keepdim=True)
    v = x.var(dim=axis, keepdim=True, unbiased=False)
    return (x - m) / torch.sqrt(v + eps)
def _scatter_add(tgt, idx, src, axis=0):
    return tgt.clone().index_add_(axis, idx, src)
def _segment_sum(src, seg, n):
    out = torch.zeros((n,) + src.shape[1:], dtype=src.dtype)
    return out.index_add_(0, seg, src)
def _pad(x, pw):
    flat = tuple(v for pair in reversed(pw) for v in pair)
    return torch.nn.functional.pad(x, flat)

kernel_name = 'standalone__gqa_softmax__near_ridge'

def setup_inputs():

    _w = (lambda a: (lambda t: t.to(torch.bfloat16) if t.is_floating_point() else t)(torch.as_tensor(a)))
    B, Hq, Hkv, Sq, Sk, D = 8, 32, 8, 48, 2048, 128
    return {
        "q": _w((lambda *s: torch.randn(*s, dtype=torch.bfloat16) * 0.8)(B, Hq, Sq, D)),
        "k": _w((lambda *s: torch.randn(*s, dtype=torch.bfloat16) * 0.8)(B, Hkv, Sk, D)),
        "v": _w((lambda *s: torch.randn(*s, dtype=torch.bfloat16) * 0.05)(B, Hkv, Sk, D)),
    }

def reference(q, k, v):
    B, Hq, Sq, D = q.shape
    Hkv = k.shape[1]
    rep = Hq // Hkv
    k = (lambda x, n, axis: torch.repeat_interleave(x, n, dim=axis))(k, rep, axis=1)
    v = (lambda x, n, axis: torch.repeat_interleave(x, n, dim=axis))(v, rep, axis=1)
    scale = D ** -0.5
    scores = torch.einsum("bhqd,bhkd->bhqk", q, k) * scale
    p = _softmax(scores, axis=-1)
    return torch.einsum("bhqk,bhkd->bhqd", p, v)
```

```python
PIECE = 1056
TILE = 8 * PIECE
SLOT = 2 * TILE

def O(db, b, r=0): return (db * 3 + b) * 4 + r
def Oq(db, b): x = O(db, b); return f"v[{x}:{x+3}]"
S0 = 96
def S(par, i): return S0 + par * 8 + i
def Sq(par, kb): x = S(par, kb * 4); return f"v[{x}:{x+3}]"
P0 = 112
def P(par, i): return P0 + par * 4 + i
def Pq(par): x = P(par, 0); return f"v[{x}:{x+3}]"
C0 = 120
def Cq(b): x = C0 + 4 * b; return f"v[{x}:{x+3}]"
L0 = 132
KADDR, VADDR = 138, 139
TMP0, TMP1, TMP2, TMP3 = 140, 141, 142, 143
NV = 144
def Qa(b, s): x = (b * 4 + s) * 4; return f"a[{x}:{x+3}]"
def Ka(kb, s): x = 48 + (kb * 4 + s) * 4; return f"a[{x}:{x+3}]"
def Va(db): x = 80 + db * 4; return f"a[{x}:{x+3}]"
def Vh(db, h): x = 80 + db * 4 + 2 * h; return f"a[{x}:{x+1}]"
NA = 112

def softmax_ops(n, mode):
    par, b = n & 1, n % 3
    s = lambda i: f"v{S(par, i)}"
    X = lambda i: f"v_exp_f32 {s(i)}, {s(i)}"
    CV = lambda i: f"v_cvt_pk_bf16_f32 v{P(par,i)}, {s(2*i)}, {s(2*i+1)}"
    l0, l1 = L0 + 2 * b, L0 + 2 * b + 1
    AD = lambda i: f"v_add_f32 v{l0 + (i & 1)}, v{l0 + (i & 1)}, {s(i)}"
    PK = lambda i: f"v_pk_add_f32 v[{l0}:{l1}], v[{l0}:{l1}], v[{S(par,2*i)}:{S(par,2*i+1)}]"
    DT = lambda i: f"v_dot2c_f32_bf16 v{l0 + (i & 1)}, v{P(par,i)}, v{TMP3}"
    if mode == "add":
        return {8: [X(0)], 9: [X(1)], 10: [X(2)], 11: [CV(0), AD(0)], 12: [X(3)], 13: [X(4)], 14: [CV(1), AD(1)], 15: [AD(2), AD(3)],
                16: [X(5)], 17: [X(6)], 18: [CV(2), AD(4)], 19: [X(7)], 20: [AD(5), AD(6)], 21: [CV(3), AD(7)], 22: [], 23: []}
    if mode == "pk":
        return {8: [X(0)], 9: [X(1)], 10: [X(2)], 11: [CV(0), PK(0)], 12: [X(3)], 13: [X(4)], 14: [CV(1), PK(1)], 15: [],
                16: [X(5)], 17: [X(6)], 18: [CV(2), PK(2)], 19: [X(7)], 20: [], 21: [CV(3), PK(3)], 22: [], 23: []}
    if mode == "dot":
        return {8: [X(0)], 9: [X(1)], 10: [X(2)], 11: [CV(0)], 12: [X(3)], 13: [X(4)], 14: [CV(1), DT(0)], 15: [DT(1)],
                16: [X(5)], 17: [X(6)], 18: [CV(2)], 19: [X(7)], 20: [DT(2)], 21: [CV(3)], 22: [DT(3)], 23: []}
    if mode == "none":
        return {8: [X(0)], 9: [X(1)], 10: [X(2)], 11: [CV(0)], 12: [X(3)], 13: [X(4)], 14: [CV(1)], 15: [],
                16: [X(5)], 17: [X(6)], 18: [CV(2)], 19: [X(7)], 20: [], 21: [CV(3)], 22: [], 23: []}
    raise ValueError(mode)

def slot_mfmas(n):
    bq, pq, bp, pp = (n + 1) % 3, (n + 1) & 1, n % 3, n & 1
    mf = []
    for kb in range(2):
        for s in range(4):
            c = Cq(bq) if s == 0 else Sq(pq, kb)
            mf.append(f"v_mfma_f32_16x16x32_bf16 {Sq(pq,kb)}, {Ka(kb,s)}, {Qa(bq,s)}, {c}")
    for db in range(8):
        mf.append(f"v_mfma_f32_16x16x32_bf16 {Oq(db,bp)}, {Va(db)}, {Pq(pp)}, {Oq(db,bp)}")
    return mf

def emit_slot(out, n, mode, qk=True, partA=True, first=None, last=None, pre=None):
    first, last, pre = first or {}, last or {}, pre or {}
    smB, smA = softmax_ops(n, mode), softmax_ops(n + 1, mode)
    mf = slot_mfmas(n)
    for pos in range(16):
        out += pre.get(pos, [])
        if pos >= 8 or qk:
            out.append(mf[pos])
        out += first.get(pos, [])
        if pos < 8:
            out += smB[16 + pos]
        elif partA:
            out += smA[pos]
        out += last.get(pos, [])

def kread(i, off):
    kb, s = i // 4, i % 4
    return f"ds_read_b128 {Ka(kb,s)}, v{KADDR} offset:{off + kb*512 + s*64}"
def vread(r, off):
    db, h = r >> 1, r & 1
    return f"ds_read_b64_tr_b16 {Vh(db,h)}, v{VADDR} offset:{off + h*512 + db*32}"

def loop_body(mode="add", kg=None, vg=None, barrier=True):
    kg = kg or [6, 6, 7, 7, 9, 10, 12, 15]
    vg = vg or [8 + r for r in range(16)]
    first = {k: {} for k in range(-1, 6)}
    pre = {k: {} for k in range(-1, 6)}
    last = {k: {} for k in range(-1, 6)}
    for tt, k2 in ((0, -1), (1, 2)):
        for r in range(16):
            kk, gp = k2 + vg[r] // 16, vg[r] % 16
            assert vg[r] >= 8 + (r >> 1)
            first[kk].setdefault(gp, []).append(vread(r, tt * SLOT))
    for tt, k1 in ((0, 1), (1, 4)):
        for i in range(8):
            assert i <= kg[i] < 16
            first[k1].setdefault(kg[i], []).append(kread(i, tt * SLOT))
    for k2 in (-1, 2):
        pre[k2].setdefault(0, []).append("s_waitcnt lgkmcnt(4)")
        pre[k2].setdefault(4, []).append("s_waitcnt lgkmcnt(0)")
        n_after = lambda pos: sum(1 for r in range(16) if vg[r] < pos)
        for db0 in (0, 4):
            pos = 16 + 8 + db0
            issued = n_after(pos)
            need = 2 * (db0 + 4)
            assert issued >= need, (issued, need)
            pre[k2 + 1].setdefault(8 + db0, []).append(f"s_waitcnt lgkmcnt({issued - need})")
        if barrier:
            pre[k2].setdefault(8, []).append("s_barrier")
    last[-1].setdefault(6, []).append(f"v_add_u32 v{VADDR}, s45, v{VADDR}")
    last[-1].setdefault(7, []).append(f"v_add_u32 v{KADDR}, s45, v{KADDR}")
    first[4].setdefault(0, []).append("s_add_u32 s44, s44, 1")
    first[4].setdefault(1, []).append("s_and_b32 s46, s44, 3")
    first[4].setdefault(2, []).append(f"s_cselect_b32 s45, s54, {-(6*SLOT) & 0xffffffff}")
    first[4].setdefault(3, []).append("s_cmp_lt_u32 s44, 8")
    out = []
    for k in range(-1, 5):
        emit_slot(out, k + 6, mode, first=first[k], last=last[k], pre=pre[k])
    return out
```

```python
import sys, argparse, struct, math
from body import *

KN = "standalone__gqa_softmax__near_ridge_kernel"
NSLOT = 8
RING = NSLOT * SLOT
QBASE = RING
QPITCH = 288
QWAVE = 16 * QPITCH
LDS_BYTES = QBASE + 4 * QWAVE

WS_ML = 16 << 20
WS_FLAG = 24 << 20
WS_TS = 32 << 20
C_SCALE = struct.unpack("<I", struct.pack("<f", math.log2(math.e) / math.sqrt(128.0)))[0]
NTS = 16


class G:
    def __init__(self, opt):
        self.o = []
        self.opt = opt
    def __call__(self, s):
        if isinstance(s, list):
            for x in s: self(x)
            return
        for l in s.split("\n"):
            l = l.strip()
            if l:
                self.o.append(("" if l.endswith(":") else "    ") + l)
    def ts(self, idx):
        if self.opt.ts:
            self(f"s_memrealtime s[{64+2*idx}:{65+2*idx}]" if self.opt.ts == 2 else f"s_memtime s[{64+2*idx}:{65+2*idx}]")
    def ts_store(self, widx):
        if not self.opt.ts: return
        self("s_waitcnt vmcnt(0) lgkmcnt(0)")
        self("s_mov_b32 s28, s14\ns_mov_b32 s29, s15\ns_mov_b32 s30, 0x10000000\ns_mov_b32 s31, 0x20000")
        self("s_lshl_b32 s42, s2, 3")
        self("s_add_u32 s42, s42, s18")
        self("s_lshl_b32 s42, s42, 6")
        self(f"s_add_u32 s42, s42, {WS_TS}")
        for i in range(NTS):
            self(f"v_mov_b32 v1, s{64+2*i}")
            self(f"buffer_store_dword v1, off, s[28:31], s42 offset:{4*i}")
            self("s_nop 1")


def xlane(g, a, t, op):
    g(f"v_mov_b32 v{t}, v{a}")
    g("s_nop 1")
    g(f"v_permlane32_swap_b32 v{a}, v{t}")
    g("s_nop 1")
    g(f"{op} v{a}, v{a}, v{t}")
    g(f"v_mov_b32 v{t}, v{a}")
    g("s_nop 1")
    g(f"v_permlane16_swap_b32 v{a}, v{t}")
    g("s_nop 1")
    g(f"{op} v{a}, v{a}, v{t}")


def xlane3(g, regs, tmps, op):
    for sw in ("v_permlane32_swap_b32", "v_permlane16_swap_b32"):
        for a, t in zip(regs, tmps): g(f"v_mov_b32 v{t}, v{a}")
        g("s_nop 0")
        for a, t in zip(regs, tmps): g(f"{sw} v{a}, v{t}")
        g("s_nop 0")
        for a, t in zip(regs, tmps): g(f"{op} v{a}, v{a}, v{t}")


def slow_path(g, opt):
    g("L_slow:")
    g("s_lshl_b32 s38, s16, 19")
    g("s_lshl_b32 s39, s17, 17")
    g("s_add_u32 s38, s38, s39")
    g("s_add_u32 s20, s6, s38\ns_addc_u32 s21, s7, 0\ns_mov_b32 s22, 0x20000\ns_mov_b32 s23, 0x20000")
    g("s_add_u32 s56, s8, s38\ns_addc_u32 s57, s9, 0\ns_mov_b32 s58, 0x20000\ns_mov_b32 s59, 0x20000")
    g("s_movk_i32 s38, 0x1000\ns_movk_i32 s39, 0x2000")
    g(f"v_mbcnt_lo_u32_b32 v{TMP2}, -1, 0")
    g(f"v_mbcnt_hi_u32_b32 v{TMP2}, -1, v{TMP2}")
    addr_setup(g, TMP2, 96)
    g(f"s_mul_i32 s42, s19, {SLOT}")
    g(f"v_add_u32 v{KADDR}, s42, v{KADDR}")
    g(f"v_add_u32 v{VADDR}, s42, v{VADDR}")
    g(f"v_lshlrev_b32 v{TMP2}, 4, v{TMP2}")
    g("s_lshl_b32 s43, s17, 6")
    g(f"v_xor_b32 v{TMP3}, s43, v{TMP2}")
    for i in range(96): g(f"v_mov_b32 v{i}, 0")
    for i in range(6): g(f"v_mov_b32 v{L0+i}, 0")
    for b in range(3): g(f"v_mov_b32 v{C0+4*b}, 0x7f000000")
    g("s_mov_b32 s44, 0")
    g("L_slow_loop:")
    g("s_mov_b32 s45, s44")
    g("s_mov_b32 s46, s42")
    g("L_slow_ld:")
    g("s_mov_b32 m0, s46")
    g(f"s_add_u32 s47, s46, {TILE}")
    g(f"buffer_load_dwordx4 v{TMP2}, s[20:23], s45 offen lds")
    g("s_mov_b32 m0, s47")
    g(f"s_add_u32 s46, s46, {PIECE}")
    g(f"buffer_load_dwordx4 v{TMP3}, s[56:59], s45 offen lds")
    g("s_add_u32 s45, s45, 1024")
    g("s_and_b32 s47, s45, 0x1fff")
    g("s_cbranch_scc1 L_slow_ld")
    g("s_waitcnt vmcnt(0)")
    for i in range(8): g(kread(i, 0))
    for r in range(16): g(vread(r, 0))
    g("s_waitcnt lgkmcnt(0)")
    for b in range(3):
        c = C0 + 4 * b
        s = lambda i: f"v{S(0, i)}"
        for kb in range(2):
            for st in range(4):
                cc = "0" if st == 0 else Sq(0, kb)
                g(f"v_mfma_f32_16x16x32_bf16 {Sq(0,kb)}, {Ka(kb,st)}, {Qa(b,st)}, {cc}")
        g("s_nop 7")
        g(f"v_max3_f32 v{TMP0}, {s(0)}, {s(1)}, {s(2)}")
        g(f"v_max3_f32 v{TMP0}, v{TMP0}, {s(3)}, {s(4)}")
        g(f"v_max3_f32 v{TMP0}, v{TMP0}, {s(5)}, {s(6)}")
        g(f"v_max3_f32 v{TMP0}, v{TMP0}, {s(7)}, -v{c}")
        xlane(g, TMP0, TMP1, "v_max_f32")
        g(f"v_add_f32 v{TMP1}, v{c}, v{TMP0}")
        g(f"v_exp_f32 v{TMP1}, -v{TMP1}")
        g(f"v_sub_f32 v{c}, 0, v{TMP0}")
        for i in range(8): g(f"v_sub_f32 {s(i)}, {s(i)}, v{TMP0}")
        for i in range(8): g(f"v_exp_f32 {s(i)}, {s(i)}")
        g(f"v_mul_f32 v{L0+2*b}, v{L0+2*b}, v{TMP1}")
        for db in range(8):
            for r in range(4): g(f"v_mul_f32 v{O(db,b,r)}, v{O(db,b,r)}, v{TMP1}")
        for i in range(4): g(f"v_cvt_pk_bf16_f32 v{P(0,i)}, {s(2*i)}, {s(2*i+1)}")
        for i in range(8): g(f"v_add_f32 v{L0+2*b}, v{L0+2*b}, {s(i)}")
        for db in range(8):
            g(f"v_mfma_f32_16x16x32_bf16 {Oq(db,b)}, {Va(db)}, {Pq(0)}, {Oq(db,b)}")
    g("s_add_u32 s44, s44, 0x2000")
    g("s_cmp_lt_u32 s44, 0x20000")
    g("s_cbranch_scc1 L_slow_loop")
    g("s_nop 7")
    xlane3(g, [L0, L0 + 2, L0 + 4], [TMP0, TMP1, TMP2], "v_add_f32")
    g(f"v_mov_b32 v{KADDR}, 0")
    g("s_branch L_after_check")


def addr_setup(g, lane, t):
    g(f"v_and_b32 v{t}, 7, v{lane}")
    g(f"v_mul_u32_u24 v{t}, {PIECE}, v{t}")
    g(f"v_bfe_u32 v{t+1}, v{lane}, 3, 1")
    g(f"v_lshlrev_b32 v{t+1}, 8, v{t+1}")
    g(f"v_and_b32 v{t+2}, 48, v{lane}")
    g(f"v_add3_u32 v{KADDR}, v{t}, v{t+1}, v{t+2}")
    g(f"v_bfe_u32 v{t}, v{lane}, 2, 3")
    g(f"v_mul_u32_u24 v{t}, {PIECE}, v{t}")
    g(f"v_lshrrev_b32 v{t+1}, 5, v{lane}")
    g(f"v_lshlrev_b32 v{t+1}, 8, v{t+1}")
    g(f"v_and_b32 v{t+3}, 3, v{lane}")
    g(f"v_lshlrev_b32 v{t+3}, 3, v{t+3}")
    g(f"v_add3_u32 v{VADDR}, v{t}, v{t+1}, v{t+3}")
    g(f"v_add_u32 v{VADDR}, {TILE}, v{VADDR}")


def gen(opt):
    g = G(opt)
    kvpol, qpol = opt.kvpol, opt.qpol
    g.o.append(f"; @launch grid=(256,1,1) block=(512,1,1) lds={LDS_BYTES}")
    g.o.append('.amdgcn_target "amdgcn-amd-amdhsa--gfx950"')
    g.o.append(".text")
    g.o.append(f".globl {KN}")
    g.o.append(".p2align 8")
    g.o.append(f".type {KN},@function")
    g(f"{KN}:")
    g("s_load_dwordx8 s[4:11], s[0:1], 0")
    g("s_load_dwordx4 s[12:15], s[0:1], 32")
    g.ts(0)
    g("s_cmp_ge_u32 s2, 256")
    g("s_cbranch_scc1 L_end")
    g("v_lshrrev_b32 v1, 6, v0")
    g("s_and_b32 s16, s2, 7")
    g("s_lshr_b32 s17, s2, 3")
    g("v_readfirstlane_b32 s18, v1")
    g("s_lshl_b32 s16, s16, 3")
    g("s_lshr_b32 s19, s17, 2")
    g("s_add_u32 s16, s16, s19")
    g("s_and_b32 s17, s17, 3")
    g(f"v_and_b32 v{TMP2}, 63, v0")
    g(f"v_lshlrev_b32 v{TMP3}, 4, v{TMP2}")
    g("s_and_b32 s19, s18, 3")
    g("s_mov_b32 s23, 0x20000")
    g("s_cmp_ge_u32 s18, 4")
    g("s_cbranch_scc1 L_loader")

    g("s_lshl_b32 s36, s16, 2")
    g("s_add_u32 s36, s36, s19")
    g("s_mul_i32 s37, s36, 12288")
    g("s_mov_b32 s22, 12288")
    g("s_movk_i32 s38, 0x1000")
    g("s_movk_i32 s39, 0x2000")
    g("s_waitcnt lgkmcnt(0)")
    g("s_add_u32 s20, s4, s37")
    g("s_addc_u32 s21, s5, 0")
    for i in range(12):
        so = ["0", "s38", "s39"][i // 4]
        g(f"buffer_load_dwordx4 v[{4*i}:{4*i+3}], v{TMP3}, s[20:23], {so} offen offset:{(i%4)*1024} {qpol}")
    g("s_barrier")
    g.ts(1)
    g("s_add_u32 s24, s10, s37")
    g("s_addc_u32 s25, s11, 0")
    g("s_mov_b32 s26, 12288")
    g("s_mov_b32 s27, 0x20000")
    g("s_mov_b32 s28, s14")
    g("s_mov_b32 s29, s15")
    g("s_mov_b32 s30, 0x10000000")
    g("s_mov_b32 s31, 0x20000")
    g("s_mov_b32 s32, s12")
    g("s_mov_b32 s33, s13")
    g("s_mov_b32 s34, 256")
    g("s_mov_b32 s35, 0x20000")
    g("s_lshl_b32 s40, s16, 9")
    g("s_lshl_b32 s41, s17, 2")
    g("s_add_u32 s40, s40, s41")
    g(f"s_add_u32 s40, s40, {WS_FLAG}")
    g(f"v_and_b32 v96, 3, v{TMP2}")
    g("v_lshlrev_b32 v96, 7, v96")
    g("s_cmp_lg_u32 s19, 0")
    g("s_cbranch_scc1 L_nohs1")
    g("buffer_load_dword v97, v96, s[28:31], s40 offen sc1")
    g("L_nohs1:")
    addr_setup(g, TMP2, 100)
    g(f"s_mul_i32 s42, s19, {QWAVE}")
    g(f"s_add_u32 s42, s42, {QBASE}")
    g(f"v_lshrrev_b32 v103, 4, v{TMP2}")
    g(f"v_mul_u32_u24 v105, {QPITCH}, v103")
    g(f"v_and_b32 v107, 15, v{TMP2}")
    g("v_lshlrev_b32 v108, 4, v107")
    g("v_add3_u32 v105, v105, v108, s42")
    g(f"v_mul_u32_u24 v106, {QPITCH}, v107")
    g("v_add3_u32 v106, v106, v102, s42")
    for i in range(32): g(f"v_accvgpr_write_b32 a{80+i}, 0")
    for i in range(48, 96): g(f"v_mov_b32 v{i}, 0")
    for i in range(4): g(f"v_mov_b32 v{P(1,i)}, 0")
    for i in range(6): g(f"v_mov_b32 v{L0+i}, 0")
    g(f"s_mov_b32 s52, 0x{C_SCALE:08x}")
    g(f"s_mov_b32 s53, 0x{C_SCALE:08x}")
    g("s_mov_b32 s51, 0xffff0000")
    g(f"v_add_u32 v{TMP0}, {7*SLOT}, v{KADDR}")
    g(f"s_mov_b32 s54, {2*SLOT}")
    g("s_mov_b32 s44, 0")
    g("s_mov_b32 s45, 0")
    g.ts(2)
    for b in range(3):
        for i in range(4):
            li = b * 4 + i
            g(f"s_waitcnt vmcnt({11-li})")
            if li == 0: g.ts(3)
            for r in range(4):
                x = 4 * li + r
                t = 120 + 2 * (r & 1)
                g(f"v_lshlrev_b32 v{t}, 16, v{x}")
                g(f"v_and_b32 v{t+1}, s51, v{x}")
                g(f"v_pk_mul_f32 v[{t}:{t+1}], v[{t}:{t+1}], s[52:53]")
                g(f"v_cvt_pk_bf16_f32 v{x}, v{t}, v{t+1}")
            g(f"ds_write_b128 v105, v[{4*li}:{4*li+3}] offset:{i*4*QPITCH}")
        for s in range(4):
            g(f"ds_read_b128 {Qa(b,s)}, v106 offset:{64*s}")
    g.ts(4)
    g("s_barrier")
    g.ts(5)
    for kb in range(2):
        for s in range(4):
            g(f"ds_read_b128 {Ka(kb,s)}, v{TMP0} offset:{kb*512 + s*64}")
    g("s_cmp_lg_u32 s19, 0")
    g("s_cbranch_scc1 L_nohs2")
    g("s_waitcnt vmcnt(0)")
    g("v_and_b32 v97, 1, v97")
    g("v_cmp_eq_u32 vcc, 0, v97")
    g("s_getreg_b32 s41, hwreg(HW_REG_XCC_ID)")
    g("s_and_b32 s41, s41, 7")
    g("s_lshl_b32 s41, s41, 4")
    g("s_and_b32 s43, vcc_lo, 15")
    g("s_or_b32 s41, s41, s43")
    g("s_or_b32 s41, s41, 0x80")
    g("s_lshl_b32 s43, s17, 3")
    g("s_lshl_b32 s41, s41, s43")
    g("v_mov_b32 v97, s41")
    g("s_lshl_b32 s43, s16, 2")
    g("s_mov_b64 exec, 1")
    g("buffer_atomic_or v97, off, s[32:35], s43 sc1")
    g("s_mov_b64 exec, -1")
    g("L_nohs2:")
    for i in range(0, 24): g(f"v_mov_b32 v{i}, 0")
    g("s_waitcnt lgkmcnt(4)")
    for b in range(3):
        for s in range(4):
            c = "0" if s == 0 else Cq(b)
            g(f"v_mfma_f32_16x16x32_bf16 {Cq(b)}, {Ka(0,s)}, {Qa(b,s)}, {c}")
            g(f"v_mov_b32 v{24+(b*4+s)*2}, 0")
            g(f"v_mov_b32 v{25+(b*4+s)*2}, 0")
    g(f"v_mov_b32 v{S(1,4)}, 0")
    for i in range(5, 8): g(f"v_mov_b32 v{S(1,i)}, 0xf149f2ca")
    g("s_nop 1")
    for b in range(3):
        c = C0 + 4 * b
        g(f"v_max3_f32 v{c}, v{c}, v{c+1}, v{c+2}")
        g(f"v_max_f32 v{c}, v{c}, v{c+3}")
    xlane3(g, [C0, C0 + 4, C0 + 8], [C0 + 1, C0 + 5, C0 + 9], "v_max_f32")
    for b in range(3):
        c = C0 + 4 * b
        for i in (1, 2, 3, 0):
            g(f"v_sub_f32 v{c+i}, 0, v{c}")
    g("s_nop 0")
    g.ts(6)
    g("L_loop:")
    g(loop_body("add"))
    g("s_cbranch_scc1 L_loop")
    g.ts(7)
    g("s_lshl_b32 s43, s16, 2")
    g(f"buffer_load_dword v{KADDR}, off, s[32:35], s43 sc1")
    out = []
    emit_slot(out, 47, "add", qk=False, partA=False, last={7: ["s_nop 0"]})
    g(out)
    g.ts(8)
    for b in range(3):
        g(f"v_add_f32 v{L0+2*b}, v{L0+2*b}, v{L0+2*b+1}")
    xlane3(g, [L0, L0 + 2, L0 + 4], [TMP0, TMP1, TMP2], "v_add_f32")
    g(f"v_add_f32 v{TMP1}, v{L0}, v{L0+2}")
    g(f"v_add_f32 v{TMP1}, v{TMP1}, v{L0+4}")
    g("s_mov_b32 s50, " + ("0x5f800000" if not opt.force_fb else "0x00000000"))
    g(f"v_cmp_nlt_f32 vcc, v{TMP1}, s50")
    g("s_cbranch_vccz L_after_check")
    g("s_waitcnt vmcnt(0)")
    g("s_branch L_slow")
    g("L_after_check0:")
    g("L_after_check:")
    EOF_MARK = len(g.o)
    g("v_mbcnt_lo_u32_b32 v96, -1, 0")
    g("v_mbcnt_hi_u32_b32 v96, -1, v96")
    g("v_lshlrev_b32 v97, 4, v96")
    g(f"v_mov_b32 v100, v{L0}")
    g(f"v_mov_b32 v101, v{L0+2}")
    g(f"v_mov_b32 v102, v{L0+4}")
    g(f"v_mov_b32 v103, v{C0}")
    g(f"v_mov_b32 v104, v{C0+4}")
    g(f"v_mov_b32 v105, v{C0+8}")
    g("v_lshlrev_b32 v98, 3, v96")
    g("s_lshl_b32 s40, s36, 2")
    g("s_add_u32 s41, s40, s17")
    g("s_lshl_b32 s41, s41, 11")
    g(f"s_add_u32 s41, s41, {WS_ML}")
    sp = opt.stpol
    g(f"buffer_store_dwordx4 v[100:103], v97, s[28:31], s41 offen {sp}")
    g(f"buffer_store_dwordx2 v[104:105], v98, s[28:31], s41 offen offset:1024 {sp}")
    for x in range(1, 4):
        g(f"s_xor_b32 s42, s17, {x}")
        g("s_add_u32 s42, s42, s40")
        g("s_mul_i32 s42, s42, 9216")
        if x > 1:
            g(f"s_add_u32 s42, s42, {(x-1)*3072}")
        base = O(2 * x, 0)
        for i in range(12):
            g(f"v_cvt_pk_bf16_f32 v{base+i}, v{base+2*i}, v{base+2*i+1}")
            if i % 4 == 3:
                q = base + i - 3
                g(f"buffer_store_dwordx4 v[{q}:{q+3}], v97, s[28:31], s42 offen offset:{(i//4)*1024} {sp}")
    g.ts(9)
    g("s_lshl_b32 s43, s16, 2")
    g("s_mov_b32 s47, 0x100000")
    g("L_hs:")
    g(f"buffer_load_dword v{VADDR}, off, s[32:35], s43 sc1") if False else None
    g("s_waitcnt vmcnt(0)")
    g.ts(10)
    g(f"v_readfirstlane_b32 s44, v{KADDR}")
    g("s_and_b32 s45, s44, 0x80808080")
    g("s_cmp_eq_u32 s45, 0x80808080")
    g("s_cbranch_scc1 L_hs_ok")
    g("s_sleep 2")
    g(f"buffer_load_dword v{KADDR}, off, s[32:35], s43 sc1")
    g("s_sub_u32 s47, s47, 1")
    g("s_cbranch_scc0 L_hs")
    g("L_hs_ok:")
    g("s_lshr_b32 s45, s44, 8")
    g("s_xor_b32 s45, s45, s44")
    g("s_and_b32 s45, s45, 0x00707070")
    if opt.force_slow:
        g("s_mov_b32 s45, 1")
    g("v_and_b32 v99, 3, v96")
    g("v_lshlrev_b32 v106, 3, v99")
    g("v_add_u32 v106, s19, v106")
    g("v_lshrrev_b32 v106, v106, s44")
    g("v_and_b32 v106, 1, v106")
    g("v_lshlrev_b32 v99, 2, v99")
    g("s_lshl_b32 s46, s36, 7")
    g(f"s_add_u32 s46, s46, {WS_FLAG}")
    g("s_lshl_b64 s[48:49], 1, s17")
    g("s_cmp_lg_u32 s45, 0")
    g("s_cbranch_scc1 L_slow_flag")
    g("s_mov_b64 exec, s[48:49]")
    g(f"buffer_store_dword v106, v99, s[28:31], s46 offen {opt.flagpol}")
    g("s_mov_b64 exec, -1")
    g("L_poll0:")
    g("s_mov_b32 s47, 0x100000")
    g("L_poll:")
    g(f"buffer_load_dword v107, v99, s[28:31], s46 offen {opt.pollpol}")
    g("s_waitcnt vmcnt(0)")
    g("v_and_b32 v107, 1, v107")
    g("v_cmp_ne_u32 vcc, v107, v106")
    g("s_cbranch_vccz L_poll_ok")
    g("s_sub_u32 s47, s47, 1")
    g("s_cbranch_scc0 L_poll")
    g("L_poll_ok:")
    g.ts(11)
    g("s_cmp_eq_u32 s45, 0")
    g("s_cbranch_scc1 L_noinv")
    g("buffer_inv sc1")
    g("s_waitcnt vmcnt(0)")
    g("L_noinv:")
    lp = opt.ldpol
    for x in range(1, 4):
        g(f"s_xor_b32 s42, s17, {x}")
        g("s_add_u32 s42, s42, s40")
        g("s_lshl_b32 s42, s42, 11")
        g(f"s_add_u32 s42, s42, {WS_ML}")
        r = 108 + 6 * (x - 1)
        g(f"buffer_load_dwordx4 v[{r}:{r+3}], v97, s[28:31], s42 offen {lp}")
        g(f"buffer_load_dwordx2 v[{r+4}:{r+5}], v98, s[28:31], s42 offen offset:1024 {lp}")
    g("s_add_u32 s42, s17, s40")
    g("s_mul_i32 s42, s42, 9216")
    for x in range(1, 4):
        for i in range(3):
            r = 24 + (x - 1) * 12 + 4 * i
            g(f"buffer_load_dwordx4 v[{r}:{r+3}], v97, s[28:31], s42 offen offset:{i*1024} {lp}")
        if x < 3:
            g("s_add_u32 s42, s42, 3072")
    g("s_waitcnt vmcnt(9)")
    g.ts(12)
    def ml(x, b, which):
        base = 100 if x == 0 else 108 + 6 * (x - 1)
        return base + b + 3 * which
    for b in range(3):
        cm = 126
        g(f"v_min3_f32 v{cm}, v{ml(0,b,1)}, v{ml(1,b,1)}, v{ml(2,b,1)}")
        g(f"v_min_f32 v{cm}, v{cm}, v{ml(3,b,1)}")
        for x in range(4):
            g(f"v_sub_f32 v{ml(x,b,1)}, v{cm}, v{ml(x,b,1)}")
        for x in range(4):
            g(f"v_exp_f32 v{ml(x,b,1)}, v{ml(x,b,1)}")
        g("s_nop 0")
        g(f"v_mul_f32 v127, v{ml(0,b,1)}, v{ml(0,b,0)}")
        for x in range(1, 4):
            g(f"v_fmac_f32 v127, v{ml(x,b,1)}, v{ml(x,b,0)}")
        g("v_rcp_f32 v127, v127")
        g("s_nop 0")
        for x in range(4):
            g(f"v_mul_f32 v{ml(x,b,1)}, v{ml(x,b,1)}, v127")
    for h in range(2):
        for b in range(3):
            for r in range(4):
                g(f"v_mul_f32 v{O(h,b,r)}, v{O(h,b,r)}, v{ml(0,b,1)}")
    for x in range(1, 4):
        g(f"s_waitcnt vmcnt({(3-x)*3})")
        if x == 3: g.ts(13)
        for i in range(12):
            b = (i // 2) % 3
            src = 24 + (x - 1) * 12 + i
            g(f"v_lshlrev_b32 v128, 16, v{src}")
            g(f"v_and_b32 v129, s51, v{src}")
            g(f"v_fmac_f32 v{2*i}, v128, v{ml(x,b,1)}")
            g(f"v_fmac_f32 v{2*i+1}, v129, v{ml(x,b,1)}")
    g("v_and_b32 v128, 15, v96")
    g("v_lshlrev_b32 v128, 8, v128")
    g("v_lshrrev_b32 v129, 4, v96")
    g("v_lshlrev_b32 v129, 3, v129")
    g("s_lshl_b32 s42, s17, 6")
    g("v_add3_u32 v128, v128, v129, s42")
    for h in range(2):
        for b in range(3):
            o = O(h, b)
            g(f"v_cvt_pk_bf16_f32 v{o}, v{o}, v{o+1}")
            g(f"v_cvt_pk_bf16_f32 v{o+1}, v{o+2}, v{o+3}")
            so = ["0", "s38", "s39"][b]
            g(f"buffer_store_dwordx2 v[{o}:{o+1}], v128, s[24:27], {so} offen offset:{32*h} {opt.outpol}")
    g.ts(14)
    if opt.ts:
        g("s_waitcnt vmcnt(0)")
        g.ts(15)
    g.ts_store(0)
    g("L_end:")
    g("s_endpgm")
    g("L_slow_flag:")
    g("buffer_wbl2 sc1")
    g("s_waitcnt vmcnt(0)")
    g("s_mov_b64 exec, s[48:49]")
    g("buffer_store_dword v106, v99, s[28:31], s46 offen sc1")
    g("s_mov_b64 exec, -1")
    g("s_branch L_poll0")

    g("L_loader:")
    g("s_lshl_b32 s36, s19, 11")
    g("s_lshl_b32 s37, s17, 6")
    g(f"v_xor_b32 v2, s37, v{TMP3}")
    g(f"v_add_u32 v1, s36, v{TMP3}")
    g("v_add_u32 v2, s36, v2")
    g("s_lshl_b32 s38, s16, 19")
    g("s_lshl_b32 s39, s17, 17")
    g("s_add_u32 s38, s38, s39")
    g(f"s_mul_i32 s42, s19, {2*PIECE}")
    g("s_mov_b32 s22, 0x20000")
    g("s_mov_b32 s26, 0x20000")
    g("s_mov_b32 s27, 0x20000")
    g(f"s_add_u32 m0, s42, {7*SLOT}")
    g("s_mov_b32 s40, 0x2000")
    g("s_mov_b32 s41, 0")
    g("s_mov_b32 s43, s42")
    g("s_waitcnt lgkmcnt(0)")
    g("s_add_u32 s20, s6, s38")
    g("s_addc_u32 s21, s7, 0")
    g(f"buffer_load_dwordx4 v1, s[20:23], 0 offen {kvpol} lds")
    g(f"s_add_u32 m0, s42, {7*SLOT+32}")
    g("s_add_u32 s24, s8, s38")
    g("s_addc_u32 s25, s9, 0")
    g(f"buffer_load_dwordx4 v1, s[20:23], 0 offen offset:1024 {kvpol} lds")
    g("s_barrier")
    g.ts(1)
    def pair(k=True):
        if k:
            g("s_mov_b32 m0, s43")
            g("s_add_u32 s44, s43, 32")
            g(f"buffer_load_dwordx4 v1, s[20:23], s40 offen {kvpol} lds")
            g("s_mov_b32 m0, s44")
            g(f"s_add_u32 s44, s43, {TILE}")
            g(f"buffer_load_dwordx4 v1, s[20:23], s40 offen offset:1024 {kvpol} lds")
            g("s_mov_b32 m0, s44")
        else:
            g(f"s_add_u32 m0, s43, {TILE}")
        g(f"s_add_u32 s44, s43, {TILE+32}")
        g(f"buffer_load_dwordx4 v2, s[24:27], s41 offen {kvpol} lds")
        g("s_mov_b32 m0, s44")
        g("s_add_u32 s40, s40, 0x2000")
        g(f"buffer_load_dwordx4 v2, s[24:27], s41 offen offset:1024 {kvpol} lds")
        g("s_add_u32 s41, s41, 0x2000")
        g(f"s_add_u32 s43, s43, {SLOT}")
    D = opt.depth
    I0 = opt.init_pairs
    g("L_ld0:")
    pair()
    g(f"s_cmp_lt_u32 s41, {I0*0x2000}")
    g("s_cbranch_scc1 L_ld0")
    g.ts(2)
    g(f"s_waitcnt vmcnt({4*I0})")
    g.ts(3)
    g("s_barrier")
    if D > I0:
        g("L_ld0b:")
        pair()
        g(f"s_cmp_lt_u32 s41, {D*0x2000}")
        g("s_cbranch_scc1 L_ld0b")
    g.ts(4)
    g("L_ld1:")
    g(f"s_waitcnt vmcnt({4*(D-1)})")
    g("s_barrier")
    pair()
    g(f"s_cmp_eq_u32 s41, {8*0x2000}")
    g("s_cselect_b32 s43, s42, s43")
    g(f"s_cmp_lt_u32 s41, {15*0x2000}")
    g("s_cbranch_scc1 L_ld1")
    g(f"s_waitcnt vmcnt({4*(D-1)})")
    g("s_barrier")
    pair(k=False)
    g.ts(5)
    for i in range(D):
        n = 4 * (D - 2 - i) + 2 if i < D - 1 else 0
        g(f"s_waitcnt vmcnt({n})")
        g.ts(6 + i)
        g("s_barrier")
    g.ts_store(1)
    g("s_endpgm")
    slow_path(g, opt)
    g.o.append(f""".section .rodata,"a"
.p2align 6
.amdhsa_kernel {KN}
  .amdhsa_next_free_vgpr {NV+NA}
  .amdhsa_next_free_sgpr 96
  .amdhsa_accum_offset {NV}
  .amdhsa_group_segment_fixed_size 0
  .amdhsa_kernarg_size 48
  .amdhsa_user_sgpr_count 2
  .amdhsa_user_sgpr_kernarg_segment_ptr 1
  .amdhsa_system_sgpr_workgroup_id_x 1
.end_amdhsa_kernel""")
    return "\n".join(g.o) + "\n"


if __name__ == "__main__":
    ap = argparse.ArgumentParser()
    ap.add_argument("-o", default="standalone__gqa_softmax__near_ridge.s")
    ap.add_argument("--kvpol", default="nt")
    ap.add_argument("--qpol", default="")
    ap.add_argument("--stpol", default="")
    ap.add_argument("--ldpol", default="sc1")
    ap.add_argument("--outpol", default="")
    ap.add_argument("--ts", type=int, default=0)
    ap.add_argument("--pollpol", default="sc1")
    ap.add_argument("--flagpol", default="")
    ap.add_argument("--depth", type=int, default=4)
    ap.add_argument("--init_pairs", type=int, default=2)
    ap.add_argument("--force_slow", type=int, default=0)
    ap.add_argument("--force_fb", type=int, default=0)
    opt = ap.parse_args()
    open(opt.o, "w").write(gen(opt))
```

```python
PIECE = 1056
TILE = 8 * PIECE
SLOT = 2 * TILE

def O(db, b, r=0): return (db * 3 + b) * 4 + r
def Oq(db, b): x = O(db, b); return f"v[{x}:{x+3}]"
S0 = 96
def S(par, i): return S0 + par * 8 + i
def Sq(par, kb): x = S(par, kb * 4); return f"v[{x}:{x+3}]"
P0 = 112
def P(par, i): return P0 + par * 4 + i
def Pq(par): x = P(par, 0); return f"v[{x}:{x+3}]"
C0 = 120
def Cq(b): x = C0 + 4 * b; return f"v[{x}:{x+3}]"
L0 = 132
KADDR, VADDR = 138, 139
TMP0, TMP1, TMP2, TMP3 = 140, 141, 142, 143
NV = 144
def Qa(b, s): x = (b * 4 + s) * 4; return f"a[{x}:{x+3}]"
def Ka(kb, s): x = 48 + (kb * 4 + s) * 4; return f"a[{x}:{x+3}]"
def Va(db): x = 80 + db * 4; return f"a[{x}:{x+3}]"
def Vh(db, h): x = 80 + db * 4 + 2 * h; return f"a[{x}:{x+1}]"
NA = 112

def softmax_ops(n, mode):
    par, b = n & 1, n % 3
    s = lambda i: f"v{S(par, i)}"
    X = lambda i: f"v_exp_f32 {s(i)}, {s(i)}"
    CV = lambda i: f"v_cvt_pk_bf16_f32 v{P(par,i)}, {s(2*i)}, {s(2*i+1)}"
    l0, l1 = L0 + 2 * b, L0 + 2 * b + 1
    AD = lambda i: f"v_add_f32 v{l0 + (i & 1)}, v{l0 + (i & 1)}, {s(i)}"
    PK = lambda i: f"v_pk_add_f32 v[{l0}:{l1}], v[{l0}:{l1}], v[{S(par,2*i)}:{S(par,2*i+1)}]"
    DT = lambda i: f"v_dot2c_f32_bf16 v{l0 + (i & 1)}, v{P(par,i)}, v{TMP3}"
    if mode == "add":
        return {8: [X(0)], 9: [X(1)], 10: [X(2)], 11: [CV(0), AD(0)], 12: [X(3)], 13: [X(4)], 14: [CV(1), AD(1)], 15: [AD(2), AD(3)],
                16: [X(5)], 17: [X(6)], 18: [CV(2), AD(4)], 19: [X(7)], 20: [AD(5), AD(6)], 21: [CV(3), AD(7)], 22: [], 23: []}
    if mode == "pk":
        return {8: [X(0)], 9: [X(1)], 10: [X(2)], 11: [CV(0), PK(0)], 12: [X(3)], 13: [X(4)], 14: [CV(1), PK(1)], 15: [],
                16: [X(5)], 17: [X(6)], 18: [CV(2), PK(2)], 19: [X(7)], 20: [], 21: [CV(3), PK(3)], 22: [], 23: []}
    if mode == "dot":
        return {8: [X(0)], 9: [X(1)], 10: [X(2)], 11: [CV(0)], 12: [X(3)], 13: [X(4)], 14: [CV(1), DT(0)], 15: [DT(1)],
                16: [X(5)], 17: [X(6)], 18: [CV(2)], 19: [X(7)], 20: [DT(2)], 21: [CV(3)], 22: [DT(3)], 23: []}
    if mode == "none":
        return {8: [X(0)], 9: [X(1)], 10: [X(2)], 11: [CV(0)], 12: [X(3)], 13: [X(4)], 14: [CV(1)], 15: [],
                16: [X(5)], 17: [X(6)], 18: [CV(2)], 19: [X(7)], 20: [], 21: [CV(3)], 22: [], 23: []}
    raise ValueError(mode)

def slot_mfmas(n, pv_order=None):
    bq, pq, bp, pp = (n + 1) % 3, (n + 1) & 1, n % 3, n & 1
    mf = []
    for kb in range(2):
        for s in range(4):
            c = Cq(bq) if s == 0 else Sq(pq, kb)
            mf.append(f"v_mfma_f32_16x16x32_bf16 {Sq(pq,kb)}, {Ka(kb,s)}, {Qa(bq,s)}, {c}")
    for db in (pv_order or range(8)):
        mf.append(f"v_mfma_f32_16x16x32_bf16 {Oq(db,bp)}, {Va(db)}, {Pq(pp)}, {Oq(db,bp)}")
    return mf

def emit_slot(out, n, mode, qk=True, partA=True, first=None, last=None, pre=None, pv_order=None):
    first, last, pre = first or {}, last or {}, pre or {}
    smB, smA = softmax_ops(n, mode), softmax_ops(n + 1, mode)
    mf = slot_mfmas(n, pv_order)
    for pos in range(16):
        out += pre.get(pos, [])
        if pos >= 8 or qk:
            out.append(mf[pos])
        out += first.get(pos, [])
        if pos < 8:
            out += smB[16 + pos]
        elif partA:
            out += smA[pos]
        out += last.get(pos, [])

def kread(i, off):
    kb, s = i // 4, i % 4
    return f"ds_read_b128 {Ka(kb,s)}, v{KADDR} offset:{off + kb*512 + s*64}"
def vread(r, off):
    db, h = r >> 1, r & 1
    return f"ds_read_b64_tr_b16 {Vh(db,h)}, v{VADDR} offset:{off + h*512 + db*32}"

def loop_body(mode="add", kg=None, vg=None, barrier=True, rotated=False):
    kg = kg or [6, 6, 7, 7, 9, 10, 12, 15]
    vg = vg or [8 + r for r in range(16)]
    first = {k: {} for k in range(-1, 6)}
    pre = {k: {} for k in range(-1, 6)}
    last = {k: {} for k in range(-1, 6)}
    for tt, k2 in ((0, -1), (1, 2)):
        for r in range(16):
            kk, gp = k2 + vg[r] // 16, vg[r] % 16
            assert vg[r] >= 8 + (r >> 1)
            first[kk].setdefault(gp, []).append(vread(r, tt * SLOT))
    for tt, k1 in ((0, 1), (1, 4)):
        for i in range(8):
            assert i <= kg[i] < 16
            first[k1].setdefault(kg[i], []).append(kread(i, tt * SLOT))
    for k2 in (-1, 2):
        pre[k2].setdefault(0, []).append("s_waitcnt lgkmcnt(4)")
        pre[k2].setdefault(4, []).append("s_waitcnt lgkmcnt(0)")
        n_after = lambda pos: sum(1 for r in range(16) if vg[r] < pos)
        for db0 in (0, 4):
            pos = 16 + 8 + db0
            issued = n_after(pos)
            need = 2 * (db0 + 4)
            assert issued >= need, (issued, need)
            pre[k2 + 1].setdefault(8 + db0, []).append(f"s_waitcnt lgkmcnt({issued - need})")
        if barrier:
            pre[k2].setdefault(8, []).append("s_barrier")
    last[-1].setdefault(6, []).append(f"v_add_u32 v{VADDR}, s45, v{VADDR}")
    last[-1].setdefault(7, []).append(f"v_add_u32 v{KADDR}, s45, v{KADDR}")
    kc, g0 = (3, 8) if rotated else (4, 0)
    first[kc].setdefault(g0 + 0, []).append("s_add_u32 s44, s44, 1")
    first[kc].setdefault(g0 + 1, []).append("s_and_b32 s46, s44, 3")
    first[kc].setdefault(g0 + 2, []).append(f"s_cselect_b32 s45, s54, {-(6*SLOT) & 0xffffffff}")
    first[kc].setdefault(g0 + 4, []).append("s_cmp_lt_u32 s44, 8")
    slots = {}
    for k in range(-1, 5):
        out = []
        emit_slot(out, k + 6, mode, first=first[k], last=last[k], pre=pre[k])
        slots[k] = out
    if rotated:
        return slots
    return sum((slots[k] for k in range(-1, 5)), [])
```

```python
import sys, argparse, struct, math
from body import *

KN = "standalone__gqa_softmax__near_ridge_kernel"
NSLOT = 8
RING = NSLOT * SLOT
QBASE = RING
QPITCH = 288
QWAVE = 16 * QPITCH
RBASE = QBASE + 4 * QWAVE
RPITCH = 1088
LDS_BYTES = RBASE + 4 * RPITCH

WS_ML = 16 << 20
WS_FLAG = 24 << 20
WS_TS = 32 << 20
C_SCALE = struct.unpack("<I", struct.pack("<f", math.log2(math.e) / math.sqrt(128.0)))[0]
NTS = 16


class G:
    def __init__(self, opt):
        self.o = []
        self.opt = opt
    def __call__(self, s):
        if isinstance(s, list):
            for x in s: self(x)
            return
        for l in s.split("\n"):
            l = l.strip()
            if l:
                self.o.append(("" if l.endswith(":") else "    ") + l)
    def ts(self, idx):
        if self.opt.pts and idx >= 9:
            self.seen = getattr(self, "seen", set())
            if idx in self.seen: return
            self.seen.add(idx)
        if self.opt.ts:
            self(f"s_memrealtime s[{64+2*idx}:{65+2*idx}]" if self.opt.ts == 2 else f"s_memtime s[{64+2*idx}:{65+2*idx}]")
    def ts_store(self, widx):
        if not self.opt.ts: return
        self("s_waitcnt vmcnt(0) lgkmcnt(0)")
        self("s_mov_b32 s28, s14\ns_mov_b32 s29, s15\ns_mov_b32 s30, 0x10000000\ns_mov_b32 s31, 0x20000")
        self("s_lshl_b32 s42, s2, 3")
        self("s_add_u32 s42, s42, s18")
        self("s_lshl_b32 s42, s42, 6")
        self(f"s_add_u32 s42, s42, {WS_TS}")
        for i in range(NTS):
            self(f"v_mov_b32 v1, s{64+2*i}")
            self(f"buffer_store_dword v1, off, s[28:31], s42 offset:{4*i}")
            self("s_nop 1")


def xlane(g, a, t, op):
    g(f"v_mov_b32 v{t}, v{a}")
    g("s_nop 1")
    g(f"v_permlane32_swap_b32 v{a}, v{t}")
    g("s_nop 1")
    g(f"{op} v{a}, v{a}, v{t}")
    g(f"v_mov_b32 v{t}, v{a}")
    g("s_nop 1")
    g(f"v_permlane16_swap_b32 v{a}, v{t}")
    g("s_nop 1")
    g(f"{op} v{a}, v{a}, v{t}")


def xlane3(g, regs, tmps, op):
    for sw in ("v_permlane32_swap_b32", "v_permlane16_swap_b32"):
        for a, t in zip(regs, tmps): g(f"v_mov_b32 v{t}, v{a}")
        g("s_nop 0")
        for a, t in zip(regs, tmps): g(f"{sw} v{a}, v{t}")
        g("s_nop 0")
        for a, t in zip(regs, tmps): g(f"{op} v{a}, v{a}, v{t}")


def slow_path(g, opt):
    g("L_slow:")
    g("s_lshl_b32 s38, s16, 19")
    g("s_lshl_b32 s39, s17, 17")
    g("s_add_u32 s38, s38, s39")
    g("s_add_u32 s20, s6, s38\ns_addc_u32 s21, s7, 0\ns_mov_b32 s22, 0x20000\ns_mov_b32 s23, 0x20000")
    g("s_add_u32 s96, s8, s38\ns_addc_u32 s97, s9, 0\ns_mov_b32 s98, 0x20000\ns_mov_b32 s99, 0x20000")
    g("s_movk_i32 s38, 0x1000\ns_movk_i32 s39, 0x2000")
    g(f"v_mbcnt_lo_u32_b32 v{TMP2}, -1, 0")
    g(f"v_mbcnt_hi_u32_b32 v{TMP2}, -1, v{TMP2}")
    addr_setup(g, TMP2, 96)
    g(f"s_mul_i32 s42, s19, {SLOT}")
    g(f"v_add_u32 v{KADDR}, s42, v{KADDR}")
    g(f"v_add_u32 v{VADDR}, s42, v{VADDR}")
    g(f"v_lshlrev_b32 v{TMP2}, 4, v{TMP2}")
    g("s_lshl_b32 s43, s17, 6")
    g(f"v_xor_b32 v{TMP3}, s43, v{TMP2}")
    for i in range(96): g(f"v_mov_b32 v{i}, 0")
    for i in range(6): g(f"v_mov_b32 v{L0+i}, 0")
    for b in range(3): g(f"v_mov_b32 v{C0+4*b}, 0x7f000000")
    g("s_mov_b32 s44, 0")
    g("L_slow_loop:")
    g("s_mov_b32 s45, s44")
    g("s_mov_b32 s46, s42")
    g("L_slow_ld:")
    g("s_mov_b32 m0, s46")
    g(f"s_add_u32 s47, s46, {TILE}")
    g(f"buffer_load_dwordx4 v{TMP2}, s[20:23], s45 offen lds")
    g("s_mov_b32 m0, s47")
    g(f"s_add_u32 s46, s46, {PIECE}")
    g(f"buffer_load_dwordx4 v{TMP3}, s[96:99], s45 offen lds")
    g("s_add_u32 s45, s45, 1024")
    g("s_and_b32 s47, s45, 0x1fff")
    g("s_cbranch_scc1 L_slow_ld")
    g("s_waitcnt vmcnt(0)")
    for i in range(8): g(kread(i, 0))
    for r in range(16): g(vread(r, 0))
    g("s_waitcnt lgkmcnt(0)")
    for b in range(3):
        c = C0 + 4 * b
        s = lambda i: f"v{S(0, i)}"
        for kb in range(2):
            for st in range(4):
                cc = "0" if st == 0 else Sq(0, kb)
                g(f"v_mfma_f32_16x16x32_bf16 {Sq(0,kb)}, {Ka(kb,st)}, {Qa(b,st)}, {cc}")
        g("s_nop 7")
        g(f"v_max3_f32 v{TMP0}, {s(0)}, {s(1)}, {s(2)}")
        g(f"v_max3_f32 v{TMP0}, v{TMP0}, {s(3)}, {s(4)}")
        g(f"v_max3_f32 v{TMP0}, v{TMP0}, {s(5)}, {s(6)}")
        g(f"v_max3_f32 v{TMP0}, v{TMP0}, {s(7)}, -v{c}")
        xlane(g, TMP0, TMP1, "v_max_f32")
        g(f"v_add_f32 v{TMP1}, v{c}, v{TMP0}")
        g(f"v_exp_f32 v{TMP1}, -v{TMP1}")
        g(f"v_sub_f32 v{c}, 0, v{TMP0}")
        for i in range(8): g(f"v_sub_f32 {s(i)}, {s(i)}, v{TMP0}")
        for i in range(8): g(f"v_exp_f32 {s(i)}, {s(i)}")
        g(f"v_mul_f32 v{L0+2*b}, v{L0+2*b}, v{TMP1}")
        for db in range(8):
            for r in range(4): g(f"v_mul_f32 v{O(db,b,r)}, v{O(db,b,r)}, v{TMP1}")
        for i in range(4): g(f"v_cvt_pk_bf16_f32 v{P(0,i)}, {s(2*i)}, {s(2*i+1)}")
        for i in range(8): g(f"v_add_f32 v{L0+2*b}, v{L0+2*b}, {s(i)}")
        for db in range(8):
            g(f"v_mfma_f32_16x16x32_bf16 {Oq(db,b)}, {Va(db)}, {Pq(0)}, {Oq(db,b)}")
    g("s_add_u32 s44, s44, 0x2000")
    g("s_cmp_lt_u32 s44, 0x20000")
    g("s_cbranch_scc1 L_slow_loop")
    g("s_nop 7")
    xlane3(g, [L0, L0 + 2, L0 + 4], [TMP0, TMP1, TMP2], "v_add_f32")
    g(f"v_mbcnt_lo_u32_b32 v{TMP3}, -1, 0")
    g(f"v_mbcnt_hi_u32_b32 v{TMP3}, -1, v{TMP3}")
    g(f"v_lshlrev_b32 v{TMP3}, 4, v{TMP3}")
    g(f"v_and_b32 v{TMP2}, 0xf0, v{TMP3}")
    g(f"v_mov_b32 v{KADDR}, 0")
    g(f"v_mov_b32 v100, v{C0}\nv_mov_b32 v101, v{C0+4}\nv_mov_b32 v102, v{C0+8}\nv_mov_b32 v103, 0")
    g(f"buffer_store_dwordx4 v[100:103], v{TMP2}, s[28:31], s59 offen offset:256 sc1")
    g(f"v_mov_b32 v96, v{L0}\nv_mov_b32 v97, v{L0+2}\nv_mov_b32 v98, v{L0+4}\nv_mov_b32 v99, 1")
    g(f"buffer_store_dwordx4 v[96:99], v{TMP2}, s[28:31], s59 offen sc1")
    for b in range(3):
        for x in range(1, 4):
            g(pack_ops(x, b))
            g(pay_store(x, b, opt))
    g("s_branch L_sent")


def pack_ops(x, b):
    o, p = O(2 * x, b), O(2 * x + 1, b)
    return [f"v_cvt_pk_bf16_f32 v{o}, v{o}, v{o+1}", f"v_cvt_pk_bf16_f32 v{o+1}, v{o+2}, v{o+3}",
            f"v_cvt_pk_bf16_f32 v{o+2}, v{p}, v{p+1}", f"v_cvt_pk_bf16_f32 v{o+3}, v{p+2}, v{p+3}"]

def pay_store(x, b, opt):
    if opt.exp_x1 and x > 1: return "s_nop 0"
    return f"buffer_store_dwordx4 {Oq(2*x, b)}, v{TMP3}, s[28:31], s{55+x} offen offset:{b*1024} {opt.stpol}"


def addr_setup(g, lane, t):
    g(f"v_and_b32 v{t}, 7, v{lane}")
    g(f"v_mul_u32_u24 v{t}, {PIECE}, v{t}")
    g(f"v_bfe_u32 v{t+1}, v{lane}, 3, 1")
    g(f"v_lshlrev_b32 v{t+1}, 8, v{t+1}")
    g(f"v_and_b32 v{t+2}, 48, v{lane}")
    g(f"v_add3_u32 v{KADDR}, v{t}, v{t+1}, v{t+2}")
    g(f"v_bfe_u32 v{t}, v{lane}, 2, 3")
    g(f"v_mul_u32_u24 v{t}, {PIECE}, v{t}")
    g(f"v_lshrrev_b32 v{t+1}, 5, v{lane}")
    g(f"v_lshlrev_b32 v{t+1}, 8, v{t+1}")
    g(f"v_and_b32 v{t+3}, 3, v{lane}")
    g(f"v_lshlrev_b32 v{t+3}, 3, v{t+3}")
    g(f"v_add3_u32 v{VADDR}, v{t}, v{t+1}, v{t+3}")
    g(f"v_add_u32 v{VADDR}, {TILE}, v{VADDR}")


def gen(opt):
    g = G(opt)
    kvpol, qpol = opt.kvpol, opt.qpol
    g.o.append(f"; @launch grid=(256,1,1) block=(512,1,1) lds={LDS_BYTES}")
    g.o.append('.amdgcn_target "amdgcn-amd-amdhsa--gfx950"')
    g.o.append(".text")
    g.o.append(f".globl {KN}")
    g.o.append(".p2align 8")
    g.o.append(f".type {KN},@function")
    g(f"{KN}:")
    g("s_load_dwordx8 s[4:11], s[0:1], 0")
    g("s_load_dwordx4 s[12:15], s[0:1], 32")
    g.ts(0)
    g("s_cmp_ge_u32 s2, 256")
    g("s_cbranch_scc1 L_end")
    g("v_lshrrev_b32 v1, 6, v0")
    g("s_and_b32 s16, s2, 7")
    g("s_lshr_b32 s17, s2, 3")
    g("v_readfirstlane_b32 s18, v1")
    g("s_lshl_b32 s16, s16, 3")
    g("s_lshr_b32 s19, s17, 2")
    g("s_add_u32 s16, s16, s19")
    g("s_and_b32 s17, s17, 3")
    if opt.linear:
        g("s_lshr_b32 s16, s2, 2\ns_and_b32 s17, s2, 3")
    g(f"v_and_b32 v{TMP2}, 63, v0")
    g(f"v_lshlrev_b32 v{TMP3}, 4, v{TMP2}")
    g("s_and_b32 s19, s18, 3")
    g("s_mov_b32 s23, 0x20000")
    g("s_mov_b32 s27, 0x20000")
    g("s_mov_b32 s31, 0x20000")
    g("s_cmp_lt_u32 s18, 4")
    g("s_cbranch_scc1 L_compute")

    g("s_lshl_b32 s36, s19, 11")
    g("s_lshl_b32 s37, s17, 6")
    g(f"v_xor_b32 v2, s37, v{TMP3}")
    g(f"v_add_u32 v1, s36, v{TMP3}")
    g("v_add_u32 v2, s36, v2")
    g("s_lshl_b32 s38, s16, 19")
    g("s_lshl_b32 s39, s17, 17")
    g("s_add_u32 s39, s38, s39")
    g(f"s_mul_i32 s42, s19, {2*PIECE}")
    g("s_mov_b32 s22, 0x20000")
    g("s_mov_b32 s26, 0x20000")
    g("s_movk_i32 s30, 0x1000")
    g(f"s_mul_i32 s44, s19, {RPITCH}")
    g(f"s_add_u32 m0, s44, {RBASE}")
    g(f"v_and_b32 v5, 48, v{TMP2}")
    g(f"v_xor_b32 v5, v5, v{TMP3}")
    g("s_lshl_b32 s45, s19, 10")
    g("s_mov_b32 s40, 0x2000")
    g("s_mov_b32 s41, 0")
    g("s_mov_b32 s43, s42")
    g("s_lshl_b32 s46, s16, 9")
    g("s_lshl_b32 s47, s17, 2")
    g("s_add_u32 s46, s46, s47")
    g(f"s_add_u32 s46, s46, {WS_FLAG}")
    g(f"v_and_b32 v3, 3, v{TMP2}")
    g("v_lshlrev_b32 v3, 7, v3")
    g("s_mov_b32 s34, 0x10000000")
    g("s_mov_b32 s35, 0x20000")
    g("s_mov_b32 s50, 256")
    g("s_mov_b32 s51, 0x20000")
    g("s_waitcnt lgkmcnt(0)")
    g("s_add_u32 s28, s6, s38")
    g("s_addc_u32 s29, s7, 0")
    g("buffer_load_dwordx4 v5, s[28:31], s45 offen lds")
    g(f"s_add_u32 m0, s42, {7*SLOT}")
    g("s_add_u32 s20, s6, s39")
    g("s_addc_u32 s21, s7, 0")
    g(f"buffer_load_dwordx4 v1, s[20:23], 0 offen {kvpol} lds")
    g(f"s_add_u32 m0, s42, {7*SLOT+32}")
    g("s_add_u32 s24, s8, s39")
    g("s_addc_u32 s25, s9, 0")
    g(f"buffer_load_dwordx4 v1, s[20:23], 0 offen offset:1024 {kvpol} lds")
    if opt.exp_2x:
        g("s_xor_b32 s47, s39, 0x20000")
        g("s_add_u32 s52, s6, s47\ns_addc_u32 s53, s7, 0\ns_mov_b32 s54, 0x20000\ns_mov_b32 s55, 0x20000")
        g("s_add_u32 s56, s8, s47\ns_addc_u32 s57, s9, 0\ns_mov_b32 s58, 0x20000\ns_mov_b32 s59, 0x20000")
    g("s_mov_b32 s32, s14")
    g("s_mov_b32 s33, s15")
    g("s_mov_b32 s48, s12")
    g("s_mov_b32 s49, s13")
    g("s_cmp_lg_u32 s19, 0")
    g("s_cbranch_scc1 L_nohs1")
    g(f"buffer_load_dword v4, v3, s[32:35], s46 offen {opt.stalepol}")
    g("L_nohs1:")
    g("s_barrier")
    g.ts(1)
    def hs2():
        g("s_cmp_lg_u32 s19, 0")
        g("s_cbranch_scc1 L_nohs2")
        g("v_and_b32 v4, 1, v4")
        g("v_cmp_eq_u32 vcc, 0, v4")
        g("s_getreg_b32 s46, hwreg(HW_REG_XCC_ID)")
        g("s_and_b32 s46, s46, 7")
        g("s_lshl_b32 s46, s46, 4")
        g("s_and_b32 s47, vcc_lo, 15")
        g("s_or_b32 s46, s46, s47")
        g("s_or_b32 s46, s46, 0x80")
        g("s_lshl_b32 s47, s17, 3")
        g("s_lshl_b32 s46, s46, s47")
        g("v_mov_b32 v4, s46")
        g("s_lshl_b32 s47, s16, 2")
        g("s_mov_b64 exec, 1")
        g("buffer_atomic_or v4, off, s[48:51], s47 sc1")
        g("s_mov_b64 exec, -1")
        g("L_nohs2:")
    def pair(k=True):
        if k:
            g("s_mov_b32 m0, s43")
            g("s_add_u32 s44, s43, 32")
            g(f"buffer_load_dwordx4 v1, s[20:23], s40 offen {kvpol} lds")
            g("s_mov_b32 m0, s44")
            g(f"s_add_u32 s44, s43, {TILE}")
            g(f"buffer_load_dwordx4 v1, s[20:23], s40 offen offset:1024 {kvpol} lds")
            g("s_mov_b32 m0, s44")
        else:
            g(f"s_add_u32 m0, s43, {TILE}")
        g(f"s_add_u32 s44, s43, {TILE+32}")
        g(f"buffer_load_dwordx4 v2, s[24:27], s41 offen {kvpol} lds")
        g("s_mov_b32 m0, s44")
        g("s_add_u32 s40, s40, 0x2000")
        g(f"buffer_load_dwordx4 v2, s[24:27], s41 offen offset:1024 {kvpol} lds")
        if opt.exp_2x:
            g(f"s_sub_u32 s60, s41, {opt.exp_2x*0x2000}\ns_and_b32 s60, s60, 0x1ffff")
            g(f"s_add_u32 s61, s43, {4*SLOT}\ns_sub_u32 s62, s61, {RING}\ns_cmp_ge_u32 s61, {RING}\ns_cselect_b32 m0, s62, s61")
            g("s_nop 0")
            for srd, vv in (("s[52:55]", "v1"), ("s[56:59]", "v2")):
                g(f"buffer_load_dwordx4 {vv}, {srd}, s60 offen {kvpol} lds")
                g(f"buffer_load_dwordx4 {vv}, {srd}, s60 offen offset:1024 {kvpol} lds")
        g("s_add_u32 s41, s41, 0x2000")
        g(f"s_add_u32 s43, s43, {SLOT}")
    D = opt.depth
    PL = 8 if opt.exp_2x else 4
    I0 = opt.init_pairs
    if opt.trace:
        cnt = [0]
        def tr():
            g("s_memrealtime s[60:61]\ns_waitcnt lgkmcnt(0)")
            g(f"v_writelane_b32 v10, s60, {cnt[0]}")
            cnt[0] += 1
        g("s_waitcnt lgkmcnt(0)")
        g("v_writelane_b32 v10, s64, 63")
        def upair(u):
            pair(k=(u < 15))
            if u == 7: g("s_mov_b32 s43, s42")
        for u in range(I0): upair(u)
        tr()
        g(f"s_waitcnt vmcnt({4*I0})")
        tr()
        g("s_barrier")
        hs2()
        tr()
        for u in range(I0, D): upair(u)
        issued = D
        for t in range(16):
            out_after = sum((4 if u < 15 else 2) for u in range(t + 1, issued))
            tr()
            g(f"s_waitcnt vmcnt({out_after})")
            tr()
            g("s_barrier")
            tr()
            if issued < 16:
                upair(issued); issued += 1
        g("s_mov_b32 s28, s14\ns_mov_b32 s29, s15\ns_mov_b32 s30, 0x10000000\ns_mov_b32 s31, 0x20000")
        g("s_lshl_b32 s42, s2, 2\ns_add_u32 s42, s42, s19\ns_lshl_b32 s42, s42, 8")
        g(f"s_add_u32 s42, s42, {WS_TS + (1<<20)}")
        g(f"v_lshrrev_b32 v11, 2, v{TMP3}")
        g("buffer_store_dword v10, v11, s[28:31], s42 offen")
    else:
        g("L_ld0:")
        pair()
        g(f"s_cmp_lt_u32 s41, {I0*0x2000}")
        g("s_cbranch_scc1 L_ld0")
        g.ts(2)
        g(f"s_waitcnt vmcnt({PL*I0})")
        g.ts(3)
        g("s_barrier")
        hs2()
        if D > I0:
            g("L_ld0b:")
            pair()
            g(f"s_cmp_lt_u32 s41, {D*0x2000}")
            g("s_cbranch_scc1 L_ld0b")
        g.ts(4)
        g("L_ld1:")
        g(f"s_waitcnt vmcnt({PL*(D-1)})")
        g("s_barrier")
        pair()
        g(f"s_cmp_eq_u32 s41, {8*0x2000}")
        g("s_cselect_b32 s43, s42, s43")
        g(f"s_cmp_lt_u32 s41, {15*0x2000}")
        g("s_cbranch_scc1 L_ld1")
        g(f"s_waitcnt vmcnt({PL*(D-1)})")
        g("s_barrier")
        pair(k=False)
        npw = 0
        if opt.prewarm is not None:
            g("s_mov_b32 s28, s14\ns_mov_b32 s29, s15\ns_mov_b32 s30, 0x10000000")
            g("s_lshl_b32 s36, s16, 2\ns_add_u32 s36, s36, s19\ns_lshl_b32 s36, s36, 2\ns_add_u32 s36, s36, s17")
            g("s_mul_i32 s37, s36, 9216")
            g(f"s_mul_i32 s38, s19, {QWAVE}\ns_add_u32 m0, s38, {QBASE}")
            for i in range(3):
                for k in range(3):
                    g(f"buffer_load_dwordx4 v{TMP3}, s[28:31], s37 offen offset:{k*1024} {opt.prewarm} lds")
                g("s_add_u32 s37, s37, 3072")
            g(f"s_lshl_b32 s37, s36, 11\ns_add_u32 s37, s37, {WS_ML}")
            g(f"buffer_load_dwordx4 v{TMP3}, s[28:31], s37 offen {opt.prewarm} lds")
            npw = 10
        g.ts(5)
        for i in range(D):
            n = (PL * (D - 2 - i) + PL - 2 if i < D - 1 else 0) + npw
            g(f"s_waitcnt vmcnt({n})")
            g.ts(6 + i)
            g("s_barrier")
    g.ts_store(1)
    g("s_endpgm")

    g("L_compute:")
    g("s_lshl_b32 s36, s16, 2")
    g("s_add_u32 s36, s36, s19")
    g("s_mul_i32 s37, s36, 12288")
    g("s_mov_b32 s22, 12288")
    g("s_movk_i32 s38, 0x1000")
    g("s_movk_i32 s39, 0x2000")
    addr_setup(g, TMP2, 100)
    g(f"s_mul_i32 s42, s19, {QWAVE}")
    g(f"s_add_u32 s42, s42, {QBASE}")
    g(f"v_lshrrev_b32 v103, 4, v{TMP2}")
    g(f"v_mul_u32_u24 v105, {QPITCH}, v103")
    g(f"v_and_b32 v107, 15, v{TMP2}")
    g("v_lshlrev_b32 v108, 4, v107")
    g("v_add3_u32 v105, v105, v108, s42")
    g(f"v_mul_u32_u24 v106, {QPITCH}, v107")
    g("v_add3_u32 v106, v106, v102, s42")
    g(f"v_bfe_u32 v107, v{TMP2}, 2, 2")
    g(f"v_mul_u32_u24 v107, {RPITCH}, v107")
    g(f"v_and_b32 v109, 3, v{TMP2}")
    g("v_xor_b32 v110, v109, v103")
    g("v_lshlrev_b32 v110, 4, v110")
    g("v_lshlrev_b32 v109, 8, v109")
    g("v_add3_u32 v107, v107, v109, v110")
    g(f"v_add_u32 v107, {RBASE}, v107")
    g(f"v_mov_b32 v{TMP2}, v108")
    for i in range(48, 96): g(f"v_mov_b32 v{i}, 0")
    for i in range(6): g(f"v_mov_b32 v{L0+i}, 0")
    g(f"s_mov_b32 s52, 0x{C_SCALE:08x}")
    g(f"s_mov_b32 s53, 0x{C_SCALE:08x}")
    g("s_mov_b32 s51, 0xffff0000")
    g(f"v_add_u32 v{TMP0}, {7*SLOT}, v{KADDR}")
    g(f"s_mov_b32 s54, {2*SLOT}")
    g("s_mov_b32 s44, 0")
    g("s_lshl_b32 s40, s36, 2")
    for x in range(1, 4):
        g(f"s_xor_b32 s42, s17, {x}")
        g("s_add_u32 s42, s42, s40")
        g(f"s_mul_i32 s{55+x}, s42, 9216")
        if x > 1: g(f"s_add_u32 s{55+x}, s{55+x}, {(x-1)*3072}")
    g("s_add_u32 s42, s40, s17")
    g("s_lshl_b32 s59, s42, 9")
    g(f"s_add_u32 s59, s59, {WS_ML}")
    g("s_mul_i32 s60, s42, 9216")
    g("s_lshl_b32 s61, s36, 7")
    g(f"s_add_u32 s61, s61, {WS_FLAG}")
    g("s_lshl_b32 s62, s16, 2")
    g("s_mov_b32 s26, 12288")
    g("s_mov_b32 s30, 0x10000000")
    g("s_mov_b32 s34, 256")
    g("s_mov_b32 s35, 0x20000")
    g("s_mov_b32 s48, 0x3f80")
    g("s_mov_b32 s49, 0x3f800000")
    g.ts(2)
    g("s_waitcnt lgkmcnt(0)")
    g("s_add_u32 s20, s4, s37")
    g("s_addc_u32 s21, s5, 0")
    for i in range(12):
        so = ["0", "s38", "s39"][i // 4]
        g(f"buffer_load_dwordx4 v[{4*i}:{4*i+3}], v{TMP3}, s[20:23], {so} offen offset:{(i%4)*1024} {qpol}")
    g("s_barrier")
    g.ts(1)
    g("s_add_u32 s24, s10, s37")
    g("s_addc_u32 s25, s11, 0")
    g("s_mov_b32 s28, s14")
    g("s_mov_b32 s29, s15")
    g("s_mov_b32 s32, s12")
    g("s_mov_b32 s33, s13")
    def qscale_ops(b):
        out = []
        for i in range(4):
            li = b * 4 + i
            grp = [f"s_waitcnt vmcnt({11-li})"]
            for r in range(4): grp += [f"v_lshlrev_b32 v{112+2*r}, 16, v{4*li+r}", f"v_and_b32 v{113+2*r}, s51, v{4*li+r}"]
            for r in range(4): grp.append(f"v_pk_mul_f32 v[{112+2*r}:{113+2*r}], v[{112+2*r}:{113+2*r}], s[52:53]")
            for r in range(4): grp.append(f"v_cvt_pk_bf16_f32 v{4*li+r}, v{112+2*r}, v{113+2*r}")
            grp.append(f"ds_write_b128 v105, v[{4*li}:{4*li+3}] offset:{i*4*QPITCH}")
            out.append(grp)
        out.append([f"ds_read_b128 {Qa(b,s)}, v106 offset:{64*s}" for s in range(4)])
        return out
    def pp_mfma(b, s):
        c = "0" if s == 0 else Cq(b)
        return f"v_mfma_f32_16x16x32_bf16 {Cq(b)}, {Va(s)}, {Qa(b,s)}, {c}"
    for grp in qscale_ops(0): g(grp)
    g.ts(3)
    for grp in qscale_ops(1): g(grp)
    for grp in qscale_ops(2): g(grp)
    zero = [f"v_mov_b32 v{i}, 0" for i in range(48)]
    g(zero[:32])
    g.ts(4)
    g("s_barrier")
    g.ts(5)
    for s in range(4):
        g(f"ds_read_b128 {Va(s)}, v107 offset:{64*s}")
    k0r = [f"ds_read_b128 {Ka(kb,s)}, v{TMP0} offset:{kb*512 + s*64}" for kb in range(2) for s in range(4)]
    g(k0r[:4])
    g(zero[32:40])
    g("s_waitcnt lgkmcnt(4)")
    if opt.pts: g.ts(9)
    pm = [pp_mfma(b, s) for b in range(3) for s in range(4)]
    qk0 = [m.replace(Cq(0), "0") for m in slot_mfmas(5)[:8]]
    class Lst(list):
        def __call__(self, x): self.append(x)
    red = Lst()
    for b in range(3):
        c = C0 + 4 * b
        red += [f"v_max3_f32 v{c}, v{c}, v{c+1}, v{c+2}", f"v_max_f32 v{c}, v{c}, v{c+3}"]
    xlane3(red, [C0, C0 + 4, C0 + 8], [C0 + 1, C0 + 5, C0 + 9], "v_max_f32")
    for i in range(12):
        g(pm[i])
        if i < 4: g(k0r[4 + i])
        elif i < 8: g(zero[40 + 2 * (i - 4):42 + 2 * (i - 4)])
        elif i >= 10: g(red[2 * (i - 10):2 * (i - 10) + 2])
    if opt.pts: g.ts(10)
    g("s_waitcnt lgkmcnt(0)")
    rest = red[4:]
    for i in range(8):
        g(qk0[i])
        if i == 3: g("s_nop 2")
        if i >= 3: g(rest[(i - 3) * len(rest) // 5:(i - 2) * len(rest) // 5])
    if opt.pts: g.ts(11)
    g("s_barrier")
    if opt.pts: g.ts(12)
    for r in range(8): g(vread(r, 0))
    for i in range(8): g(f"v_sub_f32 v{S(0,i)}, v{S(0,i)}, v{C0}")
    smA = softmax_ops(6, "add")
    neg = []
    for b in (1, 2, 0):
        c = C0 + 4 * b
        for i in (1, 2, 3, 0):
            neg.append(f"v_sub_f32 v{c+i}, 0, v{c}")
    side = [f"v_mov_b32 v108, v{C0}", f"v_mov_b32 v109, v{C0+4}", f"v_mov_b32 v110, v{C0+8}",
            f"buffer_store_dwordx4 v[108:111], v{TMP2}, s[28:31], s59 offen offset:256 sc1"]
    for i in range(8):
        g(smA[8 + i])
        g(neg[i * 12 // 8:(i + 1) * 12 // 8])
    g(side)
    g.ts(6)
    g("s_branch L_k0")
    slots = loop_body("add", rotated=True)
    g("L_loop:")
    g(slots[4]); g(slots[-1])
    g("L_k0:")
    for k in range(4): g(slots[k])
    g("s_cbranch_scc1 L_loop")
    g.ts(7)
    g(f"buffer_load_dword v{KADDR}, off, s[32:35], s62 sc1")
    last, first = {}, {}
    gaps = [4, 6, 7]
    for x in range(1, 4):
        ops = pack_ops(x, 0)
        gp = {1: (3, 4), 2: (6, 6), 3: (7, 7)}[x]
        last.setdefault(gp[0], []).extend(ops[:2]); last.setdefault(gp[1], []).extend(ops[2:])
        first.setdefault(gp[1] + 1, []).append(pay_store(x, 0, opt))
    out = []
    emit_slot(out, 46, "add", first=first, last=last)
    g(out)
    last, first = {}, {}
    for x in range(1, 4):
        last.setdefault(2 * x - 1, []).extend(pack_ops(x, 1) + [pay_store(x, 1, opt)])
    lred = Lst()
    for b in range(3): lred(f"v_add_f32 v{96+b}, v{L0+2*b}, v{L0+2*b+1}")
    xlane3(lred, [96, 97, 98], [100, 101, 102], "v_add_f32")
    lred("v_mov_b32 v99, 0")
    lred(f"buffer_store_dwordx4 v[96:99], v{TMP2}, s[28:31], s59 offen {opt.stpol}")
    lred(f"v_add_f32 v{TMP1}, v96, v97")
    lred("s_mov_b32 s50, " + ("0x5f800000" if not opt.force_fb else "0x00000000"))
    lred(f"v_add_f32 v{TMP1}, v{TMP1}, v98")
    lred(f"v_cmp_nlt_f32 vcc, v{TMP1}, s50")
    for i in range(5):
        last.setdefault(8 + i, []).extend(lred[i * len(lred) // 5:(i + 1) * len(lred) // 5])
    last.setdefault(13, []).extend(pack_ops(1, 2) + [pay_store(1, 2, opt)])
    last.setdefault(15, []).extend(pack_ops(2, 2) + [pay_store(2, 2, opt)] + pack_ops(3, 2) + [pay_store(3, 2, opt)])
    out = []
    emit_slot(out, 47, "add", qk=False, partA=False, last=last, pv_order=[2, 3, 4, 5, 6, 7, 0, 1])
    g(out)
    g.ts(8)
    g("s_cbranch_vccz L_sent")
    g("s_waitcnt vmcnt(0)")
    g("s_branch L_slow")
    g("L_sent:")
    g("s_mov_b32 s47, 0x100000")
    g(f"s_waitcnt vmcnt({4 if opt.exp_x1 else 10})")
    g("L_hs:")
    g(f"v_readfirstlane_b32 s44, v{KADDR}")
    g("s_and_b32 s45, s44, 0x80808080")
    g("s_cmp_eq_u32 s45, 0x80808080")
    g("s_cbranch_scc0 L_hs_retry")
    g("L_hs_ok:")
    g("s_lshr_b32 s45, s44, 8")
    g("s_xor_b32 s45, s45, s44")
    g("s_and_b32 s45, s45, 0x00707070")
    if opt.force_slow:
        g("s_mov_b32 s45, 1")
    g(f"v_bfe_u32 v100, v{TMP3}, 4, 2")
    g("v_lshlrev_b32 v101, 3, v100")
    g("v_add_u32 v101, s19, v101")
    g("v_lshrrev_b32 v101, v101, s44")
    g("v_and_b32 v101, 1, v101")
    g("v_lshlrev_b32 v100, 2, v100")
    g("s_lshl_b32 s46, s17, 3")
    g("s_add_u32 s46, s46, s19")
    g("s_lshr_b32 s46, s44, s46")
    g("s_and_b32 s46, s46, 1")
    g("v_mov_b32 v102, s46")
    g("s_lshl_b32 s46, s17, 2")
    g("s_add_u32 s46, s46, s61")
    for x in range(1, 4):
        g(f"s_xor_b32 s{55+x}, s59, {x<<9}")
    g("s_mov_b32 s47, 0x100000")
    g("s_cmp_lg_u32 s45, 0")
    g.ts(9)
    g("s_waitcnt vmcnt(0)")
    g.ts(10)
    g("s_cbranch_scc1 L_xcd_flag")
    g(f"buffer_store_dword v102, off, s[28:31], s46 {opt.flagpol}")
    g("L_poll:")
    g(f"buffer_load_dword v103, v100, s[28:31], s61 offen {opt.pollpol}")
    g("s_waitcnt vmcnt(0)")
    g("v_and_b32 v103, 1, v103")
    g("v_cmp_ne_u32 vcc, v103, v101")
    g("s_cbranch_vccz L_poll_ok")
    g("s_sub_u32 s47, s47, 1")
    g("s_cbranch_scc0 L_poll")
    g("L_poll_ok:")
    g.ts(11)
    lp = opt.ldpol
    LR = lambda x: 100 + 4 * x
    PR = lambda x, b: 24 + ((x - 1) * 3 + b) * 4
    for x in range(1, 4):
        g(f"buffer_load_dwordx4 v[{LR(x)}:{LR(x)+3}], v{TMP2}, s[28:31], s{55+x} offen {lp}")
    for x in range(1, 4):
        for b in range(3):
            if opt.exp_x1 and x < 3: continue
            g(f"buffer_load_dwordx4 v[{PR(x,b)}:{PR(x,b)+3}], v{TMP3}, s[28:31], s60 offen offset:{b*1024} {lp}")
        if x < 3 and not opt.exp_x1: g("s_add_u32 s60, s60, 3072")
    g(f"v_bfe_u32 v132, v{TMP3}, 4, 4")
    g("v_lshlrev_b32 v132, 8, v132")
    g(f"v_lshrrev_b32 v133, 8, v{TMP3}")
    g("v_lshlrev_b32 v133, 3, v133")
    g("s_lshl_b32 s42, s17, 6")
    g("v_add3_u32 v132, v132, v133, s42")
    g(f"s_waitcnt vmcnt({3 if opt.exp_x1 else 9})")
    g.ts(12)
    g(f"v_or3_b32 v99, v99, v{LR(1)+3}, v{LR(2)+3}")
    g(f"v_or_b32 v99, v99, v{LR(3)+3}")
    g("v_cmp_ne_u32 vcc, 0, v99")
    g("s_cbranch_vccnz L_general")
    for x in range(1, 4):
        for b in range(3):
            g(f"v_add_f32 v{96+b}, v{96+b}, v{LR(x)+b}")
    for b in range(3): g(f"v_rcp_f32 v{96+b}, v{96+b}")
    def acc_reg(b, i): return O(i // 4, b, i % 4)
    for x in range(3 if opt.exp_x1 else 1, 4):
        for b in range(3):
            g(f"s_waitcnt vmcnt({9 - ((x-1)*3 + b) - 1})")
            if x == 3 and b == 2: g.ts(13)
            for r in range(4):
                src = PR(x, b) + r
                if opt.dot:
                    g(f"v_dot2c_f32_bf16 v{acc_reg(b,2*r)}, s48, v{src}")
                    g(f"v_dot2c_f32_bf16 v{acc_reg(b,2*r+1)}, s49, v{src}")
                else:
                    t = 116 + 2 * (r & 1)
                    g(f"v_lshlrev_b32 v{t}, 16, v{src}")
                    g(f"v_and_b32 v{t+1}, s51, v{src}")
                    g(f"v_pk_add_f32 v[{acc_reg(b,2*r)}:{acc_reg(b,2*r+1)}], v[{acc_reg(b,2*r)}:{acc_reg(b,2*r+1)}], v[{t}:{t+1}]")
            if x == 3:
                if opt.dot: g("s_nop 2")
                out_store(g, b, 96 + b, opt)
    g("L_done:")
    g.ts(14)
    if opt.ts:
        g("s_waitcnt vmcnt(0)")
        g.ts(15)
    g.ts_store(0)
    g("L_end:")
    g("s_endpgm")
    g("L_hs_retry:")
    g("s_sleep 2")
    g(f"buffer_load_dword v{KADDR}, off, s[32:35], s62 sc1")
    g("s_sub_u32 s47, s47, 1")
    g("s_waitcnt vmcnt(0)")
    g("s_cbranch_scc0 L_hs")
    g("s_branch L_hs_ok")
    g("L_xcd_flag:")
    g("buffer_store_dword v102, off, s[28:31], s46 sc1")
    g("L_poll2:")
    g("buffer_load_dword v103, v100, s[28:31], s61 offen sc1")
    g("s_waitcnt vmcnt(0)")
    g("v_and_b32 v103, 1, v103")
    g("v_cmp_ne_u32 vcc, v103, v101")
    g("s_cbranch_vccz L_poll_ok")
    g("s_sub_u32 s47, s47, 1")
    g("s_cbranch_scc0 L_poll2")
    g("s_branch L_poll_ok")
    g("L_general:")
    CR = lambda x: 60 + 4 * x
    for x in range(1, 4):
        g(f"buffer_load_dwordx4 v[{CR(x)}:{CR(x)+3}], v{TMP2}, s[28:31], s{55+x} offen offset:256 sc1")
    for b in range(3): g(f"v_mov_b32 v{CR(0)+b}, v{C0+4*b}")
    g("s_waitcnt vmcnt(0)")
    for b in range(3):
        g(f"v_min3_f32 v100, v{CR(0)+b}, v{CR(1)+b}, v{CR(2)+b}")
        g(f"v_min_f32 v100, v100, v{CR(3)+b}")
        for x in range(4): g(f"v_sub_f32 v{CR(x)+b}, v100, v{CR(x)+b}")
        for x in range(4): g(f"v_exp_f32 v{CR(x)+b}, v{CR(x)+b}")
        g("s_nop 0")
        g(f"v_mul_f32 v{96+b}, v{96+b}, v{CR(0)+b}")
        for x in range(1, 4): g(f"v_fmac_f32 v{96+b}, v{CR(x)+b}, v{LR(x)+b}")
    for b in range(3): g(f"v_rcp_f32 v{96+b}, v{96+b}")
    for b in range(3):
        for i in range(8): g(f"v_mul_f32 v{acc_reg(b,i)}, v{acc_reg(b,i)}, v{CR(0)+b}")
        for x in range(1, 4):
            for r in range(4):
                src = PR(x, b) + r
                g(f"v_lshlrev_b32 v116, 16, v{src}")
                g(f"v_and_b32 v117, s51, v{src}")
                g(f"v_fmac_f32 v{acc_reg(b,2*r)}, v116, v{CR(x)+b}")
                g(f"v_fmac_f32 v{acc_reg(b,2*r+1)}, v117, v{CR(x)+b}")
        out_store(g, b, 96 + b, opt)
    g("s_branch L_done")
    slow_path(g, opt)
    g.o.append(f""".section .rodata,"a"
.p2align 6
.amdhsa_kernel {KN}
  .amdhsa_next_free_vgpr {NV+NA}
  .amdhsa_next_free_sgpr 102
  .amdhsa_accum_offset {NV}
  .amdhsa_group_segment_fixed_size 0
  .amdhsa_kernarg_size 48
  .amdhsa_user_sgpr_count 2
  .amdhsa_user_sgpr_kernarg_segment_ptr 1
  .amdhsa_system_sgpr_workgroup_id_x 1
.end_amdhsa_kernel""")
    return "\n".join(g.o) + "\n"


def out_store(g, b, rl, opt):
    for h in range(2):
        o = O(h, b)
        for r in range(4): g(f"v_mul_f32 v{o+r}, v{o+r}, v{rl}")
        g(f"v_cvt_pk_bf16_f32 v{o}, v{o}, v{o+1}")
        g(f"v_cvt_pk_bf16_f32 v{o+1}, v{o+2}, v{o+3}")
        so = ["0", "s38", "s39"][b]
        g(f"buffer_store_dwordx2 v[{o}:{o+1}], v132, s[24:27], {so} offen offset:{32*h} {opt.outpol}")


if __name__ == "__main__":
    ap = argparse.ArgumentParser()
    ap.add_argument("-o", default="standalone__gqa_softmax__near_ridge.s")
    ap.add_argument("--kvpol", default="nt")
    ap.add_argument("--qpol", default="")
    ap.add_argument("--stpol", default="sc1")
    ap.add_argument("--ldpol", default="sc1")
    ap.add_argument("--outpol", default="")
    ap.add_argument("--ts", type=int, default=0)
    ap.add_argument("--pts", type=int, default=0)
    ap.add_argument("--exp_x1", type=int, default=0)
    ap.add_argument("--exp_2x", type=int, default=0)
    ap.add_argument("--prewarm", default=None)
    ap.add_argument("--linear", type=int, default=0)
    ap.add_argument("--trace", type=int, default=0)
    ap.add_argument("--pollpol", default="nt")
    ap.add_argument("--stalepol", default="")
    ap.add_argument("--dot", type=int, default=1)
    ap.add_argument("--flagpol", default="")
    ap.add_argument("--depth", type=int, default=3)
    ap.add_argument("--init_pairs", type=int, default=2)
    ap.add_argument("--force_slow", type=int, default=0)
    ap.add_argument("--force_fb", type=int, default=0)
    opt = ap.parse_args()
    open(opt.o, "w").write(gen(opt))
```

```python
import sys, argparse, struct, math
from body import *

KN = "standalone__gqa_softmax__near_ridge_kernel"
NSLOT = 8
RING = NSLOT * SLOT
QBASE = RING
QPITCH = 288
QWAVE = 16 * QPITCH
RBASE = QBASE + 4 * QWAVE
RPITCH = 1088
LDS_BYTES = RBASE + 4 * RPITCH

WS_ML = 16 << 20
WS_FLAG = 24 << 20
WS_TS = 32 << 20
C_SCALE = struct.unpack("<I", struct.pack("<f", math.log2(math.e) / math.sqrt(128.0)))[0]
NTS = 16


class G:
    def __init__(self, opt):
        self.o = []
        self.opt = opt
    def __call__(self, s):
        if isinstance(s, list):
            for x in s: self(x)
            return
        for l in s.split("\n"):
            l = l.strip()
            if l:
                self.o.append(("" if l.endswith(":") else "    ") + l)
    def ts(self, idx):
        if self.opt.pts and idx >= 9:
            self.seen = getattr(self, "seen", set())
            if idx in self.seen: return
            self.seen.add(idx)
        if self.opt.ts:
            self(f"s_memrealtime s[{64+2*idx}:{65+2*idx}]" if self.opt.ts == 2 else f"s_memtime s[{64+2*idx}:{65+2*idx}]")
    def ts_store(self, widx):
        if not self.opt.ts: return
        self("s_waitcnt vmcnt(0) lgkmcnt(0)")
        if self.opt.tsout:
            self("s_mov_b32 s28, s10\ns_mov_b32 s29, s11\ns_mov_b32 s30, 0x300000\ns_mov_b32 s31, 0x20000")
            self("s_lshl_b32 s42, s2, 3\ns_add_u32 s42, s42, s18\ns_lshl_b32 s42, s42, 6")
            for i in range(1, NTS):
                self(f"s_sub_u32 s{64+2*i}, s{64+2*i}, s64")
            self("v_mov_b32 v1, 0")
            for i in range(NTS):
                self(f"v_writelane_b32 v1, s{64+2*i}, {i}")
            self("v_and_b32 v1, 0x3fff, v1")
            self("v_lshrrev_b32 v2, 6, v1\nv_and_b32 v3, 63, v1\nv_cvt_f32_u32 v2, v2\nv_cvt_f32_u32 v3, v3\nv_cvt_pk_bf16_f32 v2, v2, v3")
            self("v_mbcnt_lo_u32_b32 v4, -1, 0\nv_lshlrev_b32 v4, 2, v4")
            self("s_mov_b64 exec, 0xffff")
            self("buffer_store_dword v2, v4, s[28:31], s42 offen")
            return
        self("s_mov_b32 s28, s14\ns_mov_b32 s29, s15\ns_mov_b32 s30, 0x10000000\ns_mov_b32 s31, 0x20000")
        self("s_lshl_b32 s42, s2, 3")
        self("s_add_u32 s42, s42, s18")
        self("s_lshl_b32 s42, s42, 6")
        self(f"s_add_u32 s42, s42, {WS_TS}")
        for i in range(NTS):
            self(f"v_mov_b32 v1, s{64+2*i}")
            self(f"buffer_store_dword v1, off, s[28:31], s42 offset:{4*i}")
            self("s_nop 1")


def xlane(g, a, t, op):
    g(f"v_mov_b32 v{t}, v{a}")
    g("s_nop 1")
    g(f"v_permlane32_swap_b32 v{a}, v{t}")
    g("s_nop 1")
    g(f"{op} v{a}, v{a}, v{t}")
    g(f"v_mov_b32 v{t}, v{a}")
    g("s_nop 1")
    g(f"v_permlane16_swap_b32 v{a}, v{t}")
    g("s_nop 1")
    g(f"{op} v{a}, v{a}, v{t}")


def xlane3(g, regs, tmps, op):
    for sw in ("v_permlane32_swap_b32", "v_permlane16_swap_b32"):
        for a, t in zip(regs, tmps): g(f"v_mov_b32 v{t}, v{a}")
        g("s_nop 0")
        for a, t in zip(regs, tmps): g(f"{sw} v{a}, v{t}")
        g("s_nop 0")
        for a, t in zip(regs, tmps): g(f"{op} v{a}, v{a}, v{t}")


def slow_path(g, opt):
    g("L_slow:")
    g("s_lshl_b32 s38, s16, 19")
    g("s_lshl_b32 s39, s17, 17")
    g("s_add_u32 s38, s38, s39")
    g("s_add_u32 s20, s6, s38\ns_addc_u32 s21, s7, 0\ns_mov_b32 s22, 0x20000\ns_mov_b32 s23, 0x20000")
    g("s_add_u32 s96, s8, s38\ns_addc_u32 s97, s9, 0\ns_mov_b32 s98, 0x20000\ns_mov_b32 s99, 0x20000")
    g("s_movk_i32 s38, 0x1000\ns_movk_i32 s39, 0x2000")
    g(f"v_mbcnt_lo_u32_b32 v{TMP2}, -1, 0")
    g(f"v_mbcnt_hi_u32_b32 v{TMP2}, -1, v{TMP2}")
    addr_setup(g, TMP2, 96)
    g(f"s_mul_i32 s42, s19, {SLOT}")
    g(f"v_add_u32 v{KADDR}, s42, v{KADDR}")
    g(f"v_add_u32 v{VADDR}, s42, v{VADDR}")
    g(f"v_lshlrev_b32 v{TMP2}, 4, v{TMP2}")
    g("s_lshl_b32 s43, s17, 6")
    g(f"v_xor_b32 v{TMP3}, s43, v{TMP2}")
    for i in range(96): g(f"v_mov_b32 v{i}, 0")
    for i in range(6): g(f"v_mov_b32 v{L0+i}, 0")
    for b in range(3): g(f"v_mov_b32 v{C0+4*b}, 0x7f000000")
    g("s_mov_b32 s44, 0")
    g("L_slow_loop:")
    g("s_mov_b32 s45, s44")
    g("s_mov_b32 s46, s42")
    g("L_slow_ld:")
    g("s_mov_b32 m0, s46")
    g(f"s_add_u32 s47, s46, {TILE}")
    g(f"buffer_load_dwordx4 v{TMP2}, s[20:23], s45 offen lds")
    g("s_mov_b32 m0, s47")
    g(f"s_add_u32 s46, s46, {PIECE}")
    g(f"buffer_load_dwordx4 v{TMP3}, s[96:99], s45 offen lds")
    g("s_add_u32 s45, s45, 1024")
    g("s_and_b32 s47, s45, 0x1fff")
    g("s_cbranch_scc1 L_slow_ld")
    g("s_waitcnt vmcnt(0)")
    for i in range(8): g(kread(i, 0))
    for r in range(16): g(vread(r, 0))
    g("s_waitcnt lgkmcnt(0)")
    for b in range(3):
        c = C0 + 4 * b
        s = lambda i: f"v{S(0, i)}"
        for kb in range(2):
            for st in range(4):
                cc = "0" if st == 0 else Sq(0, kb)
                g(f"v_mfma_f32_16x16x32_bf16 {Sq(0,kb)}, {Ka(kb,st)}, {Qa(b,st)}, {cc}")
        g("s_nop 7")
        g(f"v_max3_f32 v{TMP0}, {s(0)}, {s(1)}, {s(2)}")
        g(f"v_max3_f32 v{TMP0}, v{TMP0}, {s(3)}, {s(4)}")
        g(f"v_max3_f32 v{TMP0}, v{TMP0}, {s(5)}, {s(6)}")
        g(f"v_max3_f32 v{TMP0}, v{TMP0}, {s(7)}, -v{c}")
        xlane(g, TMP0, TMP1, "v_max_f32")
        g(f"v_add_f32 v{TMP1}, v{c}, v{TMP0}")
        g(f"v_exp_f32 v{TMP1}, -v{TMP1}")
        g(f"v_sub_f32 v{c}, 0, v{TMP0}")
        for i in range(8): g(f"v_sub_f32 {s(i)}, {s(i)}, v{TMP0}")
        for i in range(8): g(f"v_exp_f32 {s(i)}, {s(i)}")
        g(f"v_mul_f32 v{L0+2*b}, v{L0+2*b}, v{TMP1}")
        for db in range(8):
            for r in range(4): g(f"v_mul_f32 v{O(db,b,r)}, v{O(db,b,r)}, v{TMP1}")
        for i in range(4): g(f"v_cvt_pk_bf16_f32 v{P(0,i)}, {s(2*i)}, {s(2*i+1)}")
        for i in range(8): g(f"v_add_f32 v{L0+2*b}, v{L0+2*b}, {s(i)}")
        for db in range(8):
            g(f"v_mfma_f32_16x16x32_bf16 {Oq(db,b)}, {Va(db)}, {Pq(0)}, {Oq(db,b)}")
    g("s_add_u32 s44, s44, 0x2000")
    g("s_cmp_lt_u32 s44, 0x20000")
    g("s_cbranch_scc1 L_slow_loop")
    g("s_nop 7")
    xlane3(g, [L0, L0 + 2, L0 + 4], [TMP0, TMP1, TMP2], "v_add_f32")
    g(f"v_mbcnt_lo_u32_b32 v{TMP3}, -1, 0")
    g(f"v_mbcnt_hi_u32_b32 v{TMP3}, -1, v{TMP3}")
    g(f"v_lshlrev_b32 v{TMP3}, 4, v{TMP3}")
    g(f"v_and_b32 v{TMP2}, 0xf0, v{TMP3}")
    g(f"v_mov_b32 v{KADDR}, 0")
    g(f"v_mov_b32 v100, v{C0}\nv_mov_b32 v101, v{C0+4}\nv_mov_b32 v102, v{C0+8}\nv_mov_b32 v103, 0")
    g(f"buffer_store_dwordx4 v[100:103], v{TMP2}, s[28:31], s59 offen offset:256 sc1")
    g(f"v_mov_b32 v96, v{L0}\nv_mov_b32 v97, v{L0+2}\nv_mov_b32 v98, v{L0+4}\nv_mov_b32 v99, 1")
    g(f"buffer_store_dwordx4 v[96:99], v{TMP2}, s[28:31], s59 offen sc1")
    for b in range(3):
        for x in range(1, 4):
            g(pack_ops(x, b))
            g(pay_store(x, b, opt))
    g("s_branch L_sent")


def pack_ops(x, b):
    o, p = O(2 * x, b), O(2 * x + 1, b)
    return [f"v_cvt_pk_bf16_f32 v{o}, v{o}, v{o+1}", f"v_cvt_pk_bf16_f32 v{o+1}, v{o+2}, v{o+3}",
            f"v_cvt_pk_bf16_f32 v{o+2}, v{p}, v{p+1}", f"v_cvt_pk_bf16_f32 v{o+3}, v{p+2}, v{p+3}"]

def pay_store(x, b, opt):
    if opt.exp_x1 and x > 1: return "s_nop 0"
    return f"buffer_store_dwordx4 {Oq(2*x, b)}, v{TMP3}, s[28:31], s{55+x} offen offset:{b*1024} {opt.stpol}"


def addr_setup(g, lane, t):
    g(f"v_and_b32 v{t}, 7, v{lane}")
    g(f"v_mul_u32_u24 v{t}, {PIECE}, v{t}")
    g(f"v_bfe_u32 v{t+1}, v{lane}, 3, 1")
    g(f"v_lshlrev_b32 v{t+1}, 8, v{t+1}")
    g(f"v_and_b32 v{t+2}, 48, v{lane}")
    g(f"v_add3_u32 v{KADDR}, v{t}, v{t+1}, v{t+2}")
    g(f"v_bfe_u32 v{t}, v{lane}, 2, 3")
    g(f"v_mul_u32_u24 v{t}, {PIECE}, v{t}")
    g(f"v_lshrrev_b32 v{t+1}, 5, v{lane}")
    g(f"v_lshlrev_b32 v{t+1}, 8, v{t+1}")
    g(f"v_and_b32 v{t+3}, 3, v{lane}")
    g(f"v_lshlrev_b32 v{t+3}, 3, v{t+3}")
    g(f"v_add3_u32 v{VADDR}, v{t}, v{t+1}, v{t+3}")
    g(f"v_add_u32 v{VADDR}, {TILE}, v{VADDR}")


def gen(opt):
    g = G(opt)
    kvpol, qpol = opt.kvpol, opt.qpol
    g.o.append(f"; @launch grid=(256,1,1) block=(512,1,1) lds={LDS_BYTES}")
    g.o.append('.amdgcn_target "amdgcn-amd-amdhsa--gfx950"')
    g.o.append(".text")
    g.o.append(f".globl {KN}")
    g.o.append(".p2align 8")
    g.o.append(f".type {KN},@function")
    g(f"{KN}:")
    g("s_load_dwordx8 s[4:11], s[0:1], 0")
    g("s_load_dwordx4 s[12:15], s[0:1], 32")
    g.ts(0)
    g("s_cmp_ge_u32 s2, 256")
    g("s_cbranch_scc1 L_end")
    g("v_lshrrev_b32 v1, 6, v0")
    g("s_and_b32 s16, s2, 7")
    g("s_lshr_b32 s17, s2, 3")
    g("v_readfirstlane_b32 s18, v1")
    g("s_lshl_b32 s16, s16, 3")
    g("s_lshr_b32 s19, s17, 2")
    g("s_add_u32 s16, s16, s19")
    g("s_and_b32 s17, s17, 3")
    if opt.linear:
        g("s_lshr_b32 s16, s2, 2\ns_and_b32 s17, s2, 3")
    g(f"v_and_b32 v{TMP2}, 63, v0")
    g(f"v_lshlrev_b32 v{TMP3}, 4, v{TMP2}")
    g("s_and_b32 s19, s18, 3")
    g("s_mov_b32 s23, 0x20000")
    g("s_mov_b32 s27, 0x20000")
    g("s_mov_b32 s31, 0x20000")
    g("s_cmp_lt_u32 s18, 4")
    g("s_cbranch_scc1 L_compute")

    g("s_lshl_b32 s36, s19, 11")
    g("s_lshl_b32 s37, s17, 6")
    g(f"v_xor_b32 v2, s37, v{TMP3}")
    g(f"v_add_u32 v1, s36, v{TMP3}")
    g("v_add_u32 v2, s36, v2")
    g("s_lshl_b32 s38, s16, 19")
    g("s_lshl_b32 s39, s17, 17")
    g("s_add_u32 s39, s38, s39")
    g(f"s_mul_i32 s42, s19, {2*PIECE}")
    g("s_mov_b32 s22, 0x20000")
    g("s_mov_b32 s26, 0x20000")
    g("s_movk_i32 s30, 0x1000")
    g(f"s_mul_i32 s44, s19, {RPITCH}")
    g(f"s_add_u32 m0, s44, {RBASE}")
    g(f"v_and_b32 v5, 48, v{TMP2}")
    g(f"v_xor_b32 v5, v5, v{TMP3}")
    g("s_lshl_b32 s45, s19, 10")
    g("s_mov_b32 s40, 0x2000")
    g("s_mov_b32 s41, 0")
    g("s_mov_b32 s43, s42")
    g("s_lshl_b32 s46, s16, 9")
    g("s_lshl_b32 s47, s17, 2")
    g("s_add_u32 s46, s46, s47")
    g(f"s_add_u32 s46, s46, {WS_FLAG}")
    g(f"v_and_b32 v3, 3, v{TMP2}")
    g("v_lshlrev_b32 v3, 7, v3")
    g("s_mov_b32 s34, 0x10000000")
    g("s_mov_b32 s35, 0x20000")
    g("s_mov_b32 s50, 256")
    g("s_mov_b32 s51, 0x20000")
    g("s_waitcnt lgkmcnt(0)")
    g("s_add_u32 s28, s6, s38")
    g("s_addc_u32 s29, s7, 0")
    g("buffer_load_dwordx4 v5, s[28:31], s45 offen lds")
    g(f"s_add_u32 m0, s42, {7*SLOT}")
    g("s_add_u32 s20, s6, s39")
    g("s_addc_u32 s21, s7, 0")
    g(f"buffer_load_dwordx4 v1, s[20:23], 0 offen {kvpol} lds")
    g(f"s_add_u32 m0, s42, {7*SLOT+32}")
    g("s_add_u32 s24, s8, s39")
    g("s_addc_u32 s25, s9, 0")
    g(f"buffer_load_dwordx4 v1, s[20:23], 0 offen offset:1024 {kvpol} lds")
    if opt.exp_2x:
        g("s_xor_b32 s47, s39, 0x20000")
        g("s_add_u32 s52, s6, s47\ns_addc_u32 s53, s7, 0\ns_mov_b32 s54, 0x20000\ns_mov_b32 s55, 0x20000")
        g("s_add_u32 s56, s8, s47\ns_addc_u32 s57, s9, 0\ns_mov_b32 s58, 0x20000\ns_mov_b32 s59, 0x20000")
    g("s_mov_b32 s32, s14")
    g("s_mov_b32 s33, s15")
    g("s_mov_b32 s48, s12")
    g("s_mov_b32 s49, s13")
    if opt.hs == "loader":
        g("s_cmp_lg_u32 s19, 0")
        g("s_cbranch_scc1 L_nohs1")
        g(f"buffer_load_dword v4, v3, s[32:35], s46 offen {opt.stalepol}")
        g("L_nohs1:")
    g("s_barrier")
    g.ts(1)
    def hs2():
        if opt.hs != "loader": return
        g("s_cmp_lg_u32 s19, 0")
        g("s_cbranch_scc1 L_nohs2")
        g("v_and_b32 v4, 1, v4")
        g("v_cmp_eq_u32 vcc, 0, v4")
        g("s_getreg_b32 s46, hwreg(HW_REG_XCC_ID)")
        g("s_and_b32 s46, s46, 7")
        g("s_lshl_b32 s46, s46, 4")
        g("s_and_b32 s47, vcc_lo, 15")
        g("s_or_b32 s46, s46, s47")
        g("s_or_b32 s46, s46, 0x80")
        g("s_lshl_b32 s47, s17, 3")
        g("s_lshl_b32 s46, s46, s47")
        g("v_mov_b32 v4, s46")
        g("s_lshl_b32 s47, s16, 2")
        g("s_mov_b64 exec, 1")
        g("buffer_atomic_or v4, off, s[48:51], s47 sc1")
        g("s_mov_b64 exec, -1")
        g("L_nohs2:")
    def pair(k=True):
        if k:
            g("s_mov_b32 m0, s43")
            g("s_add_u32 s44, s43, 32")
            g(f"buffer_load_dwordx4 v1, s[20:23], s40 offen {kvpol} lds")
            g("s_mov_b32 m0, s44")
            g(f"s_add_u32 s44, s43, {TILE}")
            g(f"buffer_load_dwordx4 v1, s[20:23], s40 offen offset:1024 {kvpol} lds")
            g("s_mov_b32 m0, s44")
        else:
            g(f"s_add_u32 m0, s43, {TILE}")
        g(f"s_add_u32 s44, s43, {TILE+32}")
        g(f"buffer_load_dwordx4 v2, s[24:27], s41 offen {kvpol} lds")
        g("s_mov_b32 m0, s44")
        g("s_add_u32 s40, s40, 0x2000")
        g(f"buffer_load_dwordx4 v2, s[24:27], s41 offen offset:1024 {kvpol} lds")
        if opt.exp_2x:
            g(f"s_sub_u32 s60, s41, {opt.exp_2x*0x2000}\ns_and_b32 s60, s60, 0x1ffff")
            g(f"s_add_u32 s61, s43, {4*SLOT}\ns_sub_u32 s62, s61, {RING}\ns_cmp_ge_u32 s61, {RING}\ns_cselect_b32 m0, s62, s61")
            g("s_nop 0")
            for srd, vv in (("s[52:55]", "v1"), ("s[56:59]", "v2")):
                g(f"buffer_load_dwordx4 {vv}, {srd}, s60 offen {kvpol} lds")
                g(f"buffer_load_dwordx4 {vv}, {srd}, s60 offen offset:1024 {kvpol} lds")
        g("s_add_u32 s41, s41, 0x2000")
        g(f"s_add_u32 s43, s43, {SLOT}")
    D = opt.depth
    PL = 8 if opt.exp_2x else 4
    I0 = opt.init_pairs
    if opt.trace:
        cnt = [0]
        def tr():
            g("s_memrealtime s[60:61]\ns_waitcnt lgkmcnt(0)")
            g(f"v_writelane_b32 v10, s60, {cnt[0]}")
            cnt[0] += 1
        g("s_waitcnt lgkmcnt(0)")
        g("v_writelane_b32 v10, s64, 63")
        def upair(u):
            pair(k=(u < 15))
            if u == 7: g("s_mov_b32 s43, s42")
        for u in range(I0): upair(u)
        tr()
        g(f"s_waitcnt vmcnt({4*I0})")
        tr()
        g("s_barrier")
        hs2()
        tr()
        for u in range(I0, D): upair(u)
        issued = D
        for t in range(16):
            out_after = sum((4 if u < 15 else 2) for u in range(t + 1, issued))
            tr()
            g(f"s_waitcnt vmcnt({out_after})")
            tr()
            g("s_barrier")
            tr()
            if issued < 16:
                upair(issued); issued += 1
        g("s_mov_b32 s28, s14\ns_mov_b32 s29, s15\ns_mov_b32 s30, 0x10000000\ns_mov_b32 s31, 0x20000")
        g("s_lshl_b32 s42, s2, 2\ns_add_u32 s42, s42, s19\ns_lshl_b32 s42, s42, 8")
        g(f"s_add_u32 s42, s42, {WS_TS + (1<<20)}")
        g(f"v_lshrrev_b32 v11, 2, v{TMP3}")
        g("buffer_store_dword v10, v11, s[28:31], s42 offen")
    else:
        g("L_ld0:")
        pair()
        g(f"s_cmp_lt_u32 s41, {I0*0x2000}")
        g("s_cbranch_scc1 L_ld0")
        g.ts(2)
        g(f"s_waitcnt vmcnt({PL*I0})")
        g.ts(3)
        g("s_barrier")
        hs2()
        if D > I0:
            g("L_ld0b:")
            pair()
            g(f"s_cmp_lt_u32 s41, {D*0x2000}")
            g("s_cbranch_scc1 L_ld0b")
        g.ts(4)
        g("L_ld1:")
        g(f"s_waitcnt vmcnt({PL*(D-1)})")
        g("s_barrier")
        pair()
        g(f"s_cmp_eq_u32 s41, {8*0x2000}")
        g("s_cselect_b32 s43, s42, s43")
        g(f"s_cmp_lt_u32 s41, {15*0x2000}")
        g("s_cbranch_scc1 L_ld1")
        g(f"s_waitcnt vmcnt({PL*(D-1)})")
        g("s_barrier")
        pair(k=False)
        npw = 0
        if opt.prewarm is not None:
            g("s_mov_b32 s28, s14\ns_mov_b32 s29, s15\ns_mov_b32 s30, 0x10000000")
            g("s_lshl_b32 s36, s16, 2\ns_add_u32 s36, s36, s19\ns_lshl_b32 s36, s36, 2\ns_add_u32 s36, s36, s17")
            g("s_mul_i32 s37, s36, 9216")
            g(f"s_mul_i32 s38, s19, {QWAVE}\ns_add_u32 m0, s38, {QBASE}")
            for i in range(3):
                for k in range(3):
                    g(f"buffer_load_dwordx4 v{TMP3}, s[28:31], s37 offen offset:{k*1024} {opt.prewarm} lds")
                g("s_add_u32 s37, s37, 3072")
            g(f"s_lshl_b32 s37, s36, 11\ns_add_u32 s37, s37, {WS_ML}")
            g(f"buffer_load_dwordx4 v{TMP3}, s[28:31], s37 offen {opt.prewarm} lds")
            npw = 10
        g.ts(5)
        for i in range(D):
            n = (PL * (D - 2 - i) + PL - 2 if i < D - 1 else 0) + npw
            g(f"s_waitcnt vmcnt({n})")
            g.ts(6 + i)
            g("s_barrier")
    g.ts_store(1)
    g("s_endpgm")

    g("L_compute:")
    g("s_lshl_b32 s36, s16, 2")
    g("s_add_u32 s36, s36, s19")
    g("s_mul_i32 s37, s36, 12288")
    g("s_mov_b32 s22, 12288")
    g("s_movk_i32 s38, 0x1000")
    g("s_movk_i32 s39, 0x2000")
    def setup():
        addr_setup(g, TMP2, 100)
        g(f"s_mul_i32 s42, s19, {QWAVE}")
        g(f"s_add_u32 s42, s42, {QBASE}")
        g(f"v_lshrrev_b32 v103, 4, v{TMP2}")
        g(f"v_mul_u32_u24 v105, {QPITCH}, v103")
        g(f"v_and_b32 v107, 15, v{TMP2}")
        g("v_lshlrev_b32 v108, 4, v107")
        g("v_add3_u32 v105, v105, v108, s42")
        g(f"v_mul_u32_u24 v106, {QPITCH}, v107")
        g("v_add3_u32 v106, v106, v102, s42")
        g(f"v_bfe_u32 v107, v{TMP2}, 2, 2")
        g(f"v_mul_u32_u24 v107, {RPITCH}, v107")
        g(f"v_and_b32 v109, 3, v{TMP2}")
        g("v_xor_b32 v110, v109, v103")
        g("v_lshlrev_b32 v110, 4, v110")
        g("v_lshlrev_b32 v109, 8, v109")
        g("v_add3_u32 v107, v107, v109, v110")
        g(f"v_add_u32 v107, {RBASE}, v107")
        g(f"v_and_b32 v111, 3, v{TMP2}")
        g("v_lshlrev_b32 v111, 7, v111")
        g("s_lshl_b32 s46, s16, 9\ns_lshl_b32 s47, s17, 2\ns_add_u32 s46, s46, s47")
        g(f"s_add_u32 s47, s46, {WS_FLAG}")
        g("s_cmp_eq_u32 s19, 0\ns_cselect_b32 s63, 2, 99")
        g(f"v_mov_b32 v{TMP2}, v108")
        for i in range(48, 96): g(f"v_mov_b32 v{i}, 0")
        for i in range(6): g(f"v_mov_b32 v{L0+i}, 0")
        g(f"s_mov_b32 s52, 0x{C_SCALE:08x}")
        g(f"s_mov_b32 s53, 0x{C_SCALE:08x}")
        g("s_mov_b32 s51, 0xffff0000")
        g(f"v_add_u32 v{TMP0}, {7*SLOT}, v{KADDR}")
        g(f"s_mov_b32 s54, {2*SLOT}")
        g("s_mov_b32 s44, 0")
        g("s_lshl_b32 s40, s36, 2")
        for x in range(1, 4):
            g(f"s_xor_b32 s42, s17, {x}")
            g("s_add_u32 s42, s42, s40")
            g(f"s_mul_i32 s{55+x}, s42, 9216")
            if x > 1: g(f"s_add_u32 s{55+x}, s{55+x}, {(x-1)*3072}")
        g("s_add_u32 s42, s40, s17")
        g("s_lshl_b32 s59, s42, 9")
        g(f"s_add_u32 s59, s59, {WS_ML}")
        g("s_mul_i32 s60, s42, 9216")
        g("s_lshl_b32 s61, s36, 7")
        g(f"s_add_u32 s61, s61, {WS_FLAG}")
        g("s_lshl_b32 s62, s16, 2")
        g("s_mov_b32 s26, 12288")
        g("s_mov_b32 s30, 0x10000000")
        g("s_mov_b32 s34, 256")
        g("s_mov_b32 s35, 0x20000")
        g("s_mov_b32 s48, 0x3f80")
        g("s_mov_b32 s49, 0x3f800000")
    if opt.setup == "early": setup()
    g.ts(2)
    g("s_waitcnt lgkmcnt(0)")
    g("s_add_u32 s20, s4, s37")
    g("s_addc_u32 s21, s5, 0")
    for i in range(12):
        so = ["0", "s38", "s39"][i // 4]
        g(f"buffer_load_dwordx4 v[{4*i}:{4*i+3}], v{TMP3}, s[20:23], {so} offen offset:{(i%4)*1024} {qpol}")
    g("s_barrier")
    g.ts(1)
    if opt.tsout:
        g("s_add_u32 s24, s14, s37\ns_addc_u32 s25, s15, 0\ns_add_u32 s24, s24, 0x2800000\ns_addc_u32 s25, s25, 0")
    else:
        g("s_add_u32 s24, s10, s37")
        g("s_addc_u32 s25, s11, 0")
    if opt.setup != "early": setup()
    g("s_mov_b32 s28, s14")
    g("s_mov_b32 s29, s15")
    g("s_mov_b32 s32, s12")
    g("s_mov_b32 s33, s13")
    QX = 0
    if opt.hs == "loop":
        g(f"buffer_load_dword v{TMP1}, v111, s[28:31], s47 offen {opt.stalepol}")
        QX = 1
    def qscale_ops(b):
        out = []
        for i in range(4):
            li = b * 4 + i
            grp = [f"s_waitcnt vmcnt({11-li+QX})"]
            for r in range(4): grp += [f"v_lshlrev_b32 v{112+2*r}, 16, v{4*li+r}", f"v_and_b32 v{113+2*r}, s51, v{4*li+r}"]
            for r in range(4): grp.append(f"v_pk_mul_f32 v[{112+2*r}:{113+2*r}], v[{112+2*r}:{113+2*r}], s[52:53]")
            for r in range(4): grp.append(f"v_cvt_pk_bf16_f32 v{4*li+r}, v{112+2*r}, v{113+2*r}")
            grp.append(f"ds_write_b128 v105, v[{4*li}:{4*li+3}] offset:{i*4*QPITCH}")
            out.append(grp)
        out.append([f"ds_read_b128 {Qa(b,s)}, v106 offset:{64*s}" for s in range(4)])
        return out
    def pp_mfma(b, s):
        c = "0" if s == 0 else Cq(b)
        return f"v_mfma_f32_16x16x32_bf16 {Cq(b)}, {Va(s)}, {Qa(b,s)}, {c}"
    for grp in qscale_ops(0): g(grp)
    g.ts(3)
    for grp in qscale_ops(1): g(grp)
    for grp in qscale_ops(2): g(grp)
    zero = [f"v_mov_b32 v{i}, 0" for i in range(48)]
    g(zero[:32])
    g.ts(4)
    g("s_barrier")
    g.ts(5)
    for s in range(4):
        g(f"ds_read_b128 {Va(s)}, v107 offset:{64*s}")
    k0r = [f"ds_read_b128 {Ka(kb,s)}, v{TMP0} offset:{kb*512 + s*64}" for kb in range(2) for s in range(4)]
    g(k0r[:4])
    g(zero[32:40])
    g("s_waitcnt lgkmcnt(4)")
    if opt.pts: g.ts(9)
    pm = [pp_mfma(b, s) for b in range(3) for s in range(4)]
    qk0 = [m.replace(Cq(0), "0") for m in slot_mfmas(5)[:8]]
    class Lst(list):
        def __call__(self, x): self.append(x)
    red = Lst()
    for b in range(3):
        c = C0 + 4 * b
        red += [f"v_max3_f32 v{c}, v{c}, v{c+1}, v{c+2}", f"v_max_f32 v{c}, v{c}, v{c+3}"]
    xlane3(red, [C0, C0 + 4, C0 + 8], [C0 + 1, C0 + 5, C0 + 9], "v_max_f32")
    for i in range(12):
        g(pm[i])
        if i < 4: g(k0r[4 + i])
        elif i < 8: g(zero[40 + 2 * (i - 4):42 + 2 * (i - 4)])
        elif i >= 10: g(red[2 * (i - 10):2 * (i - 10) + 2])
    if opt.pts: g.ts(10)
    g("s_waitcnt lgkmcnt(0)")
    rest = red[4:]
    for i in range(8):
        g(qk0[i])
        if i == 3: g("s_nop 2")
        if i >= 3: g(rest[(i - 3) * len(rest) // 5:(i - 2) * len(rest) // 5])
    if opt.pts: g.ts(11)
    g("s_barrier")
    if opt.pts: g.ts(12)
    for r in range(8): g(vread(r, 0))
    for i in range(8): g(f"v_sub_f32 v{S(0,i)}, v{S(0,i)}, v{C0}")
    smA = softmax_ops(6, "add")
    neg = []
    for b in (1, 2, 0):
        c = C0 + 4 * b
        for i in (1, 2, 3, 0):
            neg.append(f"v_sub_f32 v{c+i}, 0, v{c}")
    side = [f"v_mov_b32 v108, v{C0}", f"v_mov_b32 v109, v{C0+4}", f"v_mov_b32 v110, v{C0+8}",
            f"buffer_store_dwordx4 v[108:111], v{TMP2}, s[28:31], s59 offen offset:256 sc1"]
    for i in range(8):
        g(smA[8 + i])
        g(neg[i * 12 // 8:(i + 1) * 12 // 8])
    g(side)
    g.ts(6)
    g("s_branch L_k0")
    slots = loop_body("add", rotated=True)
    g("L_loop:")
    g(slots[4]); g(slots[-1])
    g("L_k0:")
    for k in range(4):
        if k == 3 and opt.hs == "loop":
            i = slots[3].index("s_cmp_lt_u32 s44, 8")
            g(slots[3][:i - 1]); g("s_cmp_eq_u32 s44, s63"); g(slots[3][i - 1]); g("s_cbranch_scc1 L_hs2"); g("L_hs2_ret:"); g(slots[3][i:])
        else:
            g(slots[k])
    g("s_cbranch_scc1 L_loop")
    g.ts(7)
    g(f"buffer_load_dword v{KADDR}, off, s[32:35], s62 sc1")
    last, first = {}, {}
    gaps = [4, 6, 7]
    for x in range(1, 4):
        ops = pack_ops(x, 0)
        gp = {1: (3, 4), 2: (6, 6), 3: (7, 7)}[x]
        last.setdefault(gp[0], []).extend(ops[:2]); last.setdefault(gp[1], []).extend(ops[2:])
        first.setdefault(gp[1] + 1, []).append(pay_store(x, 0, opt))
    out = []
    emit_slot(out, 46, "add", first=first, last=last)
    g(out)
    last, first = {}, {}
    for x in range(1, 4):
        last.setdefault(2 * x - 1, []).extend(pack_ops(x, 1) + [pay_store(x, 1, opt)])
    lred = Lst()
    for b in range(3): lred(f"v_add_f32 v{96+b}, v{L0+2*b}, v{L0+2*b+1}")
    xlane3(lred, [96, 97, 98], [100, 101, 102], "v_add_f32")
    lred("v_mov_b32 v99, 0")
    lred(f"buffer_store_dwordx4 v[96:99], v{TMP2}, s[28:31], s59 offen {opt.stpol}")
    lred(f"v_add_f32 v{TMP1}, v96, v97")
    lred("s_mov_b32 s50, " + ("0x5f800000" if not opt.force_fb else "0x00000000"))
    lred(f"v_add_f32 v{TMP1}, v{TMP1}, v98")
    lred(f"v_cmp_nlt_f32 vcc, v{TMP1}, s50")
    for i in range(5):
        last.setdefault(8 + i, []).extend(lred[i * len(lred) // 5:(i + 1) * len(lred) // 5])
    last.setdefault(13, []).extend(pack_ops(1, 2) + [pay_store(1, 2, opt)])
    last.setdefault(15, []).extend(pack_ops(2, 2) + [pay_store(2, 2, opt)] + pack_ops(3, 2) + [pay_store(3, 2, opt)])
    out = []
    emit_slot(out, 47, "add", qk=False, partA=False, last=last, pv_order=[2, 3, 4, 5, 6, 7, 0, 1])
    g(out)
    g.ts(8)
    g("s_cbranch_vccz L_sent")
    g("s_waitcnt vmcnt(0)")
    g("s_branch L_slow")
    g("L_sent:")
    g("s_mov_b32 s47, 0x100000")
    g(f"s_waitcnt vmcnt({4 if opt.exp_x1 else 10})")
    g("L_hs:")
    g(f"v_readfirstlane_b32 s44, v{KADDR}")
    g("s_and_b32 s45, s44, 0x80808080")
    g("s_cmp_eq_u32 s45, 0x80808080")
    g("s_cbranch_scc0 L_hs_retry")
    g("L_hs_ok:")
    g("s_lshr_b32 s45, s44, 8")
    g("s_xor_b32 s45, s45, s44")
    g("s_and_b32 s45, s45, 0x00707070")
    if opt.force_slow:
        g("s_mov_b32 s45, 1")
    g(f"v_bfe_u32 v100, v{TMP3}, 4, 2")
    g("v_lshlrev_b32 v101, 3, v100")
    g("v_add_u32 v101, s19, v101")
    g("v_lshrrev_b32 v101, v101, s44")
    g("v_and_b32 v101, 1, v101")
    g("v_lshlrev_b32 v100, 2, v100")
    g("s_lshl_b32 s46, s17, 3")
    g("s_add_u32 s46, s46, s19")
    g("s_lshr_b32 s46, s44, s46")
    g("s_and_b32 s46, s46, 1")
    g("v_mov_b32 v102, s46")
    g("s_lshl_b32 s46, s17, 2")
    g("s_add_u32 s46, s46, s61")
    for x in range(1, 4):
        g(f"s_xor_b32 s{55+x}, s59, {x<<9}")
    g("s_mov_b32 s47, 0x100000")
    g("s_cmp_lg_u32 s45, 0")
    g.ts(9)
    g("s_waitcnt vmcnt(0)")
    g.ts(10)
    g("s_cbranch_scc1 L_xcd_flag")
    g(f"buffer_store_dword v102, off, s[28:31], s46 {opt.flagpol}")
    g("L_poll:")
    g(f"buffer_load_dword v103, v100, s[28:31], s61 offen {opt.pollpol}")
    g("s_waitcnt vmcnt(0)")
    g("v_and_b32 v103, 1, v103")
    g("v_cmp_ne_u32 vcc, v103, v101")
    g("s_cbranch_vccz L_poll_ok")
    g("s_sub_u32 s47, s47, 1")
    g("s_cbranch_scc0 L_poll")
    g("L_poll_ok:")
    g.ts(11)
    lp = opt.ldpol
    LR = lambda x: 100 + 4 * x
    PR = lambda x, b: 24 + ((x - 1) * 3 + b) * 4
    for x in range(1, 4):
        g(f"buffer_load_dwordx4 v[{LR(x)}:{LR(x)+3}], v{TMP2}, s[28:31], s{55+x} offen {lp}")
    for x in range(1, 4):
        for b in range(3):
            if opt.exp_x1 and x < 3: continue
            g(f"buffer_load_dwordx4 v[{PR(x,b)}:{PR(x,b)+3}], v{TMP3}, s[28:31], s60 offen offset:{b*1024} {lp}")
        if x < 3 and not opt.exp_x1: g("s_add_u32 s60, s60, 3072")
    g(f"v_bfe_u32 v132, v{TMP3}, 4, 4")
    g("v_lshlrev_b32 v132, 8, v132")
    g(f"v_lshrrev_b32 v133, 8, v{TMP3}")
    g("v_lshlrev_b32 v133, 3, v133")
    g("s_lshl_b32 s42, s17, 6")
    g("v_add3_u32 v132, v132, v133, s42")
    g(f"s_waitcnt vmcnt({3 if opt.exp_x1 else 9})")
    g.ts(12)
    g(f"v_or3_b32 v99, v99, v{LR(1)+3}, v{LR(2)+3}")
    g(f"v_or_b32 v99, v99, v{LR(3)+3}")
    g("v_cmp_ne_u32 vcc, 0, v99")
    g("s_cbranch_vccnz L_general")
    for x in range(1, 4):
        for b in range(3):
            g(f"v_add_f32 v{96+b}, v{96+b}, v{LR(x)+b}")
    for b in range(3): g(f"v_rcp_f32 v{96+b}, v{96+b}")
    def acc_reg(b, i): return O(i // 4, b, i % 4)
    for x in range(3 if opt.exp_x1 else 1, 4):
        for b in range(3):
            g(f"s_waitcnt vmcnt({9 - ((x-1)*3 + b) - 1})")
            if x == 3 and b == 2: g.ts(13)
            for r in range(4):
                src = PR(x, b) + r
                if opt.dot:
                    g(f"v_dot2c_f32_bf16 v{acc_reg(b,2*r)}, s48, v{src}")
                    g(f"v_dot2c_f32_bf16 v{acc_reg(b,2*r+1)}, s49, v{src}")
                else:
                    t = 116 + 2 * (r & 1)
                    g(f"v_lshlrev_b32 v{t}, 16, v{src}")
                    g(f"v_and_b32 v{t+1}, s51, v{src}")
                    g(f"v_pk_add_f32 v[{acc_reg(b,2*r)}:{acc_reg(b,2*r+1)}], v[{acc_reg(b,2*r)}:{acc_reg(b,2*r+1)}], v[{t}:{t+1}]")
            if x == 3:
                if opt.dot: g("s_nop 2")
                out_store(g, b, 96 + b, opt)
    g("L_done:")
    g.ts(14)
    if opt.ts:
        g("s_waitcnt vmcnt(0)")
        g.ts(15)
    g.ts_store(0)
    g("L_end:")
    g("s_endpgm")
    if opt.hs == "loop":
        g("L_hs2:")
        g("s_waitcnt vmcnt(0)")
        g(f"v_and_b32 v{TMP1}, 1, v{TMP1}")
        g(f"v_cmp_eq_u32 vcc, 0, v{TMP1}")
        g("s_getreg_b32 s46, hwreg(HW_REG_XCC_ID)")
        g("s_and_b32 s46, s46, 7")
        g("s_lshl_b32 s46, s46, 4")
        g("s_and_b32 s47, vcc_lo, 15")
        g("s_or_b32 s46, s46, s47")
        g("s_or_b32 s46, s46, 0x80")
        g("s_lshl_b32 s47, s17, 3")
        g("s_lshl_b32 s46, s46, s47")
        g(f"v_mov_b32 v{TMP1}, s46")
        g("s_mov_b64 exec, 1")
        g(f"buffer_atomic_or v{TMP1}, off, s[32:35], s62 sc1")
        g("s_mov_b64 exec, -1")
        g("s_branch L_hs2_ret")
    g("L_hs_retry:")
    g("s_sleep 2")
    g(f"buffer_load_dword v{KADDR}, off, s[32:35], s62 sc1")
    g("s_sub_u32 s47, s47, 1")
    g("s_waitcnt vmcnt(0)")
    g("s_cbranch_scc0 L_hs")
    g("s_branch L_hs_ok")
    g("L_xcd_flag:")
    g("buffer_store_dword v102, off, s[28:31], s46 sc1")
    g("L_poll2:")
    g("buffer_load_dword v103, v100, s[28:31], s61 offen sc1")
    g("s_waitcnt vmcnt(0)")
    g("v_and_b32 v103, 1, v103")
    g("v_cmp_ne_u32 vcc, v103, v101")
    g("s_cbranch_vccz L_poll_ok")
    g("s_sub_u32 s47, s47, 1")
    g("s_cbranch_scc0 L_poll2")
    g("s_branch L_poll_ok")
    g("L_general:")
    CR = lambda x: 60 + 4 * x
    for x in range(1, 4):
        g(f"buffer_load_dwordx4 v[{CR(x)}:{CR(x)+3}], v{TMP2}, s[28:31], s{55+x} offen offset:256 sc1")
    for b in range(3): g(f"v_mov_b32 v{CR(0)+b}, v{C0+4*b}")
    g("s_waitcnt vmcnt(0)")
    for b in range(3):
        g(f"v_min3_f32 v100, v{CR(0)+b}, v{CR(1)+b}, v{CR(2)+b}")
        g(f"v_min_f32 v100, v100, v{CR(3)+b}")
        for x in range(4): g(f"v_sub_f32 v{CR(x)+b}, v100, v{CR(x)+b}")
        for x in range(4): g(f"v_exp_f32 v{CR(x)+b}, v{CR(x)+b}")
        g("s_nop 0")
        g(f"v_mul_f32 v{96+b}, v{96+b}, v{CR(0)+b}")
        for x in range(1, 4): g(f"v_fmac_f32 v{96+b}, v{CR(x)+b}, v{LR(x)+b}")
    for b in range(3): g(f"v_rcp_f32 v{96+b}, v{96+b}")
    for b in range(3):
        for i in range(8): g(f"v_mul_f32 v{acc_reg(b,i)}, v{acc_reg(b,i)}, v{CR(0)+b}")
        for x in range(1, 4):
            for r in range(4):
                src = PR(x, b) + r
                g(f"v_lshlrev_b32 v116, 16, v{src}")
                g(f"v_and_b32 v117, s51, v{src}")
                g(f"v_fmac_f32 v{acc_reg(b,2*r)}, v116, v{CR(x)+b}")
                g(f"v_fmac_f32 v{acc_reg(b,2*r+1)}, v117, v{CR(x)+b}")
        out_store(g, b, 96 + b, opt)
    g("s_branch L_done")
    slow_path(g, opt)
    g.o.append(f""".section .rodata,"a"
.p2align 6
.amdhsa_kernel {KN}
  .amdhsa_next_free_vgpr {NV+NA}
  .amdhsa_next_free_sgpr 102
  .amdhsa_accum_offset {NV}
  .amdhsa_group_segment_fixed_size 0
  .amdhsa_kernarg_size 48
  .amdhsa_user_sgpr_count 2
  .amdhsa_user_sgpr_kernarg_segment_ptr 1
  .amdhsa_system_sgpr_workgroup_id_x 1
.end_amdhsa_kernel""")
    return "\n".join(g.o) + "\n"


def out_store(g, b, rl, opt):
    for h in range(2):
        o = O(h, b)
        for r in range(4): g(f"v_mul_f32 v{o+r}, v{o+r}, v{rl}")
        g(f"v_cvt_pk_bf16_f32 v{o}, v{o}, v{o+1}")
        g(f"v_cvt_pk_bf16_f32 v{o+1}, v{o+2}, v{o+3}")
        so = ["0", "s38", "s39"][b]
        g(f"buffer_store_dwordx2 v[{o}:{o+1}], v132, s[24:27], {so} offen offset:{32*h} {opt.outpol}")


if __name__ == "__main__":
    ap = argparse.ArgumentParser()
    ap.add_argument("-o", default="standalone__gqa_softmax__near_ridge.s")
    ap.add_argument("--kvpol", default="nt")
    ap.add_argument("--qpol", default="nt")
    ap.add_argument("--stpol", default="sc1")
    ap.add_argument("--ldpol", default="sc1")
    ap.add_argument("--outpol", default="")
    ap.add_argument("--ts", type=int, default=0)
    ap.add_argument("--hs", default="loop")
    ap.add_argument("--setup", default="early")
    ap.add_argument("--tsout", type=int, default=0)
    ap.add_argument("--pts", type=int, default=0)
    ap.add_argument("--exp_x1", type=int, default=0)
    ap.add_argument("--exp_2x", type=int, default=0)
    ap.add_argument("--prewarm", default=None)
    ap.add_argument("--linear", type=int, default=0)
    ap.add_argument("--trace", type=int, default=0)
    ap.add_argument("--pollpol", default="nt")
    ap.add_argument("--stalepol", default="")
    ap.add_argument("--dot", type=int, default=1)
    ap.add_argument("--flagpol", default="")
    ap.add_argument("--depth", type=int, default=3)
    ap.add_argument("--init_pairs", type=int, default=2)
    ap.add_argument("--force_slow", type=int, default=0)
    ap.add_argument("--force_fb", type=int, default=0)
    opt = ap.parse_args()
    open(opt.o, "w").write(gen(opt))
```

```python
import sys, argparse, struct, math
from body import *

KN = "standalone__gqa_softmax__near_ridge_kernel"
NSLOT = 8
RING = NSLOT * SLOT
QBASE = RING
QPITCH = 288
QWAVE = 16 * QPITCH
RBASE = QBASE + 4 * QWAVE
RPITCH = 1088
LDS_BYTES = RBASE + 4 * RPITCH

WS_ML = 16 << 20
WS_FLAG = 24 << 20
WS_TS = 32 << 20
C_SCALE = struct.unpack("<I", struct.pack("<f", math.log2(math.e) / math.sqrt(128.0)))[0]
NTS = 16


class G:
    def __init__(self, opt):
        self.o = []
        self.opt = opt
    def __call__(self, s):
        if isinstance(s, list):
            for x in s: self(x)
            return
        for l in s.split("\n"):
            l = l.strip()
            if l:
                self.o.append(("" if l.endswith(":") else "    ") + l)
    def ts(self, idx):
        if self.opt.pts and idx >= 9:
            self.seen = getattr(self, "seen", set())
            if idx in self.seen: return
            self.seen.add(idx)
        if self.opt.ts:
            self(f"s_memrealtime s[{64+2*idx}:{65+2*idx}]" if self.opt.ts == 2 else f"s_memtime s[{64+2*idx}:{65+2*idx}]")
    def ts_store(self, widx):
        if not self.opt.ts: return
        self("s_waitcnt vmcnt(0) lgkmcnt(0)")
        if self.opt.tsout:
            self("s_mov_b32 s28, s10\ns_mov_b32 s29, s11\ns_mov_b32 s30, 0x300000\ns_mov_b32 s31, 0x20000")
            self("s_lshl_b32 s42, s2, 3\ns_add_u32 s42, s42, s18\ns_lshl_b32 s42, s42, 6")
            for i in range(1, NTS):
                self(f"s_sub_u32 s{64+2*i}, s{64+2*i}, s64")
            self("v_mov_b32 v1, 0")
            for i in range(NTS):
                self(f"v_writelane_b32 v1, s{64+2*i}, {i}")
            self("v_and_b32 v1, 0x3fff, v1")
            self("v_lshrrev_b32 v2, 6, v1\nv_and_b32 v3, 63, v1\nv_cvt_f32_u32 v2, v2\nv_cvt_f32_u32 v3, v3\nv_cvt_pk_bf16_f32 v2, v2, v3")
            self("v_mbcnt_lo_u32_b32 v4, -1, 0\nv_lshlrev_b32 v4, 2, v4")
            self("s_mov_b64 exec, 0xffff")
            self("buffer_store_dword v2, v4, s[28:31], s42 offen")
            return
        self("s_mov_b32 s28, s14\ns_mov_b32 s29, s15\ns_mov_b32 s30, 0x10000000\ns_mov_b32 s31, 0x20000")
        self("s_lshl_b32 s42, s2, 3")
        self("s_add_u32 s42, s42, s18")
        self("s_lshl_b32 s42, s42, 6")
        self(f"s_add_u32 s42, s42, {WS_TS}")
        for i in range(NTS):
            self(f"v_mov_b32 v1, s{64+2*i}")
            self(f"buffer_store_dword v1, off, s[28:31], s42 offset:{4*i}")
            self("s_nop 1")


def xlane(g, a, t, op):
    g(f"v_mov_b32 v{t}, v{a}")
    g("s_nop 1")
    g(f"v_permlane32_swap_b32 v{a}, v{t}")
    g("s_nop 1")
    g(f"{op} v{a}, v{a}, v{t}")
    g(f"v_mov_b32 v{t}, v{a}")
    g("s_nop 1")
    g(f"v_permlane16_swap_b32 v{a}, v{t}")
    g("s_nop 1")
    g(f"{op} v{a}, v{a}, v{t}")


def xlane3(g, regs, tmps, op):
    for sw in ("v_permlane32_swap_b32", "v_permlane16_swap_b32"):
        for a, t in zip(regs, tmps): g(f"v_mov_b32 v{t}, v{a}")
        g("s_nop 0")
        for a, t in zip(regs, tmps): g(f"{sw} v{a}, v{t}")
        g("s_nop 0")
        for a, t in zip(regs, tmps): g(f"{op} v{a}, v{a}, v{t}")


def slow_path(g, opt):
    g("L_slow:")
    g("s_lshl_b32 s38, s16, 19")
    g("s_lshl_b32 s39, s17, 17")
    g("s_add_u32 s38, s38, s39")
    g("s_add_u32 s20, s6, s38\ns_addc_u32 s21, s7, 0\ns_mov_b32 s22, 0x20000\ns_mov_b32 s23, 0x20000")
    g("s_add_u32 s96, s8, s38\ns_addc_u32 s97, s9, 0\ns_mov_b32 s98, 0x20000\ns_mov_b32 s99, 0x20000")
    g("s_movk_i32 s38, 0x1000\ns_movk_i32 s39, 0x2000")
    g(f"v_mbcnt_lo_u32_b32 v{TMP2}, -1, 0")
    g(f"v_mbcnt_hi_u32_b32 v{TMP2}, -1, v{TMP2}")
    addr_setup(g, TMP2, 96)
    g(f"s_mul_i32 s42, s19, {SLOT}")
    g(f"v_add_u32 v{KADDR}, s42, v{KADDR}")
    g(f"v_add_u32 v{VADDR}, s42, v{VADDR}")
    g(f"v_lshlrev_b32 v{TMP2}, 4, v{TMP2}")
    g("s_lshl_b32 s43, s17, 6")
    g(f"v_xor_b32 v{TMP3}, s43, v{TMP2}")
    for i in range(96): g(f"v_mov_b32 v{i}, 0")
    for i in range(6): g(f"v_mov_b32 v{L0+i}, 0")
    for b in range(3): g(f"v_mov_b32 v{C0+4*b}, 0x7f000000")
    g("s_mov_b32 s44, 0")
    g("L_slow_loop:")
    g("s_mov_b32 s45, s44")
    g("s_mov_b32 s46, s42")
    g("L_slow_ld:")
    g("s_mov_b32 m0, s46")
    g(f"s_add_u32 s47, s46, {TILE}")
    g(f"buffer_load_dwordx4 v{TMP2}, s[20:23], s45 offen lds")
    g("s_mov_b32 m0, s47")
    g(f"s_add_u32 s46, s46, {PIECE}")
    g(f"buffer_load_dwordx4 v{TMP3}, s[96:99], s45 offen lds")
    g("s_add_u32 s45, s45, 1024")
    g("s_and_b32 s47, s45, 0x1fff")
    g("s_cbranch_scc1 L_slow_ld")
    g("s_waitcnt vmcnt(0)")
    for i in range(8): g(kread(i, 0))
    for r in range(16): g(vread(r, 0))
    g("s_waitcnt lgkmcnt(0)")
    for b in range(3):
        c = C0 + 4 * b
        s = lambda i: f"v{S(0, i)}"
        for kb in range(2):
            for st in range(4):
                cc = "0" if st == 0 else Sq(0, kb)
                g(f"v_mfma_f32_16x16x32_bf16 {Sq(0,kb)}, {Ka(kb,st)}, {Qa(b,st)}, {cc}")
        g("s_nop 7")
        g(f"v_max3_f32 v{TMP0}, {s(0)}, {s(1)}, {s(2)}")
        g(f"v_max3_f32 v{TMP0}, v{TMP0}, {s(3)}, {s(4)}")
        g(f"v_max3_f32 v{TMP0}, v{TMP0}, {s(5)}, {s(6)}")
        g(f"v_max3_f32 v{TMP0}, v{TMP0}, {s(7)}, -v{c}")
        xlane(g, TMP0, TMP1, "v_max_f32")
        g(f"v_add_f32 v{TMP1}, v{c}, v{TMP0}")
        g(f"v_exp_f32 v{TMP1}, -v{TMP1}")
        g(f"v_sub_f32 v{c}, 0, v{TMP0}")
        for i in range(8): g(f"v_sub_f32 {s(i)}, {s(i)}, v{TMP0}")
        for i in range(8): g(f"v_exp_f32 {s(i)}, {s(i)}")
        g(f"v_mul_f32 v{L0+2*b}, v{L0+2*b}, v{TMP1}")
        for db in range(8):
            for r in range(4): g(f"v_mul_f32 v{O(db,b,r)}, v{O(db,b,r)}, v{TMP1}")
        for i in range(4): g(f"v_cvt_pk_bf16_f32 v{P(0,i)}, {s(2*i)}, {s(2*i+1)}")
        for i in range(8): g(f"v_add_f32 v{L0+2*b}, v{L0+2*b}, {s(i)}")
        for db in range(8):
            g(f"v_mfma_f32_16x16x32_bf16 {Oq(db,b)}, {Va(db)}, {Pq(0)}, {Oq(db,b)}")
    g("s_add_u32 s44, s44, 0x2000")
    g("s_cmp_lt_u32 s44, 0x20000")
    g("s_cbranch_scc1 L_slow_loop")
    g("s_nop 7")
    xlane3(g, [L0, L0 + 2, L0 + 4], [TMP0, TMP1, TMP2], "v_add_f32")
    g(f"v_mbcnt_lo_u32_b32 v{TMP3}, -1, 0")
    g(f"v_mbcnt_hi_u32_b32 v{TMP3}, -1, v{TMP3}")
    g(f"v_lshlrev_b32 v{TMP3}, 4, v{TMP3}")
    g(f"v_and_b32 v{TMP2}, 0xf0, v{TMP3}")
    g(f"v_mov_b32 v{KADDR}, 0")
    g(f"v_mov_b32 v100, v{C0}\nv_mov_b32 v101, v{C0+4}\nv_mov_b32 v102, v{C0+8}\nv_mov_b32 v103, 0")
    g(f"buffer_store_dwordx4 v[100:103], v{TMP2}, s[28:31], s59 offen offset:256 sc1")
    g(f"v_mov_b32 v96, v{L0}\nv_mov_b32 v97, v{L0+2}\nv_mov_b32 v98, v{L0+4}\nv_mov_b32 v99, 1")
    g(f"buffer_store_dwordx4 v[96:99], v{TMP2}, s[28:31], s59 offen sc1")
    for b in range(3):
        for x in range(1, 4):
            g(pack_ops(x, b))
            g(pay_store(x, b, opt))
    g("s_branch L_sent")


def pack_ops(x, b):
    o, p = O(2 * x, b), O(2 * x + 1, b)
    return [f"v_cvt_pk_bf16_f32 v{o}, v{o}, v{o+1}", f"v_cvt_pk_bf16_f32 v{o+1}, v{o+2}, v{o+3}",
            f"v_cvt_pk_bf16_f32 v{o+2}, v{p}, v{p+1}", f"v_cvt_pk_bf16_f32 v{o+3}, v{p+2}, v{p+3}"]

def pay_store(x, b, opt):
    if opt.exp_x1 and x > 1: return "s_nop 0"
    return f"buffer_store_dwordx4 {Oq(2*x, b)}, v{TMP3}, s[28:31], s{55+x} offen offset:{b*1024} {opt.stpol}"


def addr_setup(g, lane, t):
    g(f"v_and_b32 v{t}, 7, v{lane}")
    g(f"v_mul_u32_u24 v{t}, {PIECE}, v{t}")
    g(f"v_bfe_u32 v{t+1}, v{lane}, 3, 1")
    g(f"v_lshlrev_b32 v{t+1}, 8, v{t+1}")
    g(f"v_and_b32 v{t+2}, 48, v{lane}")
    g(f"v_add3_u32 v{KADDR}, v{t}, v{t+1}, v{t+2}")
    g(f"v_bfe_u32 v{t}, v{lane}, 2, 3")
    g(f"v_mul_u32_u24 v{t}, {PIECE}, v{t}")
    g(f"v_lshrrev_b32 v{t+1}, 5, v{lane}")
    g(f"v_lshlrev_b32 v{t+1}, 8, v{t+1}")
    g(f"v_and_b32 v{t+3}, 3, v{lane}")
    g(f"v_lshlrev_b32 v{t+3}, 3, v{t+3}")
    g(f"v_add3_u32 v{VADDR}, v{t}, v{t+1}, v{t+3}")
    g(f"v_add_u32 v{VADDR}, {TILE}, v{VADDR}")


def gen(opt):
    g = G(opt)
    kvpol, qpol = opt.kvpol, opt.qpol
    vpol = opt.vpol if opt.vpol is not None else kvpol
    g.o.append(f"; @launch grid=(256,1,1) block=(512,1,1) lds={LDS_BYTES}")
    g.o.append('.amdgcn_target "amdgcn-amd-amdhsa--gfx950"')
    g.o.append(".text")
    g.o.append(f".globl {KN}")
    g.o.append(".p2align 8")
    g.o.append(f".type {KN},@function")
    g(f"{KN}:")
    g("s_load_dwordx8 s[4:11], s[0:1], 0")
    g("s_load_dwordx4 s[12:15], s[0:1], 32")
    g.ts(0)
    g("s_cmp_ge_u32 s2, 256")
    g("s_cbranch_scc1 L_end")
    g("v_lshrrev_b32 v1, 6, v0")
    g("s_and_b32 s16, s2, 7")
    g("s_lshr_b32 s17, s2, 3")
    g("v_readfirstlane_b32 s18, v1")
    g("s_lshl_b32 s16, s16, 3")
    g("s_lshr_b32 s19, s17, 2")
    g("s_add_u32 s16, s16, s19")
    g("s_and_b32 s17, s17, 3")
    if opt.linear:
        g("s_lshr_b32 s16, s2, 2\ns_and_b32 s17, s2, 3")
    g(f"v_and_b32 v{TMP2}, 63, v0")
    g(f"v_lshlrev_b32 v{TMP3}, 4, v{TMP2}")
    g("s_and_b32 s19, s18, 3")
    g("s_mov_b32 s23, 0x20000")
    g("s_mov_b32 s27, 0x20000")
    g("s_mov_b32 s31, 0x20000")
    g("s_cmp_lt_u32 s18, 4")
    g("s_cbranch_scc1 L_compute")

    g("s_lshl_b32 s36, s19, 11")
    g("s_lshl_b32 s37, s17, 6")
    g(f"v_xor_b32 v2, s37, v{TMP3}")
    g(f"v_add_u32 v1, s36, v{TMP3}")
    g("v_add_u32 v2, s36, v2")
    g("s_lshl_b32 s38, s16, 19")
    g("s_lshl_b32 s39, s17, 17")
    g("s_add_u32 s39, s38, s39")
    g(f"s_mul_i32 s42, s19, {2*PIECE}")
    g("s_mov_b32 s22, 0x20000")
    g("s_mov_b32 s26, 0x20000")
    g("s_movk_i32 s30, 0x1000")
    g(f"s_mul_i32 s44, s19, {RPITCH}")
    g(f"s_add_u32 m0, s44, {RBASE}")
    g(f"v_and_b32 v5, 48, v{TMP2}")
    g(f"v_xor_b32 v5, v5, v{TMP3}")
    g("s_lshl_b32 s45, s19, 10")
    g("s_mov_b32 s40, 0x2000")
    g("s_mov_b32 s41, 0")
    g("s_mov_b32 s43, s42")
    g("s_lshl_b32 s46, s16, 9")
    g("s_lshl_b32 s47, s17, 2")
    g("s_add_u32 s46, s46, s47")
    g(f"s_add_u32 s46, s46, {WS_FLAG}")
    g(f"v_and_b32 v3, 3, v{TMP2}")
    g("v_lshlrev_b32 v3, 7, v3")
    g("s_mov_b32 s34, 0x10000000")
    g("s_mov_b32 s35, 0x20000")
    g("s_mov_b32 s50, 256")
    g("s_mov_b32 s51, 0x20000")
    g("s_waitcnt lgkmcnt(0)")
    g("s_add_u32 s28, s6, s38")
    g("s_addc_u32 s29, s7, 0")
    g("buffer_load_dwordx4 v5, s[28:31], s45 offen lds")
    g(f"s_add_u32 m0, s42, {7*SLOT}")
    g("s_add_u32 s20, s6, s39")
    g("s_addc_u32 s21, s7, 0")
    g(f"buffer_load_dwordx4 v1, s[20:23], 0 offen {kvpol} lds")
    g(f"s_add_u32 m0, s42, {7*SLOT+32}")
    g("s_add_u32 s24, s8, s39")
    g("s_addc_u32 s25, s9, 0")
    g(f"buffer_load_dwordx4 v1, s[20:23], 0 offen offset:1024 {kvpol} lds")
    if opt.exp_2x:
        g("s_xor_b32 s47, s39, 0x20000")
        g("s_add_u32 s52, s6, s47\ns_addc_u32 s53, s7, 0\ns_mov_b32 s54, 0x20000\ns_mov_b32 s55, 0x20000")
        g("s_add_u32 s56, s8, s47\ns_addc_u32 s57, s9, 0\ns_mov_b32 s58, 0x20000\ns_mov_b32 s59, 0x20000")
    g("s_mov_b32 s32, s14")
    g("s_mov_b32 s33, s15")
    g("s_mov_b32 s48, s12")
    g("s_mov_b32 s49, s13")
    if opt.hs == "loader":
        g("s_cmp_lg_u32 s19, 0")
        g("s_cbranch_scc1 L_nohs1")
        g(f"buffer_load_dword v4, v3, s[32:35], s46 offen {opt.stalepol}")
        g("L_nohs1:")
    g("s_barrier")
    g.ts(1)
    def hs2():
        if opt.hs != "loader": return
        g("s_cmp_lg_u32 s19, 0")
        g("s_cbranch_scc1 L_nohs2")
        g("v_and_b32 v4, 1, v4")
        g("v_cmp_eq_u32 vcc, 0, v4")
        g("s_getreg_b32 s46, hwreg(HW_REG_XCC_ID)")
        g("s_and_b32 s46, s46, 7")
        g("s_lshl_b32 s46, s46, 4")
        g("s_and_b32 s47, vcc_lo, 15")
        g("s_or_b32 s46, s46, s47")
        g("s_or_b32 s46, s46, 0x80")
        g("s_lshl_b32 s47, s17, 3")
        g("s_lshl_b32 s46, s46, s47")
        g("v_mov_b32 v4, s46")
        g("s_lshl_b32 s47, s16, 2")
        g("s_mov_b64 exec, 1")
        g("buffer_atomic_or v4, off, s[48:51], s47 sc1")
        g("s_mov_b64 exec, -1")
        g("L_nohs2:")
    def pair(k=True):
        if k:
            g("s_mov_b32 m0, s43")
            g("s_add_u32 s44, s43, 32")
            g(f"buffer_load_dwordx4 v1, s[20:23], s40 offen {kvpol} lds")
            g("s_mov_b32 m0, s44")
            g(f"s_add_u32 s44, s43, {TILE}")
            g(f"buffer_load_dwordx4 v1, s[20:23], s40 offen offset:1024 {kvpol} lds")
            g("s_mov_b32 m0, s44")
        else:
            g(f"s_add_u32 m0, s43, {TILE}")
        g(f"s_add_u32 s44, s43, {TILE+32}")
        g(f"buffer_load_dwordx4 v2, s[24:27], s41 offen {vpol} lds")
        g("s_mov_b32 m0, s44")
        g("s_add_u32 s40, s40, 0x2000")
        g(f"buffer_load_dwordx4 v2, s[24:27], s41 offen offset:1024 {vpol} lds")
        if opt.exp_2x:
            g(f"s_sub_u32 s60, s41, {opt.exp_2x*0x2000}\ns_and_b32 s60, s60, 0x1ffff")
            g(f"s_add_u32 s61, s43, {4*SLOT}\ns_sub_u32 s62, s61, {RING}\ns_cmp_ge_u32 s61, {RING}\ns_cselect_b32 m0, s62, s61")
            g("s_nop 0")
            for srd, vv in (("s[52:55]", "v1"), ("s[56:59]", "v2")):
                g(f"buffer_load_dwordx4 {vv}, {srd}, s60 offen {kvpol} lds")
                g(f"buffer_load_dwordx4 {vv}, {srd}, s60 offen offset:1024 {kvpol} lds")
        g("s_add_u32 s41, s41, 0x2000")
        g(f"s_add_u32 s43, s43, {SLOT}")
    D = opt.depth
    PL = 8 if opt.exp_2x else 4
    I0 = opt.init_pairs
    if opt.trace:
        cnt = [0]
        def tr():
            g("s_memrealtime s[60:61]\ns_waitcnt lgkmcnt(0)")
            g(f"v_writelane_b32 v10, s60, {cnt[0]}")
            cnt[0] += 1
        g("s_waitcnt lgkmcnt(0)")
        g("v_writelane_b32 v10, s64, 63")
        def upair(u):
            pair(k=(u < 15))
            if u == 7: g("s_mov_b32 s43, s42")
        for u in range(I0): upair(u)
        tr()
        g(f"s_waitcnt vmcnt({4*I0})")
        tr()
        g("s_barrier")
        hs2()
        tr()
        for u in range(I0, D): upair(u)
        issued = D
        for t in range(16):
            out_after = sum((4 if u < 15 else 2) for u in range(t + 1, issued))
            tr()
            g(f"s_waitcnt vmcnt({out_after})")
            tr()
            g("s_barrier")
            tr()
            if issued < 16:
                upair(issued); issued += 1
        g("s_mov_b32 s28, s14\ns_mov_b32 s29, s15\ns_mov_b32 s30, 0x10000000\ns_mov_b32 s31, 0x20000")
        g("s_lshl_b32 s42, s2, 2\ns_add_u32 s42, s42, s19\ns_lshl_b32 s42, s42, 8")
        g(f"s_add_u32 s42, s42, {WS_TS + (1<<20)}")
        g(f"v_lshrrev_b32 v11, 2, v{TMP3}")
        g("buffer_store_dword v10, v11, s[28:31], s42 offen")
    else:
        g("L_ld0:")
        pair()
        g(f"s_cmp_lt_u32 s41, {I0*0x2000}")
        g("s_cbranch_scc1 L_ld0")
        g.ts(2)
        g(f"s_waitcnt vmcnt({PL*I0})")
        g.ts(3)
        g("s_barrier")
        hs2()
        if D > I0:
            g("L_ld0b:")
            pair()
            g(f"s_cmp_lt_u32 s41, {D*0x2000}")
            g("s_cbranch_scc1 L_ld0b")
        g.ts(4)
        g("L_ld1:")
        g(f"s_waitcnt vmcnt({PL*(D-1)})")
        g("s_barrier")
        pair()
        g(f"s_cmp_eq_u32 s41, {8*0x2000}")
        g("s_cselect_b32 s43, s42, s43")
        g(f"s_cmp_lt_u32 s41, {15*0x2000}")
        g("s_cbranch_scc1 L_ld1")
        g(f"s_waitcnt vmcnt({PL*(D-1)})")
        g("s_barrier")
        pair(k=False)
        npw = 0
        if opt.prewarm is not None:
            g("s_mov_b32 s28, s14\ns_mov_b32 s29, s15\ns_mov_b32 s30, 0x10000000")
            g("s_lshl_b32 s36, s16, 2\ns_add_u32 s36, s36, s19\ns_lshl_b32 s36, s36, 2\ns_add_u32 s36, s36, s17")
            g("s_mul_i32 s37, s36, 9216")
            g(f"s_mul_i32 s38, s19, {QWAVE}\ns_add_u32 m0, s38, {QBASE}")
            for i in range(3):
                for k in range(3):
                    g(f"buffer_load_dwordx4 v{TMP3}, s[28:31], s37 offen offset:{k*1024} {opt.prewarm} lds")
                g("s_add_u32 s37, s37, 3072")
            g(f"s_lshl_b32 s37, s36, 11\ns_add_u32 s37, s37, {WS_ML}")
            g(f"buffer_load_dwordx4 v{TMP3}, s[28:31], s37 offen {opt.prewarm} lds")
            npw = 10
        g.ts(5)
        for i in range(D):
            n = (PL * (D - 2 - i) + PL - 2 if i < D - 1 else 0) + npw
            g(f"s_waitcnt vmcnt({n})")
            g.ts(6 + i)
            g("s_barrier")
    g.ts_store(1)
    g("s_endpgm")

    g("L_compute:")
    g("s_lshl_b32 s36, s16, 2")
    g("s_add_u32 s36, s36, s19")
    g("s_mul_i32 s37, s36, 12288")
    g("s_mov_b32 s22, 12288")
    g("s_movk_i32 s38, 0x1000")
    g("s_movk_i32 s39, 0x2000")
    def setup():
        addr_setup(g, TMP2, 100)
        g(f"s_mul_i32 s42, s19, {QWAVE}")
        g(f"s_add_u32 s42, s42, {QBASE}")
        g(f"v_lshrrev_b32 v103, 4, v{TMP2}")
        g(f"v_mul_u32_u24 v105, {QPITCH}, v103")
        g(f"v_and_b32 v107, 15, v{TMP2}")
        g("v_lshlrev_b32 v108, 4, v107")
        g("v_add3_u32 v105, v105, v108, s42")
        g(f"v_mul_u32_u24 v106, {QPITCH}, v107")
        g("v_add3_u32 v106, v106, v102, s42")
        g(f"v_bfe_u32 v107, v{TMP2}, 2, 2")
        g(f"v_mul_u32_u24 v107, {RPITCH}, v107")
        g(f"v_and_b32 v109, 3, v{TMP2}")
        g("v_xor_b32 v110, v109, v103")
        g("v_lshlrev_b32 v110, 4, v110")
        g("v_lshlrev_b32 v109, 8, v109")
        g("v_add3_u32 v107, v107, v109, v110")
        g(f"v_add_u32 v107, {RBASE}, v107")
        g(f"v_and_b32 v111, 3, v{TMP2}")
        g("v_lshlrev_b32 v111, 7, v111")
        g("s_lshl_b32 s46, s16, 9\ns_lshl_b32 s47, s17, 2\ns_add_u32 s46, s46, s47")
        g(f"s_add_u32 s47, s46, {WS_FLAG}")
        g("s_cmp_eq_u32 s19, 0\ns_cselect_b32 s63, 2, 99")
        g(f"v_mov_b32 v{TMP2}, v108")
        for i in range(48, 96): g(f"v_mov_b32 v{i}, 0")
        for i in range(6): g(f"v_mov_b32 v{L0+i}, 0")
        g(f"s_mov_b32 s52, 0x{C_SCALE:08x}")
        g(f"s_mov_b32 s53, 0x{C_SCALE:08x}")
        g("s_mov_b32 s51, 0xffff0000")
        g(f"v_add_u32 v{TMP0}, {7*SLOT}, v{KADDR}")
        g(f"s_mov_b32 s54, {2*SLOT}")
        g("s_mov_b32 s44, 0")
        g("s_lshl_b32 s40, s36, 2")
        for x in range(1, 4):
            g(f"s_xor_b32 s42, s17, {x}")
            g("s_add_u32 s42, s42, s40")
            g(f"s_mul_i32 s{55+x}, s42, 9216")
            if x > 1: g(f"s_add_u32 s{55+x}, s{55+x}, {(x-1)*3072}")
        g("s_add_u32 s42, s40, s17")
        g("s_lshl_b32 s59, s42, 9")
        g(f"s_add_u32 s59, s59, {WS_ML}")
        g("s_mul_i32 s60, s42, 9216")
        g("s_lshl_b32 s61, s36, 7")
        g(f"s_add_u32 s61, s61, {WS_FLAG}")
        g("s_lshl_b32 s62, s16, 2")
        g("s_mov_b32 s26, 12288")
        g("s_mov_b32 s30, 0x10000000")
        g("s_mov_b32 s34, 256")
        g("s_mov_b32 s35, 0x20000")
        g("s_mov_b32 s48, 0x3f80")
        g("s_mov_b32 s49, 0x3f800000")
    if opt.setup == "early": setup()
    g.ts(2)
    g("s_waitcnt lgkmcnt(0)")
    g("s_add_u32 s20, s4, s37")
    g("s_addc_u32 s21, s5, 0")
    for i in range(12):
        so = ["0", "s38", "s39"][i // 4]
        g(f"buffer_load_dwordx4 v[{4*i}:{4*i+3}], v{TMP3}, s[20:23], {so} offen offset:{(i%4)*1024} {qpol}")
    g("s_barrier")
    g.ts(1)
    if opt.tsout:
        g("s_add_u32 s24, s14, s37\ns_addc_u32 s25, s15, 0\ns_add_u32 s24, s24, 0x2800000\ns_addc_u32 s25, s25, 0")
    else:
        g("s_add_u32 s24, s10, s37")
        g("s_addc_u32 s25, s11, 0")
    if opt.setup != "early": setup()
    g("s_mov_b32 s28, s14")
    g("s_mov_b32 s29, s15")
    g("s_mov_b32 s32, s12")
    g("s_mov_b32 s33, s13")
    QX = 0
    if opt.hs == "loop":
        g(f"buffer_load_dword v{TMP1}, v111, s[28:31], s47 offen {opt.stalepol}")
        QX = 1
    def qscale_ops(b):
        out = []
        for i in range(4):
            li = b * 4 + i
            grp = [f"s_waitcnt vmcnt({11-li+QX})"]
            for r in range(4): grp += [f"v_lshlrev_b32 v{112+2*r}, 16, v{4*li+r}", f"v_and_b32 v{113+2*r}, s51, v{4*li+r}"]
            for r in range(4): grp.append(f"v_pk_mul_f32 v[{112+2*r}:{113+2*r}], v[{112+2*r}:{113+2*r}], s[52:53]")
            for r in range(4): grp.append(f"v_cvt_pk_bf16_f32 v{4*li+r}, v{112+2*r}, v{113+2*r}")
            grp.append(f"ds_write_b128 v105, v[{4*li}:{4*li+3}] offset:{i*4*QPITCH}")
            out.append(grp)
        out.append([f"ds_read_b128 {Qa(b,s)}, v106 offset:{64*s}" for s in range(4)])
        return out
    def pp_mfma(b, s):
        c = "0" if s == 0 else Cq(b)
        return f"v_mfma_f32_16x16x32_bf16 {Cq(b)}, {Va(s)}, {Qa(b,s)}, {c}"
    for grp in qscale_ops(0): g(grp)
    g.ts(3)
    for grp in qscale_ops(1): g(grp)
    for grp in qscale_ops(2): g(grp)
    zero = [f"v_mov_b32 v{i}, 0" for i in range(48)]
    g(zero[:32])
    g.ts(4)
    g("s_barrier")
    g.ts(5)
    for s in range(4):
        g(f"ds_read_b128 {Va(s)}, v107 offset:{64*s}")
    k0r = [f"ds_read_b128 {Ka(kb,s)}, v{TMP0} offset:{kb*512 + s*64}" for kb in range(2) for s in range(4)]
    g(k0r[:4])
    g(zero[32:40])
    g("s_waitcnt lgkmcnt(4)")
    if opt.pts: g.ts(9)
    pm = [pp_mfma(b, s) for b in range(3) for s in range(4)]
    qk0 = [m.replace(Cq(0), "0") for m in slot_mfmas(5)[:8]]
    class Lst(list):
        def __call__(self, x): self.append(x)
    red = Lst()
    for b in range(3):
        c = C0 + 4 * b
        red += [f"v_max3_f32 v{c}, v{c}, v{c+1}, v{c+2}", f"v_max_f32 v{c}, v{c}, v{c+3}"]
    xlane3(red, [C0, C0 + 4, C0 + 8], [C0 + 1, C0 + 5, C0 + 9], "v_max_f32")
    for i in range(12):
        g(pm[i])
        if i < 4: g(k0r[4 + i])
        elif i < 8: g(zero[40 + 2 * (i - 4):42 + 2 * (i - 4)])
        elif i >= 10: g(red[2 * (i - 10):2 * (i - 10) + 2])
    if opt.pts: g.ts(10)
    g("s_waitcnt lgkmcnt(0)")
    rest = red[4:]
    for i in range(8):
        g(qk0[i])
        if i == 3: g("s_nop 2")
        if i >= 3: g(rest[(i - 3) * len(rest) // 5:(i - 2) * len(rest) // 5])
    if opt.pts: g.ts(11)
    g("s_barrier")
    if opt.pts: g.ts(12)
    for r in range(8): g(vread(r, 0))
    for i in range(8): g(f"v_sub_f32 v{S(0,i)}, v{S(0,i)}, v{C0}")
    smA = softmax_ops(6, "add")
    neg = []
    for b in (1, 2, 0):
        c = C0 + 4 * b
        for i in (1, 2, 3, 0):
            neg.append(f"v_sub_f32 v{c+i}, 0, v{c}")
    side = [f"v_mov_b32 v108, v{C0}", f"v_mov_b32 v109, v{C0+4}", f"v_mov_b32 v110, v{C0+8}",
            f"buffer_store_dwordx4 v[108:111], v{TMP2}, s[28:31], s59 offen offset:256 sc1"]
    for i in range(8):
        g(smA[8 + i])
        g(neg[i * 12 // 8:(i + 1) * 12 // 8])
    g(side)
    g.ts(6)
    g("s_branch L_k0")
    slots = loop_body("add", rotated=True)
    g("L_loop:")
    g(slots[4]); g(slots[-1])
    g("L_k0:")
    for k in range(4):
        if k == 3 and opt.hs == "loop":
            i = slots[3].index("s_cmp_lt_u32 s44, 8")
            g(slots[3][:i - 1]); g("s_cmp_eq_u32 s44, s63"); g(slots[3][i - 1]); g("s_cbranch_scc1 L_hs2"); g("L_hs2_ret:"); g(slots[3][i:])
        else:
            g(slots[k])
    g("s_cbranch_scc1 L_loop")
    g.ts(7)
    g(f"buffer_load_dword v{KADDR}, off, s[32:35], s62 sc1")
    last, first = {}, {}
    gaps = [4, 6, 7]
    for x in range(1, 4):
        ops = pack_ops(x, 0)
        gp = {1: (3, 4), 2: (6, 6), 3: (7, 7)}[x]
        last.setdefault(gp[0], []).extend(ops[:2]); last.setdefault(gp[1], []).extend(ops[2:])
        first.setdefault(gp[1] + 1, []).append(pay_store(x, 0, opt))
    out = []
    emit_slot(out, 46, "add", first=first, last=last)
    g(out)
    last, first = {}, {}
    for x in range(1, 4):
        last.setdefault(2 * x - 1, []).extend(pack_ops(x, 1) + [pay_store(x, 1, opt)])
    lred = Lst()
    for b in range(3): lred(f"v_add_f32 v{96+b}, v{L0+2*b}, v{L0+2*b+1}")
    xlane3(lred, [96, 97, 98], [100, 101, 102], "v_add_f32")
    lred("v_mov_b32 v99, 0")
    lred(f"buffer_store_dwordx4 v[96:99], v{TMP2}, s[28:31], s59 offen {opt.stpol}")
    lred(f"v_add_f32 v{TMP1}, v96, v97")
    lred("s_mov_b32 s50, " + ("0x5f800000" if not opt.force_fb else "0x00000000"))
    lred(f"v_add_f32 v{TMP1}, v{TMP1}, v98")
    lred(f"v_cmp_nlt_f32 vcc, v{TMP1}, s50")
    for i in range(5):
        last.setdefault(8 + i, []).extend(lred[i * len(lred) // 5:(i + 1) * len(lred) // 5])
    last.setdefault(13, []).extend(pack_ops(1, 2) + [pay_store(1, 2, opt)])
    last.setdefault(15, []).extend(pack_ops(2, 2) + [pay_store(2, 2, opt)] + pack_ops(3, 2) + [pay_store(3, 2, opt)])
    out = []
    emit_slot(out, 47, "add", qk=False, partA=False, last=last, pv_order=[2, 3, 4, 5, 6, 7, 0, 1])
    g(out)
    g.ts(8)
    g("s_cbranch_vccz L_sent")
    g("s_waitcnt vmcnt(0)")
    g("s_branch L_slow")
    g("L_sent:")
    g("s_mov_b32 s47, 0x100000")
    g(f"s_waitcnt vmcnt({4 if opt.exp_x1 else 10})")
    g("L_hs:")
    g(f"v_readfirstlane_b32 s44, v{KADDR}")
    g("s_and_b32 s45, s44, 0x80808080")
    g("s_cmp_eq_u32 s45, 0x80808080")
    g("s_cbranch_scc0 L_hs_retry")
    g("L_hs_ok:")
    g("s_lshr_b32 s45, s44, 8")
    g("s_xor_b32 s45, s45, s44")
    g("s_and_b32 s45, s45, 0x00707070")
    if opt.force_slow:
        g("s_mov_b32 s45, 1")
    g(f"v_bfe_u32 v100, v{TMP3}, 4, 2")
    g("v_lshlrev_b32 v101, 3, v100")
    g("v_add_u32 v101, s19, v101")
    g("v_lshrrev_b32 v101, v101, s44")
    g("v_and_b32 v101, 1, v101")
    g("v_lshlrev_b32 v100, 2, v100")
    g("s_lshl_b32 s46, s17, 3")
    g("s_add_u32 s46, s46, s19")
    g("s_lshr_b32 s46, s44, s46")
    g("s_and_b32 s46, s46, 1")
    g("v_mov_b32 v102, s46")
    g("s_lshl_b32 s46, s17, 2")
    g("s_add_u32 s46, s46, s61")
    for x in range(1, 4):
        g(f"s_xor_b32 s{55+x}, s59, {x<<9}")
    g("s_mov_b32 s47, 0x100000")
    g("s_cmp_lg_u32 s45, 0")
    g.ts(9)
    g("s_waitcnt vmcnt(0)")
    g.ts(10)
    g("s_cbranch_scc1 L_xcd_flag")
    g(f"buffer_store_dword v102, off, s[28:31], s46 {opt.flagpol}")
    g("L_poll:")
    g(f"buffer_load_dword v103, v100, s[28:31], s61 offen {opt.pollpol}")
    g("s_waitcnt vmcnt(0)")
    g("v_and_b32 v103, 1, v103")
    g("v_cmp_ne_u32 vcc, v103, v101")
    g("s_cbranch_vccz L_poll_ok")
    g("s_sub_u32 s47, s47, 1")
    g("s_cbranch_scc0 L_poll")
    g("L_poll_ok:")
    g.ts(11)
    lp = opt.ldpol
    LR = lambda x: 100 + 4 * x
    PR = lambda x, b: 24 + ((x - 1) * 3 + b) * 4
    for x in range(1, 4):
        g(f"buffer_load_dwordx4 v[{LR(x)}:{LR(x)+3}], v{TMP2}, s[28:31], s{55+x} offen {lp}")
    for x in range(1, 4):
        for b in range(3):
            if opt.exp_x1 and x < 3: continue
            g(f"buffer_load_dwordx4 v[{PR(x,b)}:{PR(x,b)+3}], v{TMP3}, s[28:31], s60 offen offset:{b*1024} {lp}")
        if x < 3 and not opt.exp_x1: g("s_add_u32 s60, s60, 3072")
    g(f"v_bfe_u32 v132, v{TMP3}, 4, 4")
    g("v_lshlrev_b32 v132, 8, v132")
    g(f"v_lshrrev_b32 v133, 8, v{TMP3}")
    g("v_lshlrev_b32 v133, 3, v133")
    g("s_lshl_b32 s42, s17, 6")
    g("v_add3_u32 v132, v132, v133, s42")
    g(f"s_waitcnt vmcnt({3 if opt.exp_x1 else 9})")
    g.ts(12)
    g(f"v_or3_b32 v99, v99, v{LR(1)+3}, v{LR(2)+3}")
    g(f"v_or_b32 v99, v99, v{LR(3)+3}")
    g("v_cmp_ne_u32 vcc, 0, v99")
    g("s_cbranch_vccnz L_general")
    for x in range(1, 4):
        for b in range(3):
            g(f"v_add_f32 v{96+b}, v{96+b}, v{LR(x)+b}")
    for b in range(3): g(f"v_rcp_f32 v{96+b}, v{96+b}")
    def acc_reg(b, i): return O(i // 4, b, i % 4)
    for x in range(3 if opt.exp_x1 else 1, 4):
        for b in range(3):
            g(f"s_waitcnt vmcnt({9 - ((x-1)*3 + b) - 1})")
            if x == 3 and b == 2: g.ts(13)
            for r in range(4):
                src = PR(x, b) + r
                if opt.dot:
                    g(f"v_dot2c_f32_bf16 v{acc_reg(b,2*r)}, s48, v{src}")
                    g(f"v_dot2c_f32_bf16 v{acc_reg(b,2*r+1)}, s49, v{src}")
                else:
                    t = 116 + 2 * (r & 1)
                    g(f"v_lshlrev_b32 v{t}, 16, v{src}")
                    g(f"v_and_b32 v{t+1}, s51, v{src}")
                    g(f"v_pk_add_f32 v[{acc_reg(b,2*r)}:{acc_reg(b,2*r+1)}], v[{acc_reg(b,2*r)}:{acc_reg(b,2*r+1)}], v[{t}:{t+1}]")
            if x == 3:
                if opt.dot: g("s_nop 2")
                out_store(g, b, 96 + b, opt)
    g("L_done:")
    g.ts(14)
    if opt.ts:
        g("s_waitcnt vmcnt(0)")
        g.ts(15)
    g.ts_store(0)
    g("L_end:")
    g("s_endpgm")
    if opt.hs == "loop":
        g("L_hs2:")
        g("s_waitcnt vmcnt(0)")
        g(f"v_and_b32 v{TMP1}, 1, v{TMP1}")
        g(f"v_cmp_eq_u32 vcc, 0, v{TMP1}")
        g("s_getreg_b32 s46, hwreg(HW_REG_XCC_ID)")
        g("s_and_b32 s46, s46, 7")
        g("s_lshl_b32 s46, s46, 4")
        g("s_and_b32 s47, vcc_lo, 15")
        g("s_or_b32 s46, s46, s47")
        g("s_or_b32 s46, s46, 0x80")
        g("s_lshl_b32 s47, s17, 3")
        g("s_lshl_b32 s46, s46, s47")
        g(f"v_mov_b32 v{TMP1}, s46")
        g("s_mov_b64 exec, 1")
        g(f"buffer_atomic_or v{TMP1}, off, s[32:35], s62 sc1")
        g("s_mov_b64 exec, -1")
        g("s_branch L_hs2_ret")
    g("L_hs_retry:")
    g("s_sleep 2")
    g(f"buffer_load_dword v{KADDR}, off, s[32:35], s62 sc1")
    g("s_sub_u32 s47, s47, 1")
    g("s_waitcnt vmcnt(0)")
    g("s_cbranch_scc0 L_hs")
    g("s_branch L_hs_ok")
    g("L_xcd_flag:")
    g("buffer_store_dword v102, off, s[28:31], s46 sc1")
    g("L_poll2:")
    g("buffer_load_dword v103, v100, s[28:31], s61 offen sc1")
    g("s_waitcnt vmcnt(0)")
    g("v_and_b32 v103, 1, v103")
    g("v_cmp_ne_u32 vcc, v103, v101")
    g("s_cbranch_vccz L_poll_ok")
    g("s_sub_u32 s47, s47, 1")
    g("s_cbranch_scc0 L_poll2")
    g("s_branch L_poll_ok")
    g("L_general:")
    CR = lambda x: 60 + 4 * x
    for x in range(1, 4):
        g(f"buffer_load_dwordx4 v[{CR(x)}:{CR(x)+3}], v{TMP2}, s[28:31], s{55+x} offen offset:256 sc1")
    for b in range(3): g(f"v_mov_b32 v{CR(0)+b}, v{C0+4*b}")
    g("s_waitcnt vmcnt(0)")
    for b in range(3):
        g(f"v_min3_f32 v100, v{CR(0)+b}, v{CR(1)+b}, v{CR(2)+b}")
        g(f"v_min_f32 v100, v100, v{CR(3)+b}")
        for x in range(4): g(f"v_sub_f32 v{CR(x)+b}, v100, v{CR(x)+b}")
        for x in range(4): g(f"v_exp_f32 v{CR(x)+b}, v{CR(x)+b}")
        g("s_nop 0")
        g(f"v_mul_f32 v{96+b}, v{96+b}, v{CR(0)+b}")
        for x in range(1, 4): g(f"v_fmac_f32 v{96+b}, v{CR(x)+b}, v{LR(x)+b}")
    for b in range(3): g(f"v_rcp_f32 v{96+b}, v{96+b}")
    for b in range(3):
        for i in range(8): g(f"v_mul_f32 v{acc_reg(b,i)}, v{acc_reg(b,i)}, v{CR(0)+b}")
        for x in range(1, 4):
            for r in range(4):
                src = PR(x, b) + r
                g(f"v_lshlrev_b32 v116, 16, v{src}")
                g(f"v_and_b32 v117, s51, v{src}")
                g(f"v_fmac_f32 v{acc_reg(b,2*r)}, v116, v{CR(x)+b}")
                g(f"v_fmac_f32 v{acc_reg(b,2*r+1)}, v117, v{CR(x)+b}")
        out_store(g, b, 96 + b, opt)
    g("s_branch L_done")
    slow_path(g, opt)
    g.o.append(f""".section .rodata,"a"
.p2align 6
.amdhsa_kernel {KN}
  .amdhsa_next_free_vgpr {NV+NA}
  .amdhsa_next_free_sgpr 102
  .amdhsa_accum_offset {NV}
  .amdhsa_group_segment_fixed_size 0
  .amdhsa_kernarg_size 48
  .amdhsa_user_sgpr_count 2
  .amdhsa_user_sgpr_kernarg_segment_ptr 1
  .amdhsa_system_sgpr_workgroup_id_x 1
.end_amdhsa_kernel""")
    return "\n".join(g.o) + "\n"


def out_store(g, b, rl, opt):
    for h in range(2):
        o = O(h, b)
        for r in range(4): g(f"v_mul_f32 v{o+r}, v{o+r}, v{rl}")
        g(f"v_cvt_pk_bf16_f32 v{o}, v{o}, v{o+1}")
        g(f"v_cvt_pk_bf16_f32 v{o+1}, v{o+2}, v{o+3}")
        so = ["0", "s38", "s39"][b]
        g(f"buffer_store_dwordx2 v[{o}:{o+1}], v132, s[24:27], {so} offen offset:{32*h} {opt.outpol}")


if __name__ == "__main__":
    ap = argparse.ArgumentParser()
    ap.add_argument("-o", default="standalone__gqa_softmax__near_ridge.s")
    ap.add_argument("--kvpol", default="nt")
    ap.add_argument("--qpol", default="nt")
    ap.add_argument("--stpol", default="sc1")
    ap.add_argument("--ldpol", default="sc1")
    ap.add_argument("--outpol", default="")
    ap.add_argument("--ts", type=int, default=0)
    ap.add_argument("--vpol", default=None)
    ap.add_argument("--hs", default="loop")
    ap.add_argument("--setup", default="early")
    ap.add_argument("--tsout", type=int, default=0)
    ap.add_argument("--pts", type=int, default=0)
    ap.add_argument("--exp_x1", type=int, default=0)
    ap.add_argument("--exp_2x", type=int, default=0)
    ap.add_argument("--prewarm", default=None)
    ap.add_argument("--linear", type=int, default=0)
    ap.add_argument("--trace", type=int, default=0)
    ap.add_argument("--pollpol", default="nt")
    ap.add_argument("--stalepol", default="")
    ap.add_argument("--dot", type=int, default=1)
    ap.add_argument("--flagpol", default="")
    ap.add_argument("--depth", type=int, default=3)
    ap.add_argument("--init_pairs", type=int, default=2)
    ap.add_argument("--force_slow", type=int, default=0)
    ap.add_argument("--force_fb", type=int, default=0)
    opt = ap.parse_args()
    open(opt.o, "w").write(gen(opt))
```

```python
import sys, argparse, struct, math
from body import *

KN = "standalone__gqa_softmax__near_ridge_kernel"
NSLOT = 8
RING = NSLOT * SLOT
QBASE = RING
QPITCH = 288
QWAVE = 16 * QPITCH
RBASE = QBASE + 4 * QWAVE
RPITCH = 1088
LDS_BYTES = RBASE + 4 * RPITCH

WS_ML = 16 << 20
WS_FLAG = 24 << 20
WS_TS = 32 << 20
C_SCALE = struct.unpack("<I", struct.pack("<f", math.log2(math.e) / math.sqrt(128.0)))[0]
NTS = 16


class G:
    def __init__(self, opt):
        self.o = []
        self.opt = opt
    def __call__(self, s):
        if isinstance(s, list):
            for x in s: self(x)
            return
        for l in s.split("\n"):
            l = l.strip()
            if l:
                self.o.append(("" if l.endswith(":") else "    ") + l)
    def ts(self, idx):
        if self.opt.pts and idx >= 9:
            self.seen = getattr(self, "seen", set())
            if idx in self.seen: return
            self.seen.add(idx)
        if self.opt.ts:
            self(f"s_memrealtime s[{64+2*idx}:{65+2*idx}]" if self.opt.ts == 2 else f"s_memtime s[{64+2*idx}:{65+2*idx}]")
    def ts_store(self, widx):
        if not self.opt.ts: return
        self("s_waitcnt vmcnt(0) lgkmcnt(0)")
        if self.opt.probe:
            if widx == 0:
                i = self.opt.probe
                self(f"s_sub_u32 s40, s{64+2*i}, s64\ns_lshl_b32 s40, s40, 3")
                self("L_probe:\ns_sleep 8\ns_memrealtime s[42:43]\ns_waitcnt lgkmcnt(0)\ns_sub_u32 s41, s42, s64\ns_cmp_lt_u32 s41, s40\ns_cbranch_scc1 L_probe")
            return
        if self.opt.tsout:
            self("s_mov_b32 s28, s10\ns_mov_b32 s29, s11\ns_mov_b32 s30, 0x300000\ns_mov_b32 s31, 0x20000")
            self("s_lshl_b32 s42, s2, 3\ns_add_u32 s42, s42, s18\ns_lshl_b32 s42, s42, 6")
            for i in range(1, NTS):
                self(f"s_sub_u32 s{64+2*i}, s{64+2*i}, s64")
            self("v_mov_b32 v1, 0")
            for i in range(NTS):
                self(f"v_writelane_b32 v1, s{64+2*i}, {i}")
            self("v_and_b32 v1, 0x3fff, v1")
            self("v_lshrrev_b32 v2, 6, v1\nv_and_b32 v3, 63, v1\nv_cvt_f32_u32 v2, v2\nv_cvt_f32_u32 v3, v3\nv_cvt_pk_bf16_f32 v2, v2, v3")
            self("v_mbcnt_lo_u32_b32 v4, -1, 0\nv_lshlrev_b32 v4, 2, v4")
            self("s_mov_b64 exec, 0xffff")
            self("buffer_store_dword v2, v4, s[28:31], s42 offen")
            return
        self("s_mov_b32 s28, s14\ns_mov_b32 s29, s15\ns_mov_b32 s30, 0x10000000\ns_mov_b32 s31, 0x20000")
        self("s_lshl_b32 s42, s2, 3")
        self("s_add_u32 s42, s42, s18")
        self("s_lshl_b32 s42, s42, 6")
        self(f"s_add_u32 s42, s42, {WS_TS}")
        for i in range(NTS):
            self(f"v_mov_b32 v1, s{64+2*i}")
            self(f"buffer_store_dword v1, off, s[28:31], s42 offset:{4*i}")
            self("s_nop 1")


def xlane(g, a, t, op):
    g(f"v_mov_b32 v{t}, v{a}")
    g("s_nop 1")
    g(f"v_permlane32_swap_b32 v{a}, v{t}")
    g("s_nop 1")
    g(f"{op} v{a}, v{a}, v{t}")
    g(f"v_mov_b32 v{t}, v{a}")
    g("s_nop 1")
    g(f"v_permlane16_swap_b32 v{a}, v{t}")
    g("s_nop 1")
    g(f"{op} v{a}, v{a}, v{t}")


def xlane3(g, regs, tmps, op):
    for sw in ("v_permlane32_swap_b32", "v_permlane16_swap_b32"):
        for a, t in zip(regs, tmps): g(f"v_mov_b32 v{t}, v{a}")
        g("s_nop 0")
        for a, t in zip(regs, tmps): g(f"{sw} v{a}, v{t}")
        g("s_nop 0")
        for a, t in zip(regs, tmps): g(f"{op} v{a}, v{a}, v{t}")


def slow_path(g, opt):
    g("L_slow:")
    g("s_lshl_b32 s38, s16, 19")
    g("s_lshl_b32 s39, s17, 17")
    g("s_add_u32 s38, s38, s39")
    g("s_add_u32 s20, s6, s38\ns_addc_u32 s21, s7, 0\ns_mov_b32 s22, 0x20000\ns_mov_b32 s23, 0x20000")
    g("s_add_u32 s96, s8, s38\ns_addc_u32 s97, s9, 0\ns_mov_b32 s98, 0x20000\ns_mov_b32 s99, 0x20000")
    g("s_movk_i32 s38, 0x1000\ns_movk_i32 s39, 0x2000")
    g(f"v_mbcnt_lo_u32_b32 v{TMP2}, -1, 0")
    g(f"v_mbcnt_hi_u32_b32 v{TMP2}, -1, v{TMP2}")
    addr_setup(g, TMP2, 96)
    g(f"s_mul_i32 s42, s19, {SLOT}")
    g(f"v_add_u32 v{KADDR}, s42, v{KADDR}")
    g(f"v_add_u32 v{VADDR}, s42, v{VADDR}")
    g(f"v_lshlrev_b32 v{TMP2}, 4, v{TMP2}")
    g("s_lshl_b32 s43, s17, 6")
    g(f"v_xor_b32 v{TMP3}, s43, v{TMP2}")
    for i in range(96): g(f"v_mov_b32 v{i}, 0")
    for i in range(6): g(f"v_mov_b32 v{L0+i}, 0")
    for b in range(3): g(f"v_mov_b32 v{C0+4*b}, 0x7f000000")
    g("s_mov_b32 s44, 0")
    g("L_slow_loop:")
    g("s_mov_b32 s45, s44")
    g("s_mov_b32 s46, s42")
    g("L_slow_ld:")
    g("s_mov_b32 m0, s46")
    g(f"s_add_u32 s47, s46, {TILE}")
    g(f"buffer_load_dwordx4 v{TMP2}, s[20:23], s45 offen lds")
    g("s_mov_b32 m0, s47")
    g(f"s_add_u32 s46, s46, {PIECE}")
    g(f"buffer_load_dwordx4 v{TMP3}, s[96:99], s45 offen lds")
    g("s_add_u32 s45, s45, 1024")
    g("s_and_b32 s47, s45, 0x1fff")
    g("s_cbranch_scc1 L_slow_ld")
    g("s_waitcnt vmcnt(0)")
    for i in range(8): g(kread(i, 0))
    for r in range(16): g(vread(r, 0))
    g("s_waitcnt lgkmcnt(0)")
    for b in range(3):
        c = C0 + 4 * b
        s = lambda i: f"v{S(0, i)}"
        for kb in range(2):
            for st in range(4):
                cc = "0" if st == 0 else Sq(0, kb)
                g(f"v_mfma_f32_16x16x32_bf16 {Sq(0,kb)}, {Ka(kb,st)}, {Qa(b,st)}, {cc}")
        g("s_nop 7")
        g(f"v_max3_f32 v{TMP0}, {s(0)}, {s(1)}, {s(2)}")
        g(f"v_max3_f32 v{TMP0}, v{TMP0}, {s(3)}, {s(4)}")
        g(f"v_max3_f32 v{TMP0}, v{TMP0}, {s(5)}, {s(6)}")
        g(f"v_max3_f32 v{TMP0}, v{TMP0}, {s(7)}, -v{c}")
        xlane(g, TMP0, TMP1, "v_max_f32")
        g(f"v_add_f32 v{TMP1}, v{c}, v{TMP0}")
        g(f"v_exp_f32 v{TMP1}, -v{TMP1}")
        g(f"v_sub_f32 v{c}, 0, v{TMP0}")
        for i in range(8): g(f"v_sub_f32 {s(i)}, {s(i)}, v{TMP0}")
        for i in range(8): g(f"v_exp_f32 {s(i)}, {s(i)}")
        g(f"v_mul_f32 v{L0+2*b}, v{L0+2*b}, v{TMP1}")
        for db in range(8):
            for r in range(4): g(f"v_mul_f32 v{O(db,b,r)}, v{O(db,b,r)}, v{TMP1}")
        for i in range(4): g(f"v_cvt_pk_bf16_f32 v{P(0,i)}, {s(2*i)}, {s(2*i+1)}")
        for i in range(8): g(f"v_add_f32 v{L0+2*b}, v{L0+2*b}, {s(i)}")
        for db in range(8):
            g(f"v_mfma_f32_16x16x32_bf16 {Oq(db,b)}, {Va(db)}, {Pq(0)}, {Oq(db,b)}")
    g("s_add_u32 s44, s44, 0x2000")
    g("s_cmp_lt_u32 s44, 0x20000")
    g("s_cbranch_scc1 L_slow_loop")
    g("s_nop 7")
    xlane3(g, [L0, L0 + 2, L0 + 4], [TMP0, TMP1, TMP2], "v_add_f32")
    g(f"v_mbcnt_lo_u32_b32 v{TMP3}, -1, 0")
    g(f"v_mbcnt_hi_u32_b32 v{TMP3}, -1, v{TMP3}")
    g(f"v_lshlrev_b32 v{TMP3}, 4, v{TMP3}")
    g(f"v_and_b32 v{TMP2}, 0xf0, v{TMP3}")
    g(f"v_mov_b32 v{KADDR}, 0")
    g(f"v_mov_b32 v100, v{C0}\nv_mov_b32 v101, v{C0+4}\nv_mov_b32 v102, v{C0+8}\nv_mov_b32 v103, 0")
    g(f"buffer_store_dwordx4 v[100:103], v{TMP2}, s[28:31], s59 offen offset:256 sc1")
    g(f"v_mov_b32 v96, v{L0}\nv_mov_b32 v97, v{L0+2}\nv_mov_b32 v98, v{L0+4}\nv_mov_b32 v99, 1")
    g(f"buffer_store_dwordx4 v[96:99], v{TMP2}, s[28:31], s59 offen sc1")
    for b in range(3):
        for x in range(1, 4):
            g(pack_ops(x, b))
            g(pay_store(x, b, opt))
    g("s_branch L_sent")


def pack_ops(x, b):
    o, p = O(2 * x, b), O(2 * x + 1, b)
    return [f"v_cvt_pk_bf16_f32 v{o}, v{o}, v{o+1}", f"v_cvt_pk_bf16_f32 v{o+1}, v{o+2}, v{o+3}",
            f"v_cvt_pk_bf16_f32 v{o+2}, v{p}, v{p+1}", f"v_cvt_pk_bf16_f32 v{o+3}, v{p+2}, v{p+3}"]

def pay_store(x, b, opt):
    if opt.exp_x1 and x > 1: return "s_nop 0"
    return f"buffer_store_dwordx4 {Oq(2*x, b)}, v{TMP3}, s[28:31], s{55+x} offen offset:{b*1024} {opt.stpol}"


def addr_setup(g, lane, t):
    g(f"v_and_b32 v{t}, 7, v{lane}")
    g(f"v_mul_u32_u24 v{t}, {PIECE}, v{t}")
    g(f"v_bfe_u32 v{t+1}, v{lane}, 3, 1")
    g(f"v_lshlrev_b32 v{t+1}, 8, v{t+1}")
    g(f"v_and_b32 v{t+2}, 48, v{lane}")
    g(f"v_add3_u32 v{KADDR}, v{t}, v{t+1}, v{t+2}")
    g(f"v_bfe_u32 v{t}, v{lane}, 2, 3")
    g(f"v_mul_u32_u24 v{t}, {PIECE}, v{t}")
    g(f"v_lshrrev_b32 v{t+1}, 5, v{lane}")
    g(f"v_lshlrev_b32 v{t+1}, 8, v{t+1}")
    g(f"v_and_b32 v{t+3}, 3, v{lane}")
    g(f"v_lshlrev_b32 v{t+3}, 3, v{t+3}")
    g(f"v_add3_u32 v{VADDR}, v{t}, v{t+1}, v{t+3}")
    g(f"v_add_u32 v{VADDR}, {TILE}, v{VADDR}")


def gen(opt):
    g = G(opt)
    kvpol, qpol = opt.kvpol, opt.qpol
    vpol = opt.vpol if opt.vpol is not None else kvpol
    g.o.append(f"; @launch grid=(256,1,1) block=(512,1,1) lds={LDS_BYTES}")
    g.o.append('.amdgcn_target "amdgcn-amd-amdhsa--gfx950"')
    g.o.append(".text")
    g.o.append(f".globl {KN}")
    g.o.append(".p2align 8")
    g.o.append(f".type {KN},@function")
    g(f"{KN}:")
    g("s_load_dwordx8 s[4:11], s[0:1], 0")
    g("s_load_dwordx4 s[12:15], s[0:1], 32")
    g.ts(0)
    g("s_cmp_ge_u32 s2, 256")
    g("s_cbranch_scc1 L_end")
    g("v_lshrrev_b32 v1, 6, v0")
    g("s_and_b32 s16, s2, 7")
    g("s_lshr_b32 s17, s2, 3")
    g("v_readfirstlane_b32 s18, v1")
    g("s_lshl_b32 s16, s16, 3")
    g("s_lshr_b32 s19, s17, 2")
    g("s_add_u32 s16, s16, s19")
    g("s_and_b32 s17, s17, 3")
    if opt.linear:
        g("s_lshr_b32 s16, s2, 2\ns_and_b32 s17, s2, 3")
    g(f"v_and_b32 v{TMP2}, 63, v0")
    g(f"v_lshlrev_b32 v{TMP3}, 4, v{TMP2}")
    g("s_and_b32 s19, s18, 3")
    g("s_mov_b32 s23, 0x20000")
    g("s_mov_b32 s27, 0x20000")
    g("s_mov_b32 s31, 0x20000")
    g("s_cmp_lt_u32 s18, 4")
    g("s_cbranch_scc1 L_compute")

    g("s_lshl_b32 s36, s19, 11")
    g("s_lshl_b32 s37, s17, 6")
    g(f"v_xor_b32 v2, s37, v{TMP3}")
    g(f"v_add_u32 v1, s36, v{TMP3}")
    g("v_add_u32 v2, s36, v2")
    g("s_lshl_b32 s38, s16, 19")
    g("s_lshl_b32 s39, s17, 17")
    g("s_add_u32 s39, s38, s39")
    g(f"s_mul_i32 s42, s19, {2*PIECE}")
    g("s_mov_b32 s22, 0x20000")
    g("s_mov_b32 s26, 0x20000")
    g("s_movk_i32 s30, 0x1000")
    g(f"s_mul_i32 s44, s19, {RPITCH}")
    g(f"s_add_u32 m0, s44, {RBASE}")
    g(f"v_and_b32 v5, 48, v{TMP2}")
    g(f"v_xor_b32 v5, v5, v{TMP3}")
    g("s_lshl_b32 s45, s19, 10")
    g("s_mov_b32 s40, 0x2000")
    g("s_mov_b32 s41, 0")
    g("s_mov_b32 s43, s42")
    g("s_lshl_b32 s46, s16, 9")
    g("s_lshl_b32 s47, s17, 2")
    g("s_add_u32 s46, s46, s47")
    g(f"s_add_u32 s46, s46, {WS_FLAG}")
    g(f"v_and_b32 v3, 3, v{TMP2}")
    g("v_lshlrev_b32 v3, 7, v3")
    g("s_mov_b32 s34, 0x10000000")
    g("s_mov_b32 s35, 0x20000")
    g("s_mov_b32 s50, 256")
    g("s_mov_b32 s51, 0x20000")
    g("s_waitcnt lgkmcnt(0)")
    g("s_add_u32 s28, s6, s38")
    g("s_addc_u32 s29, s7, 0")
    g("buffer_load_dwordx4 v5, s[28:31], s45 offen lds")
    g(f"s_add_u32 m0, s42, {7*SLOT}")
    g("s_add_u32 s20, s6, s39")
    g("s_addc_u32 s21, s7, 0")
    g(f"buffer_load_dwordx4 v1, s[20:23], 0 offen {kvpol} lds")
    g(f"s_add_u32 m0, s42, {7*SLOT+32}")
    g("s_add_u32 s24, s8, s39")
    g("s_addc_u32 s25, s9, 0")
    g(f"buffer_load_dwordx4 v1, s[20:23], 0 offen offset:1024 {kvpol} lds")
    if opt.exp_2x:
        g("s_xor_b32 s47, s39, 0x20000")
        g("s_add_u32 s52, s6, s47\ns_addc_u32 s53, s7, 0\ns_mov_b32 s54, 0x20000\ns_mov_b32 s55, 0x20000")
        g("s_add_u32 s56, s8, s47\ns_addc_u32 s57, s9, 0\ns_mov_b32 s58, 0x20000\ns_mov_b32 s59, 0x20000")
    g("s_mov_b32 s32, s14")
    g("s_mov_b32 s33, s15")
    g("s_mov_b32 s48, s12")
    g("s_mov_b32 s49, s13")
    if opt.hs == "loader":
        g("s_cmp_lg_u32 s19, 0")
        g("s_cbranch_scc1 L_nohs1")
        g(f"buffer_load_dword v4, v3, s[32:35], s46 offen {opt.stalepol}")
        g("L_nohs1:")
    g("s_barrier")
    g.ts(1)
    def hs2():
        if opt.hs != "loader": return
        g("s_cmp_lg_u32 s19, 0")
        g("s_cbranch_scc1 L_nohs2")
        g("v_and_b32 v4, 1, v4")
        g("v_cmp_eq_u32 vcc, 0, v4")
        g("s_getreg_b32 s46, hwreg(HW_REG_XCC_ID)")
        g("s_and_b32 s46, s46, 7")
        g("s_lshl_b32 s46, s46, 4")
        g("s_and_b32 s47, vcc_lo, 15")
        g("s_or_b32 s46, s46, s47")
        g("s_or_b32 s46, s46, 0x80")
        g("s_lshl_b32 s47, s17, 3")
        g("s_lshl_b32 s46, s46, s47")
        g("v_mov_b32 v4, s46")
        g("s_lshl_b32 s47, s16, 2")
        g("s_mov_b64 exec, 1")
        g("buffer_atomic_or v4, off, s[48:51], s47 sc1")
        g("s_mov_b64 exec, -1")
        g("L_nohs2:")
    def pair(k=True):
        if k:
            g("s_mov_b32 m0, s43")
            g("s_add_u32 s44, s43, 32")
            g(f"buffer_load_dwordx4 v1, s[20:23], s40 offen {kvpol} lds")
            g("s_mov_b32 m0, s44")
            g(f"s_add_u32 s44, s43, {TILE}")
            g(f"buffer_load_dwordx4 v1, s[20:23], s40 offen offset:1024 {kvpol} lds")
            g("s_mov_b32 m0, s44")
        else:
            g(f"s_add_u32 m0, s43, {TILE}")
        g(f"s_add_u32 s44, s43, {TILE+32}")
        g(f"buffer_load_dwordx4 v2, s[24:27], s41 offen {vpol} lds")
        g("s_mov_b32 m0, s44")
        g("s_add_u32 s40, s40, 0x2000")
        g(f"buffer_load_dwordx4 v2, s[24:27], s41 offen offset:1024 {vpol} lds")
        if opt.exp_2x:
            g(f"s_sub_u32 s60, s41, {opt.exp_2x*0x2000}\ns_and_b32 s60, s60, 0x1ffff")
            g(f"s_add_u32 s61, s43, {4*SLOT}\ns_sub_u32 s62, s61, {RING}\ns_cmp_ge_u32 s61, {RING}\ns_cselect_b32 m0, s62, s61")
            g("s_nop 0")
            for srd, vv in (("s[52:55]", "v1"), ("s[56:59]", "v2")):
                g(f"buffer_load_dwordx4 {vv}, {srd}, s60 offen {kvpol} lds")
                g(f"buffer_load_dwordx4 {vv}, {srd}, s60 offen offset:1024 {kvpol} lds")
        g("s_add_u32 s41, s41, 0x2000")
        g(f"s_add_u32 s43, s43, {SLOT}")
    D = opt.depth
    PL = 8 if opt.exp_2x else 4
    I0 = opt.init_pairs
    if opt.trace:
        cnt = [0]
        def tr():
            g("s_memrealtime s[60:61]\ns_waitcnt lgkmcnt(0)")
            g(f"v_writelane_b32 v10, s60, {cnt[0]}")
            cnt[0] += 1
        g("s_waitcnt lgkmcnt(0)")
        g("v_writelane_b32 v10, s64, 63")
        def upair(u):
            pair(k=(u < 15))
            if u == 7: g("s_mov_b32 s43, s42")
        for u in range(I0): upair(u)
        tr()
        g(f"s_waitcnt vmcnt({4*I0})")
        tr()
        g("s_barrier")
        hs2()
        tr()
        for u in range(I0, D): upair(u)
        issued = D
        for t in range(16):
            out_after = sum((4 if u < 15 else 2) for u in range(t + 1, issued))
            tr()
            g(f"s_waitcnt vmcnt({out_after})")
            tr()
            g("s_barrier")
            tr()
            if issued < 16:
                upair(issued); issued += 1
        g("s_mov_b32 s28, s14\ns_mov_b32 s29, s15\ns_mov_b32 s30, 0x10000000\ns_mov_b32 s31, 0x20000")
        g("s_lshl_b32 s42, s2, 2\ns_add_u32 s42, s42, s19\ns_lshl_b32 s42, s42, 8")
        g(f"s_add_u32 s42, s42, {WS_TS + (1<<20)}")
        g(f"v_lshrrev_b32 v11, 2, v{TMP3}")
        g("buffer_store_dword v10, v11, s[28:31], s42 offen")
    else:
        g("L_ld0:")
        pair()
        g(f"s_cmp_lt_u32 s41, {I0*0x2000}")
        g("s_cbranch_scc1 L_ld0")
        g.ts(2)
        g(f"s_waitcnt vmcnt({PL*I0})")
        g.ts(3)
        g("s_barrier")
        hs2()
        if D > I0:
            g("L_ld0b:")
            pair()
            g(f"s_cmp_lt_u32 s41, {D*0x2000}")
            g("s_cbranch_scc1 L_ld0b")
        g.ts(4)
        g("L_ld1:")
        g(f"s_waitcnt vmcnt({PL*(D-1)})")
        g("s_barrier")
        pair()
        g(f"s_cmp_eq_u32 s41, {8*0x2000}")
        g("s_cselect_b32 s43, s42, s43")
        g(f"s_cmp_lt_u32 s41, {15*0x2000}")
        g("s_cbranch_scc1 L_ld1")
        g(f"s_waitcnt vmcnt({PL*(D-1)})")
        g("s_barrier")
        pair(k=False)
        npw = 0
        if opt.prewarm is not None:
            g("s_mov_b32 s28, s14\ns_mov_b32 s29, s15\ns_mov_b32 s30, 0x10000000")
            g("s_lshl_b32 s36, s16, 2\ns_add_u32 s36, s36, s19\ns_lshl_b32 s36, s36, 2\ns_add_u32 s36, s36, s17")
            g("s_mul_i32 s37, s36, 9216")
            g(f"s_mul_i32 s38, s19, {QWAVE}\ns_add_u32 m0, s38, {QBASE}")
            for i in range(3):
                for k in range(3):
                    g(f"buffer_load_dwordx4 v{TMP3}, s[28:31], s37 offen offset:{k*1024} {opt.prewarm} lds")
                g("s_add_u32 s37, s37, 3072")
            g(f"s_lshl_b32 s37, s36, 11\ns_add_u32 s37, s37, {WS_ML}")
            g(f"buffer_load_dwordx4 v{TMP3}, s[28:31], s37 offen {opt.prewarm} lds")
            npw = 10
        g.ts(5)
        for i in range(D):
            n = (PL * (D - 2 - i) + PL - 2 if i < D - 1 else 0) + npw
            g(f"s_waitcnt vmcnt({n})")
            g.ts(6 + i)
            g("s_barrier")
    g.ts_store(1)
    g("s_endpgm")

    g("L_compute:")
    g("s_lshl_b32 s36, s16, 2")
    g("s_add_u32 s36, s36, s19")
    g("s_mul_i32 s37, s36, 12288")
    g("s_mov_b32 s22, 12288")
    g("s_movk_i32 s38, 0x1000")
    g("s_movk_i32 s39, 0x2000")
    def setup():
        addr_setup(g, TMP2, 100)
        g(f"s_mul_i32 s42, s19, {QWAVE}")
        g(f"s_add_u32 s42, s42, {QBASE}")
        g(f"v_lshrrev_b32 v103, 4, v{TMP2}")
        g(f"v_mul_u32_u24 v105, {QPITCH}, v103")
        g(f"v_and_b32 v107, 15, v{TMP2}")
        g("v_lshlrev_b32 v108, 4, v107")
        g("v_add3_u32 v105, v105, v108, s42")
        g(f"v_mul_u32_u24 v106, {QPITCH}, v107")
        g("v_add3_u32 v106, v106, v102, s42")
        g(f"v_bfe_u32 v107, v{TMP2}, 2, 2")
        g(f"v_mul_u32_u24 v107, {RPITCH}, v107")
        g(f"v_and_b32 v109, 3, v{TMP2}")
        g("v_xor_b32 v110, v109, v103")
        g("v_lshlrev_b32 v110, 4, v110")
        g("v_lshlrev_b32 v109, 8, v109")
        g("v_add3_u32 v107, v107, v109, v110")
        g(f"v_add_u32 v107, {RBASE}, v107")
        g(f"v_and_b32 v111, 3, v{TMP2}")
        g("v_lshlrev_b32 v111, 7, v111")
        g("s_lshl_b32 s46, s16, 9\ns_lshl_b32 s47, s17, 2\ns_add_u32 s46, s46, s47")
        g(f"s_add_u32 s47, s46, {WS_FLAG}")
        g("s_cmp_eq_u32 s19, 0\ns_cselect_b32 s63, 2, 99")
        g(f"v_mov_b32 v{TMP2}, v108")
        for i in range(48, 96): g(f"v_mov_b32 v{i}, 0")
        for i in range(6): g(f"v_mov_b32 v{L0+i}, 0")
        g(f"s_mov_b32 s52, 0x{C_SCALE:08x}")
        g(f"s_mov_b32 s53, 0x{C_SCALE:08x}")
        g("s_mov_b32 s51, 0xffff0000")
        g(f"v_add_u32 v{TMP0}, {7*SLOT}, v{KADDR}")
        g(f"s_mov_b32 s54, {2*SLOT}")
        g("s_mov_b32 s44, 0")
        g("s_lshl_b32 s40, s36, 2")
        for x in range(1, 4):
            g(f"s_xor_b32 s42, s17, {x}")
            g("s_add_u32 s42, s42, s40")
            g(f"s_mul_i32 s{55+x}, s42, 9216")
            if x > 1: g(f"s_add_u32 s{55+x}, s{55+x}, {(x-1)*3072}")
        g("s_add_u32 s42, s40, s17")
        g("s_lshl_b32 s59, s42, 9")
        g(f"s_add_u32 s59, s59, {WS_ML}")
        g("s_mul_i32 s60, s42, 9216")
        g("s_lshl_b32 s61, s36, 7")
        g(f"s_add_u32 s61, s61, {WS_FLAG}")
        g("s_lshl_b32 s62, s16, 2")
        g("s_mov_b32 s26, 12288")
        g("s_mov_b32 s30, 0x10000000")
        g("s_mov_b32 s34, 256")
        g("s_mov_b32 s35, 0x20000")
        g("s_mov_b32 s48, 0x3f80")
        g("s_mov_b32 s49, 0x3f800000")
    if opt.setup == "early": setup()
    g.ts(2)
    g("s_waitcnt lgkmcnt(0)")
    g("s_add_u32 s20, s4, s37")
    g("s_addc_u32 s21, s5, 0")
    for i in range(12):
        so = ["0", "s38", "s39"][i // 4]
        g(f"buffer_load_dwordx4 v[{4*i}:{4*i+3}], v{TMP3}, s[20:23], {so} offen offset:{(i%4)*1024} {qpol}")
    g("s_barrier")
    g.ts(1)
    if opt.tsout:
        g("s_add_u32 s24, s14, s37\ns_addc_u32 s25, s15, 0\ns_add_u32 s24, s24, 0x2800000\ns_addc_u32 s25, s25, 0")
    else:
        g("s_add_u32 s24, s10, s37")
        g("s_addc_u32 s25, s11, 0")
    if opt.setup != "early": setup()
    g("s_mov_b32 s28, s14")
    g("s_mov_b32 s29, s15")
    g("s_mov_b32 s32, s12")
    g("s_mov_b32 s33, s13")
    QX = 0
    if opt.hs == "loop":
        g(f"buffer_load_dword v{TMP1}, v111, s[28:31], s47 offen {opt.stalepol}")
        QX = 1
    def qscale_ops(b):
        out = []
        for i in range(4):
            li = b * 4 + i
            grp = [f"s_waitcnt vmcnt({11-li+QX})"]
            for r in range(4): grp += [f"v_lshlrev_b32 v{112+2*r}, 16, v{4*li+r}", f"v_and_b32 v{113+2*r}, s51, v{4*li+r}"]
            for r in range(4): grp.append(f"v_pk_mul_f32 v[{112+2*r}:{113+2*r}], v[{112+2*r}:{113+2*r}], s[52:53]")
            for r in range(4): grp.append(f"v_cvt_pk_bf16_f32 v{4*li+r}, v{112+2*r}, v{113+2*r}")
            grp.append(f"ds_write_b128 v105, v[{4*li}:{4*li+3}] offset:{i*4*QPITCH}")
            out.append(grp)
        out.append([f"ds_read_b128 {Qa(b,s)}, v106 offset:{64*s}" for s in range(4)])
        return out
    def pp_mfma(b, s):
        c = "0" if s == 0 else Cq(b)
        return f"v_mfma_f32_16x16x32_bf16 {Cq(b)}, {Va(s)}, {Qa(b,s)}, {c}"
    for grp in qscale_ops(0): g(grp)
    g.ts(3)
    for grp in qscale_ops(1): g(grp)
    for grp in qscale_ops(2): g(grp)
    zero = [f"v_mov_b32 v{i}, 0" for i in range(48)]
    g(zero[:32])
    g.ts(4)
    g("s_barrier")
    g.ts(5)
    for s in range(4):
        g(f"ds_read_b128 {Va(s)}, v107 offset:{64*s}")
    k0r = [f"ds_read_b128 {Ka(kb,s)}, v{TMP0} offset:{kb*512 + s*64}" for kb in range(2) for s in range(4)]
    g(k0r[:4])
    g(zero[32:40])
    g("s_waitcnt lgkmcnt(4)")
    if opt.pts: g.ts(9)
    pm = [pp_mfma(b, s) for b in range(3) for s in range(4)]
    qk0 = [m.replace(Cq(0), "0") for m in slot_mfmas(5)[:8]]
    class Lst(list):
        def __call__(self, x): self.append(x)
    red = Lst()
    for b in range(3):
        c = C0 + 4 * b
        red += [f"v_max3_f32 v{c}, v{c}, v{c+1}, v{c+2}", f"v_max_f32 v{c}, v{c}, v{c+3}"]
    xlane3(red, [C0, C0 + 4, C0 + 8], [C0 + 1, C0 + 5, C0 + 9], "v_max_f32")
    for i in range(12):
        g(pm[i])
        if i < 4: g(k0r[4 + i])
        elif i < 8: g(zero[40 + 2 * (i - 4):42 + 2 * (i - 4)])
        elif i >= 10: g(red[2 * (i - 10):2 * (i - 10) + 2])
    if opt.pts: g.ts(10)
    g("s_waitcnt lgkmcnt(0)")
    rest = red[4:]
    for i in range(8):
        g(qk0[i])
        if i == 3: g("s_nop 2")
        if i >= 3: g(rest[(i - 3) * len(rest) // 5:(i - 2) * len(rest) // 5])
    if opt.pts: g.ts(11)
    g("s_barrier")
    if opt.pts: g.ts(12)
    for r in range(8): g(vread(r, 0))
    for i in range(8): g(f"v_sub_f32 v{S(0,i)}, v{S(0,i)}, v{C0}")
    smA = softmax_ops(6, "add")
    neg = []
    for b in (1, 2, 0):
        c = C0 + 4 * b
        for i in (1, 2, 3, 0):
            neg.append(f"v_sub_f32 v{c+i}, 0, v{c}")
    side = [f"v_mov_b32 v108, v{C0}", f"v_mov_b32 v109, v{C0+4}", f"v_mov_b32 v110, v{C0+8}",
            f"buffer_store_dwordx4 v[108:111], v{TMP2}, s[28:31], s59 offen offset:256 sc1"]
    for i in range(8):
        g(smA[8 + i])
        g(neg[i * 12 // 8:(i + 1) * 12 // 8])
    g(side)
    g.ts(6)
    g("s_branch L_k0")
    slots = loop_body("add", rotated=True)
    g("L_loop:")
    g(slots[4]); g(slots[-1])
    g("L_k0:")
    for k in range(4):
        if k == 3 and opt.hs == "loop":
            i = slots[3].index("s_cmp_lt_u32 s44, 8")
            g(slots[3][:i - 1]); g("s_cmp_eq_u32 s44, s63"); g(slots[3][i - 1]); g("s_cbranch_scc1 L_hs2"); g("L_hs2_ret:"); g(slots[3][i:])
        else:
            g(slots[k])
    g("s_cbranch_scc1 L_loop")
    g.ts(7)
    g(f"buffer_load_dword v{KADDR}, off, s[32:35], s62 sc1")
    last, first = {}, {}
    gaps = [4, 6, 7]
    for x in range(1, 4):
        ops = pack_ops(x, 0)
        gp = {1: (3, 4), 2: (6, 6), 3: (7, 7)}[x]
        last.setdefault(gp[0], []).extend(ops[:2]); last.setdefault(gp[1], []).extend(ops[2:])
        first.setdefault(gp[1] + 1, []).append(pay_store(x, 0, opt))
    out = []
    emit_slot(out, 46, "add", first=first, last=last)
    g(out)
    last, first = {}, {}
    for x in range(1, 4):
        last.setdefault(2 * x - 1, []).extend(pack_ops(x, 1) + [pay_store(x, 1, opt)])
    lred = Lst()
    for b in range(3): lred(f"v_add_f32 v{96+b}, v{L0+2*b}, v{L0+2*b+1}")
    xlane3(lred, [96, 97, 98], [100, 101, 102], "v_add_f32")
    lred("v_mov_b32 v99, 0")
    lred(f"buffer_store_dwordx4 v[96:99], v{TMP2}, s[28:31], s59 offen {opt.stpol}")
    lred(f"v_add_f32 v{TMP1}, v96, v97")
    lred("s_mov_b32 s50, " + ("0x5f800000" if not opt.force_fb else "0x00000000"))
    lred(f"v_add_f32 v{TMP1}, v{TMP1}, v98")
    lred(f"v_cmp_nlt_f32 vcc, v{TMP1}, s50")
    for i in range(5):
        last.setdefault(8 + i, []).extend(lred[i * len(lred) // 5:(i + 1) * len(lred) // 5])
    last.setdefault(13, []).extend(pack_ops(1, 2) + [pay_store(1, 2, opt)])
    last.setdefault(15, []).extend(pack_ops(2, 2) + [pay_store(2, 2, opt)] + pack_ops(3, 2) + [pay_store(3, 2, opt)])
    out = []
    emit_slot(out, 47, "add", qk=False, partA=False, last=last, pv_order=[2, 3, 4, 5, 6, 7, 0, 1])
    g(out)
    g.ts(8)
    g("s_cbranch_vccz L_sent")
    g("s_waitcnt vmcnt(0)")
    g("s_branch L_slow")
    g("L_sent:")
    g("s_mov_b32 s47, 0x100000")
    g(f"s_waitcnt vmcnt({4 if opt.exp_x1 else 10})")
    g("L_hs:")
    g(f"v_readfirstlane_b32 s44, v{KADDR}")
    g("s_and_b32 s45, s44, 0x80808080")
    g("s_cmp_eq_u32 s45, 0x80808080")
    g("s_cbranch_scc0 L_hs_retry")
    g("L_hs_ok:")
    g("s_lshr_b32 s45, s44, 8")
    g("s_xor_b32 s45, s45, s44")
    g("s_and_b32 s45, s45, 0x00707070")
    if opt.force_slow:
        g("s_mov_b32 s45, 1")
    g(f"v_bfe_u32 v100, v{TMP3}, 4, 2")
    g("v_lshlrev_b32 v101, 3, v100")
    g("v_add_u32 v101, s19, v101")
    g("v_lshrrev_b32 v101, v101, s44")
    g("v_and_b32 v101, 1, v101")
    g("v_lshlrev_b32 v100, 2, v100")
    g("s_lshl_b32 s46, s17, 3")
    g("s_add_u32 s46, s46, s19")
    g("s_lshr_b32 s46, s44, s46")
    g("s_and_b32 s46, s46, 1")
    g("v_mov_b32 v102, s46")
    g("s_lshl_b32 s46, s17, 2")
    g("s_add_u32 s46, s46, s61")
    for x in range(1, 4):
        g(f"s_xor_b32 s{55+x}, s59, {x<<9}")
    g("s_mov_b32 s47, 0x100000")
    g("s_cmp_lg_u32 s45, 0")
    g.ts(9)
    g("s_waitcnt vmcnt(0)")
    g.ts(10)
    g("s_cbranch_scc1 L_xcd_flag")
    g(f"buffer_store_dword v102, off, s[28:31], s46 {opt.flagpol}")
    g("L_poll:")
    g(f"buffer_load_dword v103, v100, s[28:31], s61 offen {opt.pollpol}")
    g("s_waitcnt vmcnt(0)")
    g("v_and_b32 v103, 1, v103")
    g("v_cmp_ne_u32 vcc, v103, v101")
    g("s_cbranch_vccz L_poll_ok")
    g("s_sub_u32 s47, s47, 1")
    g("s_cbranch_scc0 L_poll")
    g("L_poll_ok:")
    g.ts(11)
    lp = opt.ldpol
    LR = lambda x: 100 + 4 * x
    PR = lambda x, b: 24 + ((x - 1) * 3 + b) * 4
    for x in range(1, 4):
        g(f"buffer_load_dwordx4 v[{LR(x)}:{LR(x)+3}], v{TMP2}, s[28:31], s{55+x} offen {lp}")
    for x in range(1, 4):
        for b in range(3):
            if opt.exp_x1 and x < 3: continue
            g(f"buffer_load_dwordx4 v[{PR(x,b)}:{PR(x,b)+3}], v{TMP3}, s[28:31], s60 offen offset:{b*1024} {lp}")
        if x < 3 and not opt.exp_x1: g("s_add_u32 s60, s60, 3072")
    g(f"v_bfe_u32 v132, v{TMP3}, 4, 4")
    g("v_lshlrev_b32 v132, 8, v132")
    g(f"v_lshrrev_b32 v133, 8, v{TMP3}")
    g("v_lshlrev_b32 v133, 3, v133")
    g("s_lshl_b32 s42, s17, 6")
    g("v_add3_u32 v132, v132, v133, s42")
    g(f"s_waitcnt vmcnt({3 if opt.exp_x1 else 9})")
    g.ts(12)
    g(f"v_or3_b32 v99, v99, v{LR(1)+3}, v{LR(2)+3}")
    g(f"v_or_b32 v99, v99, v{LR(3)+3}")
    g("v_cmp_ne_u32 vcc, 0, v99")
    g("s_cbranch_vccnz L_general")
    for x in range(1, 4):
        for b in range(3):
            g(f"v_add_f32 v{96+b}, v{96+b}, v{LR(x)+b}")
    for b in range(3): g(f"v_rcp_f32 v{96+b}, v{96+b}")
    def acc_reg(b, i): return O(i // 4, b, i % 4)
    for x in range(3 if opt.exp_x1 else 1, 4):
        for b in range(3):
            g(f"s_waitcnt vmcnt({9 - ((x-1)*3 + b) - 1})")
            if x == 3 and b == 2: g.ts(13)
            for r in range(4):
                src = PR(x, b) + r
                if opt.dot:
                    g(f"v_dot2c_f32_bf16 v{acc_reg(b,2*r)}, s48, v{src}")
                    g(f"v_dot2c_f32_bf16 v{acc_reg(b,2*r+1)}, s49, v{src}")
                else:
                    t = 116 + 2 * (r & 1)
                    g(f"v_lshlrev_b32 v{t}, 16, v{src}")
                    g(f"v_and_b32 v{t+1}, s51, v{src}")
                    g(f"v_pk_add_f32 v[{acc_reg(b,2*r)}:{acc_reg(b,2*r+1)}], v[{acc_reg(b,2*r)}:{acc_reg(b,2*r+1)}], v[{t}:{t+1}]")
            if x == 3:
                if opt.dot: g("s_nop 2")
                out_store(g, b, 96 + b, opt)
    g("L_done:")
    g.ts(14)
    if opt.ts:
        g("s_waitcnt vmcnt(0)")
        g.ts(15)
    g.ts_store(0)
    g("L_end:")
    g("s_endpgm")
    if opt.hs == "loop":
        g("L_hs2:")
        g("s_waitcnt vmcnt(0)")
        g(f"v_and_b32 v{TMP1}, 1, v{TMP1}")
        g(f"v_cmp_eq_u32 vcc, 0, v{TMP1}")
        g("s_getreg_b32 s46, hwreg(HW_REG_XCC_ID)")
        g("s_and_b32 s46, s46, 7")
        g("s_lshl_b32 s46, s46, 4")
        g("s_and_b32 s47, vcc_lo, 15")
        g("s_or_b32 s46, s46, s47")
        g("s_or_b32 s46, s46, 0x80")
        g("s_lshl_b32 s47, s17, 3")
        g("s_lshl_b32 s46, s46, s47")
        g(f"v_mov_b32 v{TMP1}, s46")
        g("s_mov_b64 exec, 1")
        g(f"buffer_atomic_or v{TMP1}, off, s[32:35], s62 sc1")
        g("s_mov_b64 exec, -1")
        g("s_branch L_hs2_ret")
    g("L_hs_retry:")
    g("s_sleep 2")
    g(f"buffer_load_dword v{KADDR}, off, s[32:35], s62 sc1")
    g("s_sub_u32 s47, s47, 1")
    g("s_waitcnt vmcnt(0)")
    g("s_cbranch_scc0 L_hs")
    g("s_branch L_hs_ok")
    g("L_xcd_flag:")
    g("buffer_store_dword v102, off, s[28:31], s46 sc1")
    g("L_poll2:")
    g("buffer_load_dword v103, v100, s[28:31], s61 offen sc1")
    g("s_waitcnt vmcnt(0)")
    g("v_and_b32 v103, 1, v103")
    g("v_cmp_ne_u32 vcc, v103, v101")
    g("s_cbranch_vccz L_poll_ok")
    g("s_sub_u32 s47, s47, 1")
    g("s_cbranch_scc0 L_poll2")
    g("s_branch L_poll_ok")
    g("L_general:")
    CR = lambda x: 60 + 4 * x
    for x in range(1, 4):
        g(f"buffer_load_dwordx4 v[{CR(x)}:{CR(x)+3}], v{TMP2}, s[28:31], s{55+x} offen offset:256 sc1")
    for b in range(3): g(f"v_mov_b32 v{CR(0)+b}, v{C0+4*b}")
    g("s_waitcnt vmcnt(0)")
    for b in range(3):
        g(f"v_min3_f32 v100, v{CR(0)+b}, v{CR(1)+b}, v{CR(2)+b}")
        g(f"v_min_f32 v100, v100, v{CR(3)+b}")
        for x in range(4): g(f"v_sub_f32 v{CR(x)+b}, v100, v{CR(x)+b}")
        for x in range(4): g(f"v_exp_f32 v{CR(x)+b}, v{CR(x)+b}")
        g("s_nop 0")
        g(f"v_mul_f32 v{96+b}, v{96+b}, v{CR(0)+b}")
        for x in range(1, 4): g(f"v_fmac_f32 v{96+b}, v{CR(x)+b}, v{LR(x)+b}")
    for b in range(3): g(f"v_rcp_f32 v{96+b}, v{96+b}")
    for b in range(3):
        for i in range(8): g(f"v_mul_f32 v{acc_reg(b,i)}, v{acc_reg(b,i)}, v{CR(0)+b}")
        for x in range(1, 4):
            for r in range(4):
                src = PR(x, b) + r
                g(f"v_lshlrev_b32 v116, 16, v{src}")
                g(f"v_and_b32 v117, s51, v{src}")
                g(f"v_fmac_f32 v{acc_reg(b,2*r)}, v116, v{CR(x)+b}")
                g(f"v_fmac_f32 v{acc_reg(b,2*r+1)}, v117, v{CR(x)+b}")
        out_store(g, b, 96 + b, opt)
    g("s_branch L_done")
    slow_path(g, opt)
    g.o.append(f""".section .rodata,"a"
.p2align 6
.amdhsa_kernel {KN}
  .amdhsa_next_free_vgpr {NV+NA}
  .amdhsa_next_free_sgpr 102
  .amdhsa_accum_offset {NV}
  .amdhsa_group_segment_fixed_size 0
  .amdhsa_kernarg_size 48
  .amdhsa_user_sgpr_count 2
  .amdhsa_user_sgpr_kernarg_segment_ptr 1
  .amdhsa_system_sgpr_workgroup_id_x 1
.end_amdhsa_kernel""")
    return "\n".join(g.o) + "\n"


def out_store(g, b, rl, opt):
    for h in range(2):
        o = O(h, b)
        for r in range(4): g(f"v_mul_f32 v{o+r}, v{o+r}, v{rl}")
        g(f"v_cvt_pk_bf16_f32 v{o}, v{o}, v{o+1}")
        g(f"v_cvt_pk_bf16_f32 v{o+1}, v{o+2}, v{o+3}")
        so = ["0", "s38", "s39"][b]
        g(f"buffer_store_dwordx2 v[{o}:{o+1}], v132, s[24:27], {so} offen offset:{32*h} {opt.outpol}")


if __name__ == "__main__":
    ap = argparse.ArgumentParser()
    ap.add_argument("-o", default="standalone__gqa_softmax__near_ridge.s")
    ap.add_argument("--kvpol", default="nt")
    ap.add_argument("--qpol", default="nt")
    ap.add_argument("--stpol", default="sc1")
    ap.add_argument("--ldpol", default="sc1")
    ap.add_argument("--outpol", default="")
    ap.add_argument("--ts", type=int, default=0)
    ap.add_argument("--probe", type=int, default=0)
    ap.add_argument("--vpol", default=None)
    ap.add_argument("--hs", default="loop")
    ap.add_argument("--setup", default="early")
    ap.add_argument("--tsout", type=int, default=0)
    ap.add_argument("--pts", type=int, default=0)
    ap.add_argument("--exp_x1", type=int, default=0)
    ap.add_argument("--exp_2x", type=int, default=0)
    ap.add_argument("--prewarm", default=None)
    ap.add_argument("--linear", type=int, default=0)
    ap.add_argument("--trace", type=int, default=0)
    ap.add_argument("--pollpol", default="nt")
    ap.add_argument("--stalepol", default="")
    ap.add_argument("--dot", type=int, default=1)
    ap.add_argument("--flagpol", default="")
    ap.add_argument("--depth", type=int, default=3)
    ap.add_argument("--init_pairs", type=int, default=2)
    ap.add_argument("--force_slow", type=int, default=0)
    ap.add_argument("--force_fb", type=int, default=0)
    opt = ap.parse_args()
    open(opt.o, "w").write(gen(opt))
```

```python
PIECE = 1056
TILE = 8 * PIECE
SLOT = 2 * TILE

def O(db, b, r=0): return (db * 3 + b) * 4 + r
def Oq(db, b): x = O(db, b); return f"v[{x}:{x+3}]"
S0 = 96
def S(par, i): return S0 + par * 8 + i
def Sq(par, kb): x = S(par, kb * 4); return f"v[{x}:{x+3}]"
P0 = 112
def P(par, i): return P0 + par * 4 + i
def Pq(par): x = P(par, 0); return f"v[{x}:{x+3}]"
C0 = 120
def Cq(b): x = C0 + 4 * b; return f"v[{x}:{x+3}]"
L0 = 132
KADDR, VADDR = 138, 139
TMP0, TMP1, TMP2, TMP3 = 140, 141, 142, 143
NV = 144
def Qa(b, s): x = (b * 4 + s) * 4; return f"a[{x}:{x+3}]"
def Ka(kb, s): x = 48 + (kb * 4 + s) * 4; return f"a[{x}:{x+3}]"
def Va(db): x = 80 + db * 4; return f"a[{x}:{x+3}]"
def Vh(db, h): x = 80 + db * 4 + 2 * h; return f"a[{x}:{x+1}]"
NA = 112

def softmax_ops(n, mode, b=None):
    par, b = n & 1, (n % 3 if b is None else b)
    s = lambda i: f"v{S(par, i)}"
    X = lambda i: f"v_exp_f32 {s(i)}, {s(i)}"
    CV = lambda i: f"v_cvt_pk_bf16_f32 v{P(par,i)}, {s(2*i)}, {s(2*i+1)}"
    l0, l1 = L0 + 2 * b, L0 + 2 * b + 1
    AD = lambda i: f"v_add_f32 v{l0 + (i & 1)}, v{l0 + (i & 1)}, {s(i)}"
    PK = lambda i: f"v_pk_add_f32 v[{l0}:{l1}], v[{l0}:{l1}], v[{S(par,2*i)}:{S(par,2*i+1)}]"
    DT = lambda i: f"v_dot2c_f32_bf16 v{l0 + (i & 1)}, v{P(par,i)}, v{TMP3}"
    if mode == "add":
        return {8: [X(0)], 9: [X(1)], 10: [X(2)], 11: [CV(0), AD(0)], 12: [X(3)], 13: [X(4)], 14: [CV(1), AD(1)], 15: [AD(2), AD(3)],
                16: [X(5)], 17: [X(6)], 18: [CV(2), AD(4)], 19: [X(7)], 20: [AD(5), AD(6)], 21: [CV(3), AD(7)], 22: [], 23: []}
    if mode == "pk":
        return {8: [X(0)], 9: [X(1)], 10: [X(2)], 11: [CV(0), PK(0)], 12: [X(3)], 13: [X(4)], 14: [CV(1), PK(1)], 15: [],
                16: [X(5)], 17: [X(6)], 18: [CV(2), PK(2)], 19: [X(7)], 20: [], 21: [CV(3), PK(3)], 22: [], 23: []}
    if mode == "dot":
        return {8: [X(0)], 9: [X(1)], 10: [X(2)], 11: [CV(0)], 12: [X(3)], 13: [X(4)], 14: [CV(1), DT(0)], 15: [DT(1)],
                16: [X(5)], 17: [X(6)], 18: [CV(2)], 19: [X(7)], 20: [DT(2)], 21: [CV(3)], 22: [DT(3)], 23: []}
    if mode.startswith("m4"):
        sel = [136, 140, 142][b]
        M4 = lambda h: f"v_mfma_f32_4x4x4_16b_bf16 v[132:135], v[{sel}:{sel+1}], v[{P(par,2*h)}:{P(par,2*h+1)}], v[132:135]"
        if mode == "m4a":
            return {8: [X(0)], 9: [X(1)], 10: [X(2)], 11: [CV(0)], 12: [X(3)], 13: [X(4)], 14: [CV(1)], 15: [],
                    16: [X(5)], 17: [X(6)], 18: [CV(2)], 19: [X(7)], 20: [M4(0)], 21: [CV(3)], 22: [], 23: [M4(1)]}
        if mode == "m4b":
            return {8: [X(0)], 9: [X(1)], 10: [X(2)], 11: [X(3)], 12: [CV(0), CV(1)], 13: [X(4)], 14: [X(5)], 15: [M4(0)],
                    16: [X(6)], 17: [X(7)], 18: [], 19: [CV(2), CV(3)], 20: [], 21: [], 22: [M4(1)], 23: []}
    if mode == "none":
        return {8: [X(0)], 9: [X(1)], 10: [X(2)], 11: [CV(0)], 12: [X(3)], 13: [X(4)], 14: [CV(1)], 15: [],
                16: [X(5)], 17: [X(6)], 18: [CV(2)], 19: [X(7)], 20: [], 21: [CV(3)], 22: [], 23: []}
    raise ValueError(mode)

def slot_mfmas(n, pv_order=None):
    bq, pq, bp, pp = (n + 1) % 3, (n + 1) & 1, n % 3, n & 1
    mf = []
    for kb in range(2):
        for s in range(4):
            c = Cq(bq) if s == 0 else Sq(pq, kb)
            mf.append(f"v_mfma_f32_16x16x32_bf16 {Sq(pq,kb)}, {Ka(kb,s)}, {Qa(bq,s)}, {c}")
    for db in (pv_order or range(8)):
        mf.append(f"v_mfma_f32_16x16x32_bf16 {Oq(db,bp)}, {Va(db)}, {Pq(pp)}, {Oq(db,bp)}")
    return mf

def emit_slot(out, n, mode, qk=True, partA=True, first=None, last=None, pre=None, pv_order=None):
    first, last, pre = first or {}, last or {}, pre or {}
    smB, smA = softmax_ops(n, mode), softmax_ops(n + 1, mode)
    mf = slot_mfmas(n, pv_order)
    for pos in range(16):
        out += pre.get(pos, [])
        if pos >= 8 or qk:
            out.append(mf[pos])
        out += first.get(pos, [])
        if pos < 8:
            out += smB[16 + pos]
        elif partA:
            out += smA[pos]
        out += last.get(pos, [])

def kread(i, off):
    kb, s = i // 4, i % 4
    return f"ds_read_b128 {Ka(kb,s)}, v{KADDR} offset:{off + kb*512 + s*64}"
def vread(r, off):
    db, h = r >> 1, r & 1
    return f"ds_read_b64_tr_b16 {Vh(db,h)}, v{VADDR} offset:{off + h*512 + db*32}"

def loop_body(mode="add", kg=None, vg=None, barrier=True, rotated=False, flags=False, niter=8):
    kg = kg or [6, 6, 7, 7, 9, 10, 12, 15]
    vg = vg or [8 + r for r in range(16)]
    first = {k: {} for k in range(-1, 6)}
    pre = {k: {} for k in range(-1, 6)}
    last = {k: {} for k in range(-1, 6)}
    for tt, k2 in ((0, -1), (1, 2)):
        for r in range(16):
            kk, gp = k2 + vg[r] // 16, vg[r] % 16
            assert vg[r] >= 8 + (r >> 1)
            first[kk].setdefault(gp, []).append(vread(r, tt * SLOT))
    for tt, k1 in ((0, 1), (1, 4)):
        for i in range(8):
            assert i <= kg[i] < 16
            first[k1].setdefault(kg[i], []).append(kread(i, tt * SLOT))
    for k2 in (-1, 2):
        pre[k2].setdefault(0, []).append(f"s_waitcnt lgkmcnt({5 if flags else 4})")
        pre[k2].setdefault(4, []).append("s_waitcnt lgkmcnt(0)")
        n_after = lambda pos: sum(1 for r in range(16) if vg[r] < pos)
        for db0 in (0, 4):
            pos = 16 + 8 + db0
            issued = n_after(pos)
            need = 2 * (db0 + 4)
            assert issued >= need, (issued, need)
            pre[k2 + 1].setdefault(8 + db0, []).append(f"s_waitcnt lgkmcnt({issued - need})")
        if flags:
            kp = 4 if k2 == -1 else k2 - 1
            first[kp].setdefault(15, []).append(f"ds_read_b32 v{TMP1}, v{TMP0}")
            op = "v_cmp_gt_u32" if k2 == -1 else "v_cmp_ge_u32"
            last[k2].setdefault(5, []).append(f"{op} vcc, s44, v{TMP1}")
            first[k2].setdefault(7, []).extend([f"s_cbranch_vccnz L_wait{k2+1}", f"L_wret{k2+1}:"])
        elif barrier:
            pre[k2].setdefault(8, []).append("s_barrier")
    last[-1].setdefault(6, []).append(f"v_add_u32 v{VADDR}, s45, v{VADDR}")
    last[-1].setdefault(7, []).append(f"v_add_u32 v{KADDR}, s45, v{KADDR}")
    kc, g0 = (3, 8) if rotated else (4, 0)
    if flags:
        first[kc].setdefault(g0 + 0, []).append("s_add_u32 s44, s44, 2")
        first[kc].setdefault(g0 + 1, []).append("s_and_b32 s46, s44, 7")
        first[kc].setdefault(g0 + 2, []).append("s_cmp_eq_u32 s46, 2")
        first[kc].setdefault(g0 + 3, []).append(f"s_cselect_b32 s45, {-(6*SLOT) & 0xffffffff}, s54")
        first[kc].setdefault(g0 + 4, []).append("s_cmp_lt_u32 s44, 18")
        last[0].setdefault(12, []).append(f"v_mov_b32 v{TMP1}, s44")
        first[0].setdefault(14, []).append(f"ds_write_b32 v{TMP0}, v{TMP1} offset:16")
    else:
        first[kc].setdefault(g0 + 0, []).append("s_add_u32 s44, s44, 1")
        first[kc].setdefault(g0 + 1, []).append("s_and_b32 s46, s44, 3")
        first[kc].setdefault(g0 + 2, []).append(f"s_cselect_b32 s45, s54, {-(6*SLOT) & 0xffffffff}")
        first[kc].setdefault(g0 + 4, []).append(f"s_cmp_lt_u32 s44, {niter}")
    slots = {}
    for k in range(-1, 5):
        out = []
        emit_slot(out, k + 6, mode, first=first[k], last=last[k], pre=pre[k])
        slots[k] = out
    if rotated:
        return slots
    return sum((slots[k] for k in range(-1, 5)), [])


def tail_slots(n0, units, kslot0, vslot0, synced, extra_first=None, extra_last=None, pv_last=None, mode="add"):
    N = len(units)
    extra_first, extra_last = extra_first or {}, extra_last or {}
    plan = {}
    for n in range(n0, N):
        kre = n + 2 < N and units[n + 2][0] != units[n + 1][0]
        vre = n + 1 < N and units[n + 1][0] != units[n][0]
        vprev = n - 1 >= n0 and units[n][0] != units[n - 1][0]
        knext = n + 3 < N and units[n + 3][0] != units[n + 2][0]
        if kre:
            t = units[n + 2][0]
            off = (((t - 1) & 7) - kslot0) * SLOT
            assert 0 <= off <= 65535 - 704
            kg = list(range(8)) if vre else [6, 6, 7, 7, 9, 10, 12, 15]
            for i in range(8):
                plan.setdefault((n, kg[i]), []).append((kread(i, off), ("K", i), t - 1))
        if vre:
            t = units[n + 1][0]
            off = ((t & 7) - vslot0) * SLOT
            assert 0 <= off <= 65535 - 736
            vnext = n + 2 < N and units[n + 2][0] != units[n + 1][0]
            dense = knext and vnext
            for r in range(16):
                gp = 8 + (r >> 1) if dense else 8 + r
                plan.setdefault((n + gp // 16, gp % 16), []).append((vread(r, off), ("V", r >> 1), t))
    out = []
    queue = []
    for n in range(n0, N):
        t, b = units[n]
        par = n & 1
        mf, need = [], []
        if n + 1 < N:
            tq, bq = units[n + 1]
            pq = (n + 1) & 1
            for kb in range(2):
                for s in range(4):
                    c = Cq(bq) if s == 0 else Sq(pq, kb)
                    mf.append(f"v_mfma_f32_16x16x32_bf16 {Sq(pq,kb)}, {Ka(kb,s)}, {Qa(bq,s)}, {c}")
                    need.append(("K", kb * 4 + s))
        else:
            mf += [None] * 8; need += [None] * 8
        order = pv_last if (n == N - 1 and pv_last) else range(8)
        for db in order:
            mf.append(f"v_mfma_f32_16x16x32_bf16 {Oq(db,b)}, {Va(db)}, {Pq(par)}, {Oq(db,b)}")
            need.append(("V", db))
        smB = softmax_ops(n, mode, b)
        smA = softmax_ops(n + 1, mode, units[n + 1][1]) if n + 1 < N else None
        for pos in range(16):
            if pos % 4 == 0:
                grp = [x for x in need[pos:pos + 4] if x]
                idx = [i for i, k in enumerate(queue) if k in grp]
                if idx:
                    cnt = len(queue) - 1 - max(idx)
                    out.append(f"s_waitcnt lgkmcnt({min(cnt, 15)})")
                    queue = queue[max(idx) + 1:] if cnt <= 15 else queue[-15:]
            items = plan.get((n, pos), [])
            while items and max(x[2] for x in items) > synced:
                out.append("s_barrier"); synced += 1
            if mf[pos]: out.append(mf[pos])
            for ins, key, _ in items:
                out.append(ins); queue.append(key)
            out += extra_first.get((n, pos), [])
            if pos < 8: out += smB[16 + pos]
            elif smA: out += smA[pos]
            out += extra_last.get((n, pos), [])
    assert synced == 15, synced
    return out
```

```python
import sys, argparse, struct, math
from body import *

KN = "standalone__gqa_softmax__near_ridge_kernel"
NSLOT = 8
RING = NSLOT * SLOT
QBASE = RING
QPITCH = 288
QWAVE = 16 * QPITCH
RBASE = QBASE + 4 * QWAVE
RPITCH = 1088
LDS_BYTES = RBASE + 4 * RPITCH

WS_ML = 16 << 20
WS_FLAG = 24 << 20
WS_TS = 32 << 20
C_SCALE = struct.unpack("<I", struct.pack("<f", math.log2(math.e) / math.sqrt(128.0)))[0]
NTS = 16


class G:
    def __init__(self, opt):
        self.o = []
        self.opt = opt
    def __call__(self, s):
        if isinstance(s, list):
            for x in s: self(x)
            return
        for l in s.split("\n"):
            l = l.strip()
            if l:
                self.o.append(("" if l.endswith(":") else "    ") + l)
    def ts(self, idx):
        if self.opt.pts and idx >= 9:
            self.seen = getattr(self, "seen", set())
            if idx in self.seen: return
            self.seen.add(idx)
        if self.opt.ts:
            self(f"s_memrealtime s[{64+2*idx}:{65+2*idx}]" if self.opt.ts == 2 else f"s_memtime s[{64+2*idx}:{65+2*idx}]")
    def ts_store(self, widx):
        if not self.opt.ts: return
        self("s_waitcnt vmcnt(0) lgkmcnt(0)")
        if self.opt.probe:
            if widx == 0:
                i = self.opt.probe
                self(f"s_sub_u32 s40, s{64+2*i}, s64\ns_lshl_b32 s40, s40, 3")
                self("L_probe:\ns_sleep 8\ns_memrealtime s[42:43]\ns_waitcnt lgkmcnt(0)\ns_sub_u32 s41, s42, s64\ns_cmp_lt_u32 s41, s40\ns_cbranch_scc1 L_probe")
            return
        if self.opt.tsout:
            self("s_mov_b32 s28, s10\ns_mov_b32 s29, s11\ns_mov_b32 s30, 0x300000\ns_mov_b32 s31, 0x20000")
            self("s_lshl_b32 s42, s2, 3\ns_add_u32 s42, s42, s18\ns_lshl_b32 s42, s42, 6")
            for i in range(1, NTS):
                self(f"s_sub_u32 s{64+2*i}, s{64+2*i}, s64")
            self("v_mov_b32 v1, 0")
            for i in range(NTS):
                self(f"v_writelane_b32 v1, s{64+2*i}, {i}")
            self("v_and_b32 v1, 0x3fff, v1")
            self("v_lshrrev_b32 v2, 6, v1\nv_and_b32 v3, 63, v1\nv_cvt_f32_u32 v2, v2\nv_cvt_f32_u32 v3, v3\nv_cvt_pk_bf16_f32 v2, v2, v3")
            self("v_mbcnt_lo_u32_b32 v4, -1, 0\nv_lshlrev_b32 v4, 2, v4")
            self("s_mov_b64 exec, 0xffff")
            self("buffer_store_dword v2, v4, s[28:31], s42 offen")
            return
        self("s_mov_b32 s28, s14\ns_mov_b32 s29, s15\ns_mov_b32 s30, 0x10000000\ns_mov_b32 s31, 0x20000")
        self("s_lshl_b32 s42, s2, 3")
        self("s_add_u32 s42, s42, s18")
        self("s_lshl_b32 s42, s42, 6")
        self(f"s_add_u32 s42, s42, {WS_TS}")
        for i in range(NTS):
            self(f"v_mov_b32 v1, s{64+2*i}")
            self(f"buffer_store_dword v1, off, s[28:31], s42 offset:{4*i}")
            self("s_nop 1")


def xlane(g, a, t, op):
    g(f"v_mov_b32 v{t}, v{a}")
    g("s_nop 1")
    g(f"v_permlane32_swap_b32 v{a}, v{t}")
    g("s_nop 1")
    g(f"{op} v{a}, v{a}, v{t}")
    g(f"v_mov_b32 v{t}, v{a}")
    g("s_nop 1")
    g(f"v_permlane16_swap_b32 v{a}, v{t}")
    g("s_nop 1")
    g(f"{op} v{a}, v{a}, v{t}")


def xlane3(g, regs, tmps, op):
    for sw in ("v_permlane32_swap_b32", "v_permlane16_swap_b32"):
        for a, t in zip(regs, tmps): g(f"v_mov_b32 v{t}, v{a}")
        g("s_nop 0")
        for a, t in zip(regs, tmps): g(f"{sw} v{a}, v{t}")
        g("s_nop 0")
        for a, t in zip(regs, tmps): g(f"{op} v{a}, v{a}, v{t}")


def slow_path(g, opt):
    g("L_slow:")
    g("s_lshl_b32 s38, s16, 19")
    g("s_lshl_b32 s39, s17, 17")
    g("s_add_u32 s38, s38, s39")
    g("s_add_u32 s20, s6, s38\ns_addc_u32 s21, s7, 0\ns_mov_b32 s22, 0x20000\ns_mov_b32 s23, 0x20000")
    g("s_add_u32 s96, s8, s38\ns_addc_u32 s97, s9, 0\ns_mov_b32 s98, 0x20000\ns_mov_b32 s99, 0x20000")
    g("s_movk_i32 s38, 0x1000\ns_movk_i32 s39, 0x2000")
    g(f"v_mbcnt_lo_u32_b32 v{TMP2}, -1, 0")
    g(f"v_mbcnt_hi_u32_b32 v{TMP2}, -1, v{TMP2}")
    addr_setup(g, TMP2, 96)
    g("s_cmp_eq_u32 s19, 3\ns_cselect_b32 s42, 8, s19")
    g(f"s_mul_i32 s42, s42, {SLOT}")
    g(f"v_add_u32 v{KADDR}, s42, v{KADDR}")
    g(f"v_add_u32 v{VADDR}, s42, v{VADDR}")
    g(f"v_lshlrev_b32 v{TMP2}, 4, v{TMP2}")
    g("s_lshl_b32 s43, s17, 6")
    g(f"v_xor_b32 v{TMP3}, s43, v{TMP2}")
    for i in range(96): g(f"v_mov_b32 v{i}, 0")
    for i in range(6): g(f"v_mov_b32 v{L0+i}, 0")
    for b in range(3): g(f"v_mov_b32 v{C0+4*b}, 0x7f000000")
    g("s_mov_b32 s44, 0")
    g("L_slow_loop:")
    g("s_mov_b32 s45, s44")
    g("s_mov_b32 s46, s42")
    g("L_slow_ld:")
    g("s_mov_b32 m0, s46")
    g(f"s_add_u32 s47, s46, {TILE}")
    g(f"buffer_load_dwordx4 v{TMP2}, s[20:23], s45 offen lds")
    g("s_mov_b32 m0, s47")
    g(f"s_add_u32 s46, s46, {PIECE}")
    g(f"buffer_load_dwordx4 v{TMP3}, s[96:99], s45 offen lds")
    g("s_add_u32 s45, s45, 1024")
    g("s_and_b32 s47, s45, 0x1fff")
    g("s_cbranch_scc1 L_slow_ld")
    g("s_waitcnt vmcnt(0)")
    for i in range(8): g(kread(i, 0))
    for r in range(16): g(vread(r, 0))
    g("s_waitcnt lgkmcnt(0)")
    for b in range(3):
        c = C0 + 4 * b
        s = lambda i: f"v{S(0, i)}"
        for kb in range(2):
            for st in range(4):
                cc = "0" if st == 0 else Sq(0, kb)
                g(f"v_mfma_f32_16x16x32_bf16 {Sq(0,kb)}, {Ka(kb,st)}, {Qa(b,st)}, {cc}")
        g("s_nop 7")
        g(f"v_max3_f32 v{TMP0}, {s(0)}, {s(1)}, {s(2)}")
        g(f"v_max3_f32 v{TMP0}, v{TMP0}, {s(3)}, {s(4)}")
        g(f"v_max3_f32 v{TMP0}, v{TMP0}, {s(5)}, {s(6)}")
        g(f"v_max3_f32 v{TMP0}, v{TMP0}, {s(7)}, -v{c}")
        xlane(g, TMP0, TMP1, "v_max_f32")
        g(f"v_add_f32 v{TMP1}, v{c}, v{TMP0}")
        g(f"v_exp_f32 v{TMP1}, -v{TMP1}")
        g(f"v_sub_f32 v{c}, 0, v{TMP0}")
        for i in range(8): g(f"v_sub_f32 {s(i)}, {s(i)}, v{TMP0}")
        for i in range(8): g(f"v_exp_f32 {s(i)}, {s(i)}")
        g(f"v_mul_f32 v{L0+2*b}, v{L0+2*b}, v{TMP1}")
        for db in range(8):
            for r in range(4): g(f"v_mul_f32 v{O(db,b,r)}, v{O(db,b,r)}, v{TMP1}")
        for i in range(4): g(f"v_cvt_pk_bf16_f32 v{P(0,i)}, {s(2*i)}, {s(2*i+1)}")
        for i in range(8): g(f"v_add_f32 v{L0+2*b}, v{L0+2*b}, {s(i)}")
        for db in range(8):
            g(f"v_mfma_f32_16x16x32_bf16 {Oq(db,b)}, {Va(db)}, {Pq(0)}, {Oq(db,b)}")
    g("s_add_u32 s44, s44, 0x2000")
    g("s_cmp_lt_u32 s44, 0x20000")
    g("s_cbranch_scc1 L_slow_loop")
    g("s_nop 7")
    xlane3(g, [L0, L0 + 2, L0 + 4], [TMP0, TMP1, TMP2], "v_add_f32")
    g(f"v_mbcnt_lo_u32_b32 v{TMP3}, -1, 0")
    g(f"v_mbcnt_hi_u32_b32 v{TMP3}, -1, v{TMP3}")
    g(f"v_lshlrev_b32 v{TMP3}, 4, v{TMP3}")
    g(f"v_and_b32 v{TMP2}, 0xf0, v{TMP3}")
    g(f"v_mov_b32 v{TMP0}, 0")
    g(f"v_mov_b32 v100, v{C0}\nv_mov_b32 v101, v{C0+4}\nv_mov_b32 v102, v{C0+8}\nv_mov_b32 v103, 0")
    g(f"buffer_store_dwordx4 v[100:103], v{TMP2}, s[28:31], s59 offen offset:256 sc1")
    g(f"v_mov_b32 v96, v{L0}\nv_mov_b32 v97, v{L0+2}\nv_mov_b32 v98, v{L0+4}\nv_mov_b32 v99, 1")
    g(f"buffer_store_dwordx4 v[96:99], v{TMP2}, s[28:31], s59 offen sc1")
    for b in range(3):
        for x in range(1, 4):
            g(pack_ops(x, b))
            g(pay_store(x, b, opt))
    g("s_branch L_sent")


def pack_ops(x, b):
    o, p = O(2 * x, b), O(2 * x + 1, b)
    return [f"v_cvt_pk_bf16_f32 v{o}, v{o}, v{o+1}", f"v_cvt_pk_bf16_f32 v{o+1}, v{o+2}, v{o+3}",
            f"v_cvt_pk_bf16_f32 v{o+2}, v{p}, v{p+1}", f"v_cvt_pk_bf16_f32 v{o+3}, v{p+2}, v{p+3}"]

def pay_store(x, b, opt):
    if opt.exp_x1 and x > 1: return "s_nop 0"
    return f"buffer_store_dwordx4 {Oq(2*x, b)}, v{TMP3}, s[28:31], s{55+x} offen offset:{b*1024} {opt.stpol}"


def addr_setup(g, lane, t):
    g(f"v_and_b32 v{t}, 7, v{lane}")
    g(f"v_mul_u32_u24 v{t}, {PIECE}, v{t}")
    g(f"v_bfe_u32 v{t+1}, v{lane}, 3, 1")
    g(f"v_lshlrev_b32 v{t+1}, 8, v{t+1}")
    g(f"v_and_b32 v{t+2}, 48, v{lane}")
    g(f"v_add3_u32 v{KADDR}, v{t}, v{t+1}, v{t+2}")
    g(f"v_bfe_u32 v{t}, v{lane}, 2, 3")
    g(f"v_mul_u32_u24 v{t}, {PIECE}, v{t}")
    g(f"v_lshrrev_b32 v{t+1}, 5, v{lane}")
    g(f"v_lshlrev_b32 v{t+1}, 8, v{t+1}")
    g(f"v_and_b32 v{t+3}, 3, v{lane}")
    g(f"v_lshlrev_b32 v{t+3}, 3, v{t+3}")
    g(f"v_add3_u32 v{VADDR}, v{t}, v{t+1}, v{t+3}")
    g(f"v_add_u32 v{VADDR}, {TILE}, v{VADDR}")


def gen(opt):
    g = G(opt)
    kvpol, qpol = opt.kvpol, opt.qpol
    vpol = opt.vpol if opt.vpol is not None else kvpol
    g.o.append(f"; @launch grid=(256,1,1) block=(512,1,1) lds={LDS_BYTES}")
    g.o.append('.amdgcn_target "amdgcn-amd-amdhsa--gfx950"')
    g.o.append(".text")
    g.o.append(f".globl {KN}")
    g.o.append(".p2align 8")
    g.o.append(f".type {KN},@function")
    g(f"{KN}:")
    g("s_load_dwordx8 s[4:11], s[0:1], 0")
    g("s_load_dwordx4 s[12:15], s[0:1], 32")
    g.ts(0)
    g("s_cmp_ge_u32 s2, 256")
    g("s_cbranch_scc1 L_end")
    g("v_lshrrev_b32 v1, 6, v0")
    g("s_and_b32 s16, s2, 7")
    g("s_lshr_b32 s17, s2, 3")
    g("v_readfirstlane_b32 s18, v1")
    g("s_lshl_b32 s16, s16, 3")
    g("s_lshr_b32 s19, s17, 2")
    g("s_add_u32 s16, s16, s19")
    g("s_and_b32 s17, s17, 3")
    if opt.linear:
        g("s_lshr_b32 s16, s2, 2\ns_and_b32 s17, s2, 3")
    g(f"v_and_b32 v{TMP2}, 63, v0")
    g(f"v_lshlrev_b32 v{TMP3}, 4, v{TMP2}")
    g("s_and_b32 s19, s18, 3")
    g("s_mov_b32 s23, 0x20000")
    g("s_mov_b32 s27, 0x20000")
    g("s_mov_b32 s31, 0x20000")
    g("s_cmp_lt_u32 s18, 4")
    g("s_cbranch_scc1 L_compute")

    g("s_lshl_b32 s36, s19, 11")
    g("s_lshl_b32 s37, s17, 6")
    g(f"v_xor_b32 v2, s37, v{TMP3}")
    g(f"v_add_u32 v1, s36, v{TMP3}")
    g("v_add_u32 v2, s36, v2")
    g("s_lshl_b32 s38, s16, 19")
    g("s_lshl_b32 s39, s17, 17")
    g("s_add_u32 s39, s38, s39")
    g(f"s_mul_i32 s42, s19, {2*PIECE}")
    g("s_mov_b32 s22, 0x20000")
    g("s_mov_b32 s26, 0x20000")
    g("s_movk_i32 s30, 0x1000")
    g(f"s_mul_i32 s44, s19, {RPITCH}")
    g(f"s_add_u32 m0, s44, {RBASE}")
    g(f"v_and_b32 v5, 48, v{TMP2}")
    g(f"v_xor_b32 v5, v5, v{TMP3}")
    g("s_lshl_b32 s45, s19, 10")
    if opt.rot:
        g(f"s_lshr_b32 s41, s2, {opt.rot - 1}\ns_and_b32 s41, s41, 15\ns_lshl_b32 s41, s41, 13")
    else:
        g("s_mov_b32 s41, 0")
    g("s_lshl_b32 s46, s16, 9")
    g("s_lshl_b32 s47, s17, 2")
    g("s_add_u32 s46, s46, s47")
    g(f"s_add_u32 s46, s46, {WS_FLAG}")
    g(f"v_and_b32 v3, 3, v{TMP2}")
    g("v_lshlrev_b32 v3, 7, v3")
    g(f"v_lshlrev_b32 v13, 2, v{TMP2}")
    g("s_mov_b32 s34, 0x10000000")
    g("s_mov_b32 s35, 0x20000")
    g("s_mov_b32 s50, 256")
    g("s_mov_b32 s51, 0x20000")
    g("s_waitcnt lgkmcnt(0)")
    g("s_add_u32 s28, s6, s38")
    g("s_addc_u32 s29, s7, 0")
    g("buffer_load_dwordx4 v5, s[28:31], s45 offen lds")
    g(f"s_add_u32 m0, s42, {7*SLOT}")
    g("s_add_u32 s20, s6, s39")
    g("s_addc_u32 s21, s7, 0")
    g(f"buffer_load_dwordx4 v1, s[20:23], s41 offen {kvpol} lds")
    g(f"s_add_u32 m0, s42, {7*SLOT+32}")
    g("s_add_u32 s24, s8, s39")
    g("s_addc_u32 s25, s9, 0")
    g(f"buffer_load_dwordx4 v1, s[20:23], s41 offen offset:1024 {kvpol} lds")
    g("s_mov_b32 s32, s14")
    g("s_mov_b32 s33, s15")
    g("s_mov_b32 s48, s12")
    g("s_mov_b32 s49, s13")
    if opt.hs == "loader":
        g("s_cmp_lg_u32 s19, 0")
        g("s_cbranch_scc1 L_nohs1")
        g(f"buffer_load_dword v4, v3, s[32:35], s46 offen {opt.stalepol}")
        g("L_nohs1:")
    g("s_barrier")
    g.ts(1)
    def hs2():
        if opt.hs != "loader": return
        g("s_cmp_lg_u32 s19, 0")
        g("s_cbranch_scc1 L_nohs2")
        g("v_and_b32 v4, 1, v4")
        g("v_cmp_eq_u32 vcc, 0, v4")
        g("s_getreg_b32 s46, hwreg(HW_REG_XCC_ID)")
        g("s_and_b32 s46, s46, 7")
        g("s_lshl_b32 s46, s46, 4")
        g("s_and_b32 s47, vcc_lo, 15")
        g("s_or_b32 s46, s46, s47")
        g("s_or_b32 s46, s46, 0x80")
        g("s_lshl_b32 s47, s17, 3")
        g("s_lshl_b32 s46, s46, s47")
        g("v_mov_b32 v4, s46")
        g("s_lshl_b32 s47, s16, 2")
        g("s_mov_b64 exec, 1")
        g("buffer_atomic_or v4, off, s[48:51], s47 sc1")
        g("s_mov_b64 exec, -1")
        g("L_nohs2:")
    def pair(u):
        slot = (u & 7) * SLOT
        if u < 15:
            g(f"s_add_u32 m0, s42, {slot}")
            g("s_add_u32 s40, s41, 0x2000")
            if opt.rot: g("s_and_b32 s40, s40, 0x1ffff")
            g(f"buffer_load_dwordx4 v1, s[20:23], s40 offen {kvpol} lds")
            g(f"s_add_u32 m0, s42, {slot+32}")
            g("s_nop 0")
            g(f"buffer_load_dwordx4 v1, s[20:23], s40 offen offset:1024 {kvpol} lds")
        g(f"s_add_u32 m0, s42, {slot+TILE}")
        g("s_nop 0")
        g(f"buffer_load_dwordx4 v2, s[24:27], s41 offen {vpol} lds")
        g(f"s_add_u32 m0, s42, {slot+TILE+32}")
        g("s_nop 0")
        g(f"buffer_load_dwordx4 v2, s[24:27], s41 offen offset:1024 {vpol} lds")
        g("s_mov_b32 s41, s40")
    sched = [int(x) for x in opt.sched.split(",")]
    cnt = [0]
    def tr():
        if not opt.trace: return
        g("s_memrealtime s[60:61]\ns_waitcnt lgkmcnt(0)")
        g(f"v_writelane_b32 v10, s60, {cnt[0]}")
        cnt[0] += 1
    if opt.trace:
        g("s_waitcnt lgkmcnt(0)")
        g("v_writelane_b32 v10, s64, 63")
    issued = [0]
    queue = []
    def issue(n, limit):
        for _ in range(n):
            u = issued[0]
            if u >= 16 or u > limit: break
            pair(u); issued[0] += 1
            queue.extend([u] * (4 if u < 15 else 2))
    def wait_for(t):
        n = sum(1 for x in queue if x > t)
        g(f"s_waitcnt vmcnt({n})")
    issue(sched[0], 6)
    tr(); g.ts(2)
    wait_for(-1)
    tr(); g.ts(3)
    g("s_barrier")
    tr()
    issue(sched[1], 6)
    for t in range(16):
        tr()
        assert issued[0] > t
        wait_for(t)
        tr()
        g("s_barrier")
        tr()
        if t == opt.hs_at:
            hs2()
        issue(sched[min(t + 2, len(sched) - 1)], t + 7)
        if opt.prewarm is not None and opt.pw_at <= t < opt.pw_at + 3:
            i = t - opt.pw_at
            if i == 0:
                g("s_lshl_b32 s36, s16, 2\ns_add_u32 s36, s36, s19\ns_lshl_b32 s36, s36, 2\ns_add_u32 s36, s36, s17")
                g("s_mul_i32 s37, s36, 9216")
                g(f"s_lshl_b32 s38, s36, 9\ns_add_u32 s38, s38, {WS_ML}")
                g(f"buffer_load_dword v12, v{TMP2}, s[32:35], s38 offen {opt.prewarm}".replace(f"v{TMP2},", "v13,"))
                queue.append(99)
            for k in range(3):
                g(f"buffer_load_dwordx4 v[{16+4*k}:{19+4*k}], v{TMP3}, s[32:35], s37 offen offset:{k*1024} {opt.prewarm}")
                queue.append(99)
            g("s_add_u32 s37, s37, 3072")
    if opt.trace:
        g("s_mov_b32 s28, s14\ns_mov_b32 s29, s15\ns_mov_b32 s30, 0x10000000\ns_mov_b32 s31, 0x20000")
        g("s_lshl_b32 s42, s2, 2\ns_add_u32 s42, s42, s19\ns_lshl_b32 s42, s42, 8")
        g(f"s_add_u32 s42, s42, {WS_TS + (1<<20)}")
        g(f"v_lshrrev_b32 v11, 2, v{TMP3}")
        g("buffer_store_dword v10, v11, s[28:31], s42 offen")
    g.ts_store(1)
    g("s_endpgm")

    g("L_compute:")
    g("s_lshl_b32 s36, s16, 2")
    g("s_add_u32 s36, s36, s19")
    g("s_mul_i32 s37, s36, 12288")
    g("s_mov_b32 s22, 12288")
    g("s_movk_i32 s38, 0x1000")
    g("s_movk_i32 s39, 0x2000")
    def setup():
        addr_setup(g, TMP2, 100)
        g(f"s_mul_i32 s42, s19, {QWAVE}")
        g(f"s_add_u32 s42, s42, {QBASE}")
        g(f"v_lshrrev_b32 v103, 4, v{TMP2}")
        g(f"v_mul_u32_u24 v105, {QPITCH}, v103")
        g(f"v_and_b32 v107, 15, v{TMP2}")
        g("v_lshlrev_b32 v108, 4, v107")
        g("v_add3_u32 v105, v105, v108, s42")
        g(f"v_mul_u32_u24 v106, {QPITCH}, v107")
        g("v_add3_u32 v106, v106, v102, s42")
        g(f"v_bfe_u32 v107, v{TMP2}, 2, 2")
        g(f"v_mul_u32_u24 v107, {RPITCH}, v107")
        g(f"v_and_b32 v109, 3, v{TMP2}")
        g("v_xor_b32 v110, v109, v103")
        g("v_lshlrev_b32 v110, 4, v110")
        g("v_lshlrev_b32 v109, 8, v109")
        g("v_add3_u32 v107, v107, v109, v110")
        g(f"v_add_u32 v107, {RBASE}, v107")
        g(f"v_and_b32 v111, 3, v{TMP2}")
        g("v_lshlrev_b32 v111, 7, v111")
        g("s_lshl_b32 s46, s16, 9\ns_lshl_b32 s47, s17, 2\ns_add_u32 s46, s46, s47")
        g(f"s_add_u32 s47, s46, {WS_FLAG}")
        g("s_cmp_eq_u32 s19, 0\ns_cselect_b32 s63, 2, 99")
        g(f"v_mov_b32 v{TMP2}, v108")
        for i in range(48, 96): g(f"v_mov_b32 v{i}, 0")
        for i in range(6): g(f"v_mov_b32 v{L0+i}, 0")
        g(f"s_mov_b32 s52, 0x{C_SCALE:08x}")
        g(f"s_mov_b32 s53, 0x{C_SCALE:08x}")
        g("s_mov_b32 s51, 0xffff0000")
        g(f"v_add_u32 v{TMP0}, {7*SLOT}, v{KADDR}")
        g(f"s_mov_b32 s54, {2*SLOT}")
        g("s_mov_b32 s44, 0")
        g("s_lshl_b32 s40, s36, 2")
        for x in range(1, 4):
            g(f"s_xor_b32 s42, s17, {x}")
            g("s_add_u32 s42, s42, s40")
            g(f"s_mul_i32 s{55+x}, s42, 9216")
            if x > 1: g(f"s_add_u32 s{55+x}, s{55+x}, {(x-1)*3072}")
        g("s_add_u32 s42, s40, s17")
        g("s_lshl_b32 s59, s42, 9")
        g(f"s_add_u32 s59, s59, {WS_ML}")
        g("s_mul_i32 s60, s42, 9216")
        g("s_lshl_b32 s61, s36, 7")
        g(f"s_add_u32 s61, s61, {WS_FLAG}")
        g("s_lshl_b32 s62, s16, 2")
        g("s_mov_b32 s26, 12288")
        g("s_mov_b32 s30, 0x10000000")
        g("s_mov_b32 s34, 256")
        g("s_mov_b32 s35, 0x20000")
        g("s_mov_b32 s48, 0x3f80")
        g("s_mov_b32 s49, 0x3f800000")
    if opt.setup == "early": setup()
    g.ts(2)
    g("s_waitcnt lgkmcnt(0)")
    g("s_add_u32 s20, s4, s37")
    g("s_addc_u32 s21, s5, 0")
    for i in range(12):
        so = ["0", "s38", "s39"][i // 4]
        g(f"buffer_load_dwordx4 v[{4*i}:{4*i+3}], v{TMP3}, s[20:23], {so} offen offset:{(i%4)*1024} {qpol}")
    g("s_barrier")
    g.ts(1)
    if opt.tsout:
        g("s_add_u32 s24, s14, s37\ns_addc_u32 s25, s15, 0\ns_add_u32 s24, s24, 0x2800000\ns_addc_u32 s25, s25, 0")
    else:
        g("s_add_u32 s24, s10, s37")
        g("s_addc_u32 s25, s11, 0")
    if opt.setup != "early": setup()
    g("s_mov_b32 s28, s14")
    g("s_mov_b32 s29, s15")
    g("s_mov_b32 s32, s12")
    g("s_mov_b32 s33, s13")
    QX = 0
    if opt.hs == "loop":
        g(f"buffer_load_dword v{TMP1}, v111, s[28:31], s47 offen {opt.stalepol}")
        QX = 1
    def qscale_ops(b):
        out = []
        for i in range(4):
            li = b * 4 + i
            grp = [f"s_waitcnt vmcnt({11-li+QX})"]
            for r in range(4): grp += [f"v_lshlrev_b32 v{112+2*r}, 16, v{4*li+r}", f"v_and_b32 v{113+2*r}, s51, v{4*li+r}"]
            for r in range(4): grp.append(f"v_pk_mul_f32 v[{112+2*r}:{113+2*r}], v[{112+2*r}:{113+2*r}], s[52:53]")
            for r in range(4): grp.append(f"v_cvt_pk_bf16_f32 v{4*li+r}, v{112+2*r}, v{113+2*r}")
            grp.append(f"ds_write_b128 v105, v[{4*li}:{4*li+3}] offset:{i*4*QPITCH}")
            out.append(grp)
        out.append([f"ds_read_b128 {Qa(b,s)}, v106 offset:{64*s}" for s in range(4)])
        return out
    def pp_mfma(b, s):
        c = "0" if s == 0 else Cq(b)
        return f"v_mfma_f32_16x16x32_bf16 {Cq(b)}, {Va(s)}, {Qa(b,s)}, {c}"
    for grp in qscale_ops(0): g(grp)
    g.ts(3)
    for grp in qscale_ops(1): g(grp)
    for grp in qscale_ops(2): g(grp)
    zero = [f"v_mov_b32 v{i}, 0" for i in range(48)]
    g(zero[:32])
    g.ts(4)
    g("s_barrier")
    g.ts(5)
    for s in range(4):
        g(f"ds_read_b128 {Va(s)}, v107 offset:{64*s}")
    k0r = [f"ds_read_b128 {Ka(kb,s)}, v{TMP0} offset:{kb*512 + s*64}" for kb in range(2) for s in range(4)]
    g(k0r[:4])
    g(zero[32:40])
    g("s_waitcnt lgkmcnt(4)")
    if opt.pts: g.ts(9)
    pm = [pp_mfma(b, s) for b in range(3) for s in range(4)]
    qk0 = [m.replace(Cq(0), "0") for m in slot_mfmas(5)[:8]]
    class Lst(list):
        def __call__(self, x): self.append(x)
    red = Lst()
    for b in range(3):
        c = C0 + 4 * b
        red += [f"v_max3_f32 v{c}, v{c}, v{c+1}, v{c+2}", f"v_max_f32 v{c}, v{c}, v{c+3}"]
    xlane3(red, [C0, C0 + 4, C0 + 8], [C0 + 1, C0 + 5, C0 + 9], "v_max_f32")
    for i in range(12):
        g(pm[i])
        if i < 4: g(k0r[4 + i])
        elif i < 8: g(zero[40 + 2 * (i - 4):42 + 2 * (i - 4)])
        elif i >= 10: g(red[2 * (i - 10):2 * (i - 10) + 2])
    if opt.pts: g.ts(10)
    g("s_waitcnt lgkmcnt(0)")
    rest = red[4:]
    for i in range(8):
        g(qk0[i])
        if i == 3: g("s_nop 2")
        if i >= 3: g(rest[(i - 3) * len(rest) // 5:(i - 2) * len(rest) // 5])
    if opt.pts: g.ts(11)
    g("s_barrier")
    if opt.pts: g.ts(12)
    for r in range(8): g(vread(r, 0))
    for i in range(8): g(f"v_sub_f32 v{S(0,i)}, v{S(0,i)}, v{C0}")
    smA = softmax_ops(6, "add")
    neg = []
    for b in (1, 2, 0):
        c = C0 + 4 * b
        for i in (1, 2, 3, 0):
            neg.append(f"v_sub_f32 v{c+i}, 0, v{c}")
    side = [f"v_mov_b32 v108, v{C0}", f"v_mov_b32 v109, v{C0+4}", f"v_mov_b32 v110, v{C0+8}",
            f"buffer_store_dwordx4 v[108:111], v{TMP2}, s[28:31], s59 offen offset:256 sc1"]
    for i in range(8):
        g(smA[8 + i])
        g(neg[i * 12 // 8:(i + 1) * 12 // 8])
    g(side)
    g.ts(6)
    g("s_branch L_k0")
    NT = opt.nt
    niter = 8 - NT // 2 if NT else 8
    slots = loop_body("add", rotated=True, niter=niter)
    g("L_loop:")
    g(slots[4]); g(slots[-1])
    g("L_k0:")
    for k in range(4): g(slots[k])
    g("s_cbranch_scc1 L_loop")
    g.ts(7)
    T0 = 16 - NT
    units = [(t, b) for t in range(T0) for b in range(3)] + [(t, b) for t in range(T0, 16) for b in range(2)] + [(t, 2) for t in range(T0, 16)]
    n0 = 6 * (niter - 1) + 4
    base = (2 * (niter - 1)) & 7
    first, last = {}, {}
    kslot0, vslot0 = base + 1, base + 2
    if NT:
        g(f"v_add_u32 v{KADDR}, {SLOT}, v{KADDR}")
        g(f"v_add_u32 v{VADDR}, {2*SLOT}, v{VADDR}")
    g(f"buffer_load_dword v{TMP0}, off, s[32:35], s62 sc1")
    fin = {b: max(n for n in range(48) if units[n][1] == b) for b in range(3)}
    for b in range(2):
        n = fin[b] + 1
        for x in range(1, 4):
            ops = pack_ops(x, b)
            if n < 47:
                gp = {1: (3, 4), 2: (6, 6), 3: (7, 7)}[x]
                last.setdefault((n, gp[0]), []).extend(ops[:2]); last.setdefault((n, gp[1]), []).extend(ops[2:])
                first.setdefault((n, gp[1] + 1), []).append(pay_store(x, b, opt))
            else:
                last.setdefault((n, 2 * x - 1), []).extend(ops + [pay_store(x, b, opt)])
    lred = Lst()
    for b in range(3): lred(f"v_add_f32 v{96+b}, v{L0+2*b}, v{L0+2*b+1}")
    xlane3(lred, [96, 97, 98], [100, 101, 102], "v_add_f32")
    lred("v_mov_b32 v99, 0")
    lred(f"buffer_store_dwordx4 v[96:99], v{TMP2}, s[28:31], s59 offen {opt.stpol}")
    lred(f"v_add_f32 v{TMP1}, v96, v97")
    lred("s_mov_b32 s50, " + ("0x5f800000" if not opt.force_fb else "0x00000000"))
    lred(f"v_add_f32 v{TMP1}, v{TMP1}, v98")
    lred(f"v_cmp_nlt_f32 vcc, v{TMP1}, s50")
    for i in range(5):
        last.setdefault((47, 8 + i), []).extend(lred[i * len(lred) // 5:(i + 1) * len(lred) // 5])
    last.setdefault((47, 13), []).extend(pack_ops(1, 2) + [pay_store(1, 2, opt)])
    last.setdefault((47, 15), []).extend(pack_ops(2, 2) + [pay_store(2, 2, opt)] + pack_ops(3, 2) + [pay_store(3, 2, opt)])
    last.setdefault((47, 7), []).append("s_nop 0")
    g(tail_slots(n0, units, kslot0, vslot0, 2 * niter - 1, first, last, pv_last=[2, 3, 4, 5, 6, 7, 0, 1]))
    g.ts(8)
    g("s_cbranch_vccz L_sent")
    g("s_waitcnt vmcnt(0)")
    g("s_branch L_slow")
    g("L_sent:")
    g("s_mov_b32 s47, 0x100000")
    g(f"s_waitcnt vmcnt({4 if opt.exp_x1 else 10})")
    g("L_hs:")
    g(f"v_readfirstlane_b32 s44, v{TMP0}")
    g("s_and_b32 s45, s44, 0x80808080")
    g("s_cmp_eq_u32 s45, 0x80808080")
    g("s_cbranch_scc0 L_hs_retry")
    g("L_hs_ok:")
    g("s_lshr_b32 s45, s44, 8")
    g("s_xor_b32 s45, s45, s44")
    g("s_and_b32 s45, s45, 0x00707070")
    if opt.force_slow:
        g("s_mov_b32 s45, 1")
    g(f"v_bfe_u32 v100, v{TMP3}, 4, 2")
    g("v_lshlrev_b32 v101, 3, v100")
    g("v_add_u32 v101, s19, v101")
    g("v_lshrrev_b32 v101, v101, s44")
    g("v_and_b32 v101, 1, v101")
    g("v_lshlrev_b32 v100, 2, v100")
    g("s_lshl_b32 s46, s17, 3")
    g("s_add_u32 s46, s46, s19")
    g("s_lshr_b32 s46, s44, s46")
    g("s_and_b32 s46, s46, 1")
    g("v_mov_b32 v102, s46")
    g("s_lshl_b32 s46, s17, 2")
    g("s_add_u32 s46, s46, s61")
    for x in range(1, 4):
        g(f"s_xor_b32 s{55+x}, s59, {x<<9}")
    g("s_mov_b32 s47, 0x100000")
    g("s_cmp_lg_u32 s45, 0")
    g.ts(9)
    g("s_waitcnt vmcnt(0)")
    g.ts(10)
    g("s_cbranch_scc1 L_xcd_flag")
    g(f"buffer_store_dword v102, off, s[28:31], s46 {opt.flagpol}")
    g("L_poll:")
    g(f"buffer_load_dword v103, v100, s[28:31], s61 offen {opt.pollpol}")
    g("s_waitcnt vmcnt(0)")
    g("v_and_b32 v103, 1, v103")
    g("v_cmp_ne_u32 vcc, v103, v101")
    g("s_cbranch_vccz L_poll_ok")
    g("s_sub_u32 s47, s47, 1")
    g("s_cbranch_scc0 L_poll")
    g("L_poll_ok:")
    g.ts(11)
    lp = opt.ldpol
    LR = lambda x: 100 + 4 * x
    PR = lambda x, b: 24 + ((x - 1) * 3 + b) * 4
    for x in range(1, 4):
        g(f"buffer_load_dwordx4 v[{LR(x)}:{LR(x)+3}], v{TMP2}, s[28:31], s{55+x} offen {lp}")
    for x in range(1, 4):
        for b in range(3):
            if opt.exp_x1 and x < 3: continue
            g(f"buffer_load_dwordx4 v[{PR(x,b)}:{PR(x,b)+3}], v{TMP3}, s[28:31], s60 offen offset:{b*1024} {lp}")
        if x < 3 and not opt.exp_x1: g("s_add_u32 s60, s60, 3072")
    g(f"v_bfe_u32 v132, v{TMP3}, 4, 4")
    g("v_lshlrev_b32 v132, 8, v132")
    if opt.out4:
        g(f"v_bfe_u32 v133, v{TMP3}, 8, 1\nv_lshlrev_b32 v133, 5, v133")
        g(f"v_bfe_u32 v134, v{TMP3}, 9, 1\nv_lshl_add_u32 v133, v134, 4, v133")
    else:
        g(f"v_lshrrev_b32 v133, 8, v{TMP3}")
        g("v_lshlrev_b32 v133, 3, v133")
    g("s_lshl_b32 s42, s17, 6")
    g("v_add3_u32 v132, v132, v133, s42")
    g(f"s_waitcnt vmcnt({3 if opt.exp_x1 else 9})")
    g.ts(12)
    g(f"v_or3_b32 v99, v99, v{LR(1)+3}, v{LR(2)+3}")
    g(f"v_or_b32 v99, v99, v{LR(3)+3}")
    g("v_cmp_ne_u32 vcc, 0, v99")
    g("s_cbranch_vccnz L_general")
    for x in range(1, 4):
        for b in range(3):
            g(f"v_add_f32 v{96+b}, v{96+b}, v{LR(x)+b}")
    for b in range(3): g(f"v_rcp_f32 v{96+b}, v{96+b}")
    def acc_reg(b, i): return O(i // 4, b, i % 4)
    for x in range(3 if opt.exp_x1 else 1, 4):
        for b in range(3):
            g(f"s_waitcnt vmcnt({9 - ((x-1)*3 + b) - 1})")
            if x == 3 and b == 2: g.ts(13)
            for r in range(4):
                src = PR(x, b) + r
                if opt.dot:
                    g(f"v_dot2c_f32_bf16 v{acc_reg(b,2*r)}, s48, v{src}")
                    g(f"v_dot2c_f32_bf16 v{acc_reg(b,2*r+1)}, s49, v{src}")
                else:
                    t = 116 + 2 * (r & 1)
                    g(f"v_lshlrev_b32 v{t}, 16, v{src}")
                    g(f"v_and_b32 v{t+1}, s51, v{src}")
                    g(f"v_pk_add_f32 v[{acc_reg(b,2*r)}:{acc_reg(b,2*r+1)}], v[{acc_reg(b,2*r)}:{acc_reg(b,2*r+1)}], v[{t}:{t+1}]")
            if x == 3:
                if opt.dot: g("s_nop 2")
                out_store(g, b, 96 + b, opt)
    g("L_done:")
    g.ts(14)
    if opt.ts:
        g("s_waitcnt vmcnt(0)")
        g.ts(15)
    g.ts_store(0)
    g("L_end:")
    g("s_endpgm")
    if opt.hs == "loop":
        g("L_hs2:")
        g("s_waitcnt vmcnt(0)")
        g(f"v_and_b32 v{TMP1}, 1, v{TMP1}")
        g(f"v_cmp_eq_u32 vcc, 0, v{TMP1}")
        g("s_getreg_b32 s46, hwreg(HW_REG_XCC_ID)")
        g("s_and_b32 s46, s46, 7")
        g("s_lshl_b32 s46, s46, 4")
        g("s_and_b32 s47, vcc_lo, 15")
        g("s_or_b32 s46, s46, s47")
        g("s_or_b32 s46, s46, 0x80")
        g("s_lshl_b32 s47, s17, 3")
        g("s_lshl_b32 s46, s46, s47")
        g(f"v_mov_b32 v{TMP1}, s46")
        g("s_mov_b64 exec, 1")
        g(f"buffer_atomic_or v{TMP1}, off, s[32:35], s62 sc1")
        g("s_mov_b64 exec, -1")
        g("s_branch L_hs2_ret")
    g("L_hs_retry:")
    g("s_sleep 2")
    g(f"buffer_load_dword v{TMP0}, off, s[32:35], s62 sc1")
    g("s_sub_u32 s47, s47, 1")
    g("s_waitcnt vmcnt(0)")
    g("s_cbranch_scc0 L_hs")
    g("s_branch L_hs_ok")
    g("L_xcd_flag:")
    g("buffer_store_dword v102, off, s[28:31], s46 sc1")
    g("L_poll2:")
    g("buffer_load_dword v103, v100, s[28:31], s61 offen sc1")
    g("s_waitcnt vmcnt(0)")
    g("v_and_b32 v103, 1, v103")
    g("v_cmp_ne_u32 vcc, v103, v101")
    g("s_cbranch_vccz L_poll_ok")
    g("s_sub_u32 s47, s47, 1")
    g("s_cbranch_scc0 L_poll2")
    g("s_branch L_poll_ok")
    g("L_general:")
    CR = lambda x: 60 + 4 * x
    for x in range(1, 4):
        g(f"buffer_load_dwordx4 v[{CR(x)}:{CR(x)+3}], v{TMP2}, s[28:31], s{55+x} offen offset:256 sc1")
    for b in range(3): g(f"v_mov_b32 v{CR(0)+b}, v{C0+4*b}")
    g("s_waitcnt vmcnt(0)")
    for b in range(3):
        g(f"v_min3_f32 v100, v{CR(0)+b}, v{CR(1)+b}, v{CR(2)+b}")
        g(f"v_min_f32 v100, v100, v{CR(3)+b}")
        for x in range(4): g(f"v_sub_f32 v{CR(x)+b}, v100, v{CR(x)+b}")
        for x in range(4): g(f"v_exp_f32 v{CR(x)+b}, v{CR(x)+b}")
        g("s_nop 0")
        g(f"v_mul_f32 v{96+b}, v{96+b}, v{CR(0)+b}")
        for x in range(1, 4): g(f"v_fmac_f32 v{96+b}, v{CR(x)+b}, v{LR(x)+b}")
    for b in range(3): g(f"v_rcp_f32 v{96+b}, v{96+b}")
    for b in range(3):
        for i in range(8): g(f"v_mul_f32 v{acc_reg(b,i)}, v{acc_reg(b,i)}, v{CR(0)+b}")
        for x in range(1, 4):
            for r in range(4):
                src = PR(x, b) + r
                g(f"v_lshlrev_b32 v116, 16, v{src}")
                g(f"v_and_b32 v117, s51, v{src}")
                g(f"v_fmac_f32 v{acc_reg(b,2*r)}, v116, v{CR(x)+b}")
                g(f"v_fmac_f32 v{acc_reg(b,2*r+1)}, v117, v{CR(x)+b}")
        out_store(g, b, 96 + b, opt)
    g("s_branch L_done")
    slow_path(g, opt)
    g.o.append(f""".section .rodata,"a"
.p2align 6
.amdhsa_kernel {KN}
  .amdhsa_next_free_vgpr {NV+NA}
  .amdhsa_next_free_sgpr 102
  .amdhsa_accum_offset {NV}
  .amdhsa_group_segment_fixed_size 0
  .amdhsa_kernarg_size 48
  .amdhsa_user_sgpr_count 2
  .amdhsa_user_sgpr_kernarg_segment_ptr 1
  .amdhsa_system_sgpr_workgroup_id_x 1
.end_amdhsa_kernel""")
    return "\n".join(g.o) + "\n"


def out_store(g, b, rl, opt):
    o, p = O(0, b), O(1, b)
    so = ["0", "s38", "s39"][b]
    for r in range(4): g(f"v_mul_f32 v{o+r}, v{o+r}, v{rl}")
    for r in range(4): g(f"v_mul_f32 v{p+r}, v{p+r}, v{rl}")
    if opt.out4:
        g(f"v_cvt_pk_bf16_f32 v{o}, v{o}, v{o+1}")
        g(f"v_cvt_pk_bf16_f32 v{o+1}, v{o+2}, v{o+3}")
        g(f"v_cvt_pk_bf16_f32 v{o+2}, v{p}, v{p+1}")
        g(f"v_cvt_pk_bf16_f32 v{o+3}, v{p+2}, v{p+3}")
        g("s_nop 0")
        g(f"v_permlane16_swap_b32 v{o}, v{o+2}")
        g(f"v_permlane16_swap_b32 v{o+1}, v{o+3}")
        g("s_nop 0")
        g(f"buffer_store_dwordx4 v[{o}:{o+3}], v132, s[24:27], {so} offen {opt.outpol}")
        return
    for h in range(2):
        o = O(h, b)
        g(f"v_cvt_pk_bf16_f32 v{o}, v{o}, v{o+1}")
        g(f"v_cvt_pk_bf16_f32 v{o+1}, v{o+2}, v{o+3}")
        g(f"buffer_store_dwordx2 v[{o}:{o+1}], v132, s[24:27], {so} offen offset:{32*h} {opt.outpol}")


if __name__ == "__main__":
    ap = argparse.ArgumentParser()
    ap.add_argument("-o", default="standalone__gqa_softmax__near_ridge.s")
    ap.add_argument("--kvpol", default="nt")
    ap.add_argument("--qpol", default="nt")
    ap.add_argument("--stpol", default="sc1")
    ap.add_argument("--ldpol", default="sc1")
    ap.add_argument("--outpol", default="")
    ap.add_argument("--ts", type=int, default=0)
    ap.add_argument("--out4", type=int, default=1)
    ap.add_argument("--pw_at", type=int, default=11)
    ap.add_argument("--nt", type=int, default=0)
    ap.add_argument("--sched", default="2,2,1")
    ap.add_argument("--rot", type=int, default=0)
    ap.add_argument("--hs_at", type=int, default=2)
    ap.add_argument("--probe", type=int, default=0)
    ap.add_argument("--vpol", default=None)
    ap.add_argument("--hs", default="loader")
    ap.add_argument("--setup", default="early")
    ap.add_argument("--tsout", type=int, default=0)
    ap.add_argument("--pts", type=int, default=0)
    ap.add_argument("--exp_x1", type=int, default=0)
    ap.add_argument("--exp_2x", type=int, default=0)
    ap.add_argument("--prewarm", default=None)
    ap.add_argument("--linear", type=int, default=0)
    ap.add_argument("--trace", type=int, default=0)
    ap.add_argument("--pollpol", default="nt")
    ap.add_argument("--stalepol", default="")
    ap.add_argument("--dot", type=int, default=1)
    ap.add_argument("--flagpol", default="")
    ap.add_argument("--depth", type=int, default=3)
    ap.add_argument("--init_pairs", type=int, default=2)
    ap.add_argument("--force_slow", type=int, default=0)
    ap.add_argument("--force_fb", type=int, default=0)
    opt = ap.parse_args()
    open(opt.o, "w").write(gen(opt))
```

```python
PIECE = 1056
TILE = 8 * PIECE
SLOT = 2 * TILE

def O(db, b, r=0): return (db * 3 + b) * 4 + r
def Oq(db, b): x = O(db, b); return f"v[{x}:{x+3}]"
S0 = 96
def S(par, i): return S0 + par * 8 + i
def Sq(par, kb): x = S(par, kb * 4); return f"v[{x}:{x+3}]"
P0 = 112
def P(par, i): return P0 + par * 4 + i
def Pq(par): x = P(par, 0); return f"v[{x}:{x+3}]"
C0 = 120
def Cq(b): x = C0 + 4 * b; return f"v[{x}:{x+3}]"
L0 = 132
KADDR, VADDR = 138, 139
TMP0, TMP1, TMP2, TMP3 = 140, 141, 142, 143
NV = 144
def Qa(b, s): x = (b * 4 + s) * 4; return f"a[{x}:{x+3}]"
def Ka(kb, s): x = 48 + (kb * 4 + s) * 4; return f"a[{x}:{x+3}]"
def Va(db): x = 80 + db * 4; return f"a[{x}:{x+3}]"
def Vh(db, h): x = 80 + db * 4 + 2 * h; return f"a[{x}:{x+1}]"
NA = 112

def softmax_ops(n, mode, b=None):
    par, b = n & 1, (n % 3 if b is None else b)
    s = lambda i: f"v{S(par, i)}"
    X = lambda i: f"v_exp_f32 {s(i)}, {s(i)}"
    CV = lambda i: f"v_cvt_pk_bf16_f32 v{P(par,i)}, {s(2*i)}, {s(2*i+1)}"
    l0, l1 = L0 + 2 * b, L0 + 2 * b + 1
    AD = lambda i: f"v_add_f32 v{l0 + (i & 1)}, v{l0 + (i & 1)}, {s(i)}"
    PK = lambda i: f"v_pk_add_f32 v[{l0}:{l1}], v[{l0}:{l1}], v[{S(par,2*i)}:{S(par,2*i+1)}]"
    DT = lambda i: f"v_dot2c_f32_bf16 v{l0 + (i & 1)}, v{P(par,i)}, v{TMP3}"
    if mode == "fma":
        F = lambda i: f"v_fma_f32 {s(i)}, {s(i)}, s52, v{C0+4*b}"
        seq = [F(0), F(1), X(0), X(1), F(2), F(3), CV(0), AD(0), X(2), X(3), AD(1), F(4), F(5), CV(1), AD(2), X(4), X(5), AD(3),
               F(6), F(7), CV(2), AD(4), X(6), X(7), AD(5), CV(3), AD(6), AD(7)]
        d = {k: [] for k in range(8, 24)}
        cum = 0
        for x in seq:
            c = 8 if x.startswith("v_exp") else 4
            d[8 + (cum + c // 2) // 9].append(x)
            cum += c
        return d
    if mode == "add":
        return {8: [X(0)], 9: [X(1)], 10: [X(2)], 11: [CV(0), AD(0)], 12: [X(3)], 13: [X(4)], 14: [CV(1), AD(1)], 15: [AD(2), AD(3)],
                16: [X(5)], 17: [X(6)], 18: [CV(2), AD(4)], 19: [X(7)], 20: [AD(5), AD(6)], 21: [CV(3), AD(7)], 22: [], 23: []}
    if mode == "pk":
        return {8: [X(0)], 9: [X(1)], 10: [X(2)], 11: [CV(0), PK(0)], 12: [X(3)], 13: [X(4)], 14: [CV(1), PK(1)], 15: [],
                16: [X(5)], 17: [X(6)], 18: [CV(2), PK(2)], 19: [X(7)], 20: [], 21: [CV(3), PK(3)], 22: [], 23: []}
    if mode == "dot":
        return {8: [X(0)], 9: [X(1)], 10: [X(2)], 11: [CV(0)], 12: [X(3)], 13: [X(4)], 14: [CV(1), DT(0)], 15: [DT(1)],
                16: [X(5)], 17: [X(6)], 18: [CV(2)], 19: [X(7)], 20: [DT(2)], 21: [CV(3)], 22: [DT(3)], 23: []}
    if mode.startswith("m4"):
        sel = [136, 140, 142][b]
        M4 = lambda h: f"v_mfma_f32_4x4x4_16b_bf16 v[132:135], v[{sel}:{sel+1}], v[{P(par,2*h)}:{P(par,2*h+1)}], v[132:135]"
        if mode == "m4a":
            return {8: [X(0)], 9: [X(1)], 10: [X(2)], 11: [CV(0)], 12: [X(3)], 13: [X(4)], 14: [CV(1)], 15: [],
                    16: [X(5)], 17: [X(6)], 18: [CV(2)], 19: [X(7)], 20: [M4(0)], 21: [CV(3)], 22: [], 23: [M4(1)]}
        if mode == "m4b":
            return {8: [X(0)], 9: [X(1)], 10: [X(2)], 11: [X(3)], 12: [CV(0), CV(1)], 13: [X(4)], 14: [X(5)], 15: [M4(0)],
                    16: [X(6)], 17: [X(7)], 18: [], 19: [CV(2), CV(3)], 20: [], 21: [], 22: [M4(1)], 23: []}
    if mode == "none":
        return {8: [X(0)], 9: [X(1)], 10: [X(2)], 11: [CV(0)], 12: [X(3)], 13: [X(4)], 14: [CV(1)], 15: [],
                16: [X(5)], 17: [X(6)], 18: [CV(2)], 19: [X(7)], 20: [], 21: [CV(3)], 22: [], 23: []}
    raise ValueError(mode)

CINIT = True
def cinit(b): return Cq(b) if CINIT else "0"

def slot_mfmas(n, pv_order=None):
    bq, pq, bp, pp = (n + 1) % 3, (n + 1) & 1, n % 3, n & 1
    mf = []
    for kb in range(2):
        for s in range(4):
            c = cinit(bq) if s == 0 else Sq(pq, kb)
            mf.append(f"v_mfma_f32_16x16x32_bf16 {Sq(pq,kb)}, {Ka(kb,s)}, {Qa(bq,s)}, {c}")
    for db in (pv_order or range(8)):
        mf.append(f"v_mfma_f32_16x16x32_bf16 {Oq(db,bp)}, {Va(db)}, {Pq(pp)}, {Oq(db,bp)}")
    return mf

def emit_slot(out, n, mode, qk=True, partA=True, first=None, last=None, pre=None, pv_order=None):
    first, last, pre = first or {}, last or {}, pre or {}
    smB, smA = softmax_ops(n, mode), softmax_ops(n + 1, mode)
    mf = slot_mfmas(n, pv_order)
    for pos in range(16):
        out += pre.get(pos, [])
        if pos >= 8 or qk:
            out.append(mf[pos])
        out += first.get(pos, [])
        if pos < 8:
            out += smB[16 + pos]
        elif partA:
            out += smA[pos]
        out += last.get(pos, [])

def kread(i, off):
    kb, s = i // 4, i % 4
    return f"ds_read_b128 {Ka(kb,s)}, v{KADDR} offset:{off + kb*512 + s*64}"
def vread(r, off):
    db, h = r >> 1, r & 1
    return f"ds_read_b64_tr_b16 {Vh(db,h)}, v{VADDR} offset:{off + h*512 + db*32}"

def loop_body(mode="add", kg=None, vg=None, barrier=True, rotated=False, flags=False, niter=8, vlast=0, klast=0):
    kg = kg or [6, 6, 7, 7, 9, 10, 12, 15]
    vg = vg or [8 + r for r in range(16)]
    first = {k: {} for k in range(-1, 6)}
    pre = {k: {} for k in range(-1, 6)}
    last = {k: {} for k in range(-1, 6)}
    for tt, k2 in ((0, -1), (1, 2)):
        for r in range(16):
            kk, gp = k2 + vg[r] // 16, vg[r] % 16
            assert vg[r] >= 8 + (r >> 1)
            (last if (vlast >> r) & 1 else first)[kk].setdefault(gp, []).append(vread(r, tt * SLOT))
    for tt, k1 in ((0, 1), (1, 4)):
        for i in range(8):
            assert i <= kg[i] < 16
            (last if (klast >> i) & 1 else first)[k1].setdefault(kg[i], []).append(kread(i, tt * SLOT))
    for k2 in (-1, 2):
        pre[k2].setdefault(0, []).append(f"s_waitcnt lgkmcnt({5 if flags else 4})")
        pre[k2].setdefault(4, []).append("s_waitcnt lgkmcnt(0)")
        n_after = lambda pos: sum(1 for r in range(16) if vg[r] < pos)
        for db0 in (0, 4):
            pos = 16 + 8 + db0
            issued = n_after(pos)
            need = 2 * (db0 + 4)
            assert issued >= need, (issued, need)
            pre[k2 + 1].setdefault(8 + db0, []).append(f"s_waitcnt lgkmcnt({issued - need})")
        if flags:
            kp = 4 if k2 == -1 else k2 - 1
            first[kp].setdefault(15, []).append(f"ds_read_b32 v{TMP1}, v{TMP0}")
            op = "v_cmp_gt_u32" if k2 == -1 else "v_cmp_ge_u32"
            last[k2].setdefault(5, []).append(f"{op} vcc, s44, v{TMP1}")
            first[k2].setdefault(7, []).extend([f"s_cbranch_vccnz L_wait{k2+1}", f"L_wret{k2+1}:"])
        elif barrier:
            pre[k2].setdefault(8, []).append("s_barrier")
    last[-1].setdefault(6, []).append(f"v_add_u32 v{VADDR}, s45, v{VADDR}")
    last[-1].setdefault(7, []).append(f"v_add_u32 v{KADDR}, s45, v{KADDR}")
    kc, g0 = (3, 8) if rotated else (4, 0)
    if flags:
        first[kc].setdefault(g0 + 0, []).append("s_add_u32 s44, s44, 2")
        first[kc].setdefault(g0 + 1, []).append("s_and_b32 s46, s44, 7")
        first[kc].setdefault(g0 + 2, []).append("s_cmp_eq_u32 s46, 2")
        first[kc].setdefault(g0 + 3, []).append(f"s_cselect_b32 s45, {-(6*SLOT) & 0xffffffff}, s54")
        first[kc].setdefault(g0 + 4, []).append("s_cmp_lt_u32 s44, 18")
        last[0].setdefault(12, []).append(f"v_mov_b32 v{TMP1}, s44")
        first[0].setdefault(14, []).append(f"ds_write_b32 v{TMP0}, v{TMP1} offset:16")
    else:
        first[kc].setdefault(g0 + 0, []).append("s_add_u32 s44, s44, 1")
        first[kc].setdefault(g0 + 1, []).append("s_and_b32 s46, s44, 3")
        first[kc].setdefault(g0 + 2, []).append(f"s_cselect_b32 s45, s54, {-(6*SLOT) & 0xffffffff}")
        first[kc].setdefault(g0 + 4, []).append(f"s_cmp_lt_u32 s44, {niter}")
    slots = {}
    for k in range(-1, 5):
        out = []
        emit_slot(out, k + 6, mode, first=first[k], last=last[k], pre=pre[k])
        slots[k] = out
    if rotated:
        return slots
    return sum((slots[k] for k in range(-1, 5)), [])


def tail_slots(n0, units, kslot0, vslot0, synced, extra_first=None, extra_last=None, pv_last=None, mode="add"):
    N = len(units)
    extra_first, extra_last = extra_first or {}, extra_last or {}
    plan = {}
    for n in range(n0, N):
        kre = n + 2 < N and units[n + 2][0] != units[n + 1][0]
        vre = n + 1 < N and units[n + 1][0] != units[n][0]
        vprev = n - 1 >= n0 and units[n][0] != units[n - 1][0]
        knext = n + 3 < N and units[n + 3][0] != units[n + 2][0]
        if kre:
            t = units[n + 2][0]
            off = (((t - 1) & 7) - kslot0) * SLOT
            assert 0 <= off <= 65535 - 704
            kg = list(range(8)) if vre else [6, 6, 7, 7, 9, 10, 12, 15]
            for i in range(8):
                plan.setdefault((n, kg[i]), []).append((kread(i, off), ("K", i), t - 1))
        if vre:
            t = units[n + 1][0]
            off = ((t & 7) - vslot0) * SLOT
            assert 0 <= off <= 65535 - 736
            vnext = n + 2 < N and units[n + 2][0] != units[n + 1][0]
            dense = knext and vnext
            for r in range(16):
                gp = 8 + (r >> 1) if dense else 8 + r
                plan.setdefault((n + gp // 16, gp % 16), []).append((vread(r, off), ("V", r >> 1), t))
    out = []
    queue = []
    for n in range(n0, N):
        t, b = units[n]
        par = n & 1
        mf, need = [], []
        if n + 1 < N:
            tq, bq = units[n + 1]
            pq = (n + 1) & 1
            for kb in range(2):
                for s in range(4):
                    c = cinit(bq) if s == 0 else Sq(pq, kb)
                    mf.append(f"v_mfma_f32_16x16x32_bf16 {Sq(pq,kb)}, {Ka(kb,s)}, {Qa(bq,s)}, {c}")
                    need.append(("K", kb * 4 + s))
        else:
            mf += [None] * 8; need += [None] * 8
        order = pv_last if (n == N - 1 and pv_last) else range(8)
        for db in order:
            mf.append(f"v_mfma_f32_16x16x32_bf16 {Oq(db,b)}, {Va(db)}, {Pq(par)}, {Oq(db,b)}")
            need.append(("V", db))
        smB = softmax_ops(n, mode, b)
        smA = softmax_ops(n + 1, mode, units[n + 1][1]) if n + 1 < N else None
        for pos in range(16):
            if pos % 4 == 0:
                grp = [x for x in need[pos:pos + 4] if x]
                idx = [i for i, k in enumerate(queue) if k in grp]
                if idx:
                    cnt = len(queue) - 1 - max(idx)
                    out.append(f"s_waitcnt lgkmcnt({min(cnt, 15)})")
                    queue = queue[max(idx) + 1:] if cnt <= 15 else queue[-15:]
            items = plan.get((n, pos), [])
            while items and max(x[2] for x in items) > synced:
                out.append("s_barrier"); synced += 1
            if mf[pos]: out.append(mf[pos])
            for ins, key, _ in items:
                out.append(ins); queue.append(key)
            out += extra_first.get((n, pos), [])
            if pos < 8: out += smB[16 + pos]
            elif smA: out += smA[pos]
            out += extra_last.get((n, pos), [])
    assert synced == 15, synced
    return out
```

```python
import sys, argparse, struct, math
from body import *

KN = "standalone__gqa_softmax__near_ridge_kernel"
NSLOT = 8
RING = NSLOT * SLOT
QBASE = RING
QPITCH = 288
QWAVE = 16 * QPITCH
RBASE = QBASE + 4 * QWAVE
RPITCH = 1088
LDS_BYTES = RBASE + 4 * RPITCH

WS_ML = 16 << 20
WS_FLAG = 24 << 20
WS_TS = 32 << 20
C_SCALE = struct.unpack("<I", struct.pack("<f", math.log2(math.e) / math.sqrt(128.0)))[0]
NTS = 16


class G:
    def __init__(self, opt):
        self.o = []
        self.opt = opt
    def __call__(self, s):
        if isinstance(s, list):
            for x in s: self(x)
            return
        for l in s.split("\n"):
            l = l.strip()
            if l:
                self.o.append(("" if l.endswith(":") else "    ") + l)
    def ts(self, idx):
        if self.opt.pts and idx >= 9:
            self.seen = getattr(self, "seen", set())
            if idx in self.seen: return
            self.seen.add(idx)
        if self.opt.ts:
            self(f"s_memrealtime s[{64+2*idx}:{65+2*idx}]" if self.opt.ts == 2 else f"s_memtime s[{64+2*idx}:{65+2*idx}]")
    def ts_store(self, widx):
        if not self.opt.ts: return
        self("s_waitcnt vmcnt(0) lgkmcnt(0)")
        if self.opt.probe:
            if widx == 0:
                i = self.opt.probe
                self(f"s_sub_u32 s40, s{64+2*i}, s64\ns_lshl_b32 s40, s40, 3")
                self("L_probe:\ns_sleep 8\ns_memrealtime s[42:43]\ns_waitcnt lgkmcnt(0)\ns_sub_u32 s41, s42, s64\ns_cmp_lt_u32 s41, s40\ns_cbranch_scc1 L_probe")
            return
        if self.opt.tsout:
            self("s_mov_b32 s28, s10\ns_mov_b32 s29, s11\ns_mov_b32 s30, 0x300000\ns_mov_b32 s31, 0x20000")
            self("s_lshl_b32 s42, s2, 3\ns_add_u32 s42, s42, s18\ns_lshl_b32 s42, s42, 6")
            for i in range(1, NTS):
                self(f"s_sub_u32 s{64+2*i}, s{64+2*i}, s64")
            self("v_mov_b32 v1, 0")
            for i in range(NTS):
                self(f"v_writelane_b32 v1, s{64+2*i}, {i}")
            self("v_and_b32 v1, 0x3fff, v1")
            self("v_lshrrev_b32 v2, 6, v1\nv_and_b32 v3, 63, v1\nv_cvt_f32_u32 v2, v2\nv_cvt_f32_u32 v3, v3\nv_cvt_pk_bf16_f32 v2, v2, v3")
            self("v_mbcnt_lo_u32_b32 v4, -1, 0\nv_lshlrev_b32 v4, 2, v4")
            self("s_mov_b64 exec, 0xffff")
            self("buffer_store_dword v2, v4, s[28:31], s42 offen")
            return
        self("s_mov_b32 s28, s14\ns_mov_b32 s29, s15\ns_mov_b32 s30, 0x10000000\ns_mov_b32 s31, 0x20000")
        self("s_lshl_b32 s42, s2, 3")
        self("s_add_u32 s42, s42, s18")
        self("s_lshl_b32 s42, s42, 6")
        self(f"s_add_u32 s42, s42, {WS_TS}")
        for i in range(NTS):
            self(f"v_mov_b32 v1, s{64+2*i}")
            self(f"buffer_store_dword v1, off, s[28:31], s42 offset:{4*i}")
            self("s_nop 1")


def xlane(g, a, t, op):
    g(f"v_mov_b32 v{t}, v{a}")
    g("s_nop 1")
    g(f"v_permlane32_swap_b32 v{a}, v{t}")
    g("s_nop 1")
    g(f"{op} v{a}, v{a}, v{t}")
    g(f"v_mov_b32 v{t}, v{a}")
    g("s_nop 1")
    g(f"v_permlane16_swap_b32 v{a}, v{t}")
    g("s_nop 1")
    g(f"{op} v{a}, v{a}, v{t}")


def xlane3(g, regs, tmps, op):
    for sw in ("v_permlane32_swap_b32", "v_permlane16_swap_b32"):
        for a, t in zip(regs, tmps): g(f"v_mov_b32 v{t}, v{a}")
        g("s_nop 0")
        for a, t in zip(regs, tmps): g(f"{sw} v{a}, v{t}")
        g("s_nop 0")
        for a, t in zip(regs, tmps): g(f"{op} v{a}, v{a}, v{t}")


def slow_path(g, opt):
    g("L_slow:")
    g("s_lshl_b32 s38, s16, 19")
    g("s_lshl_b32 s39, s17, 17")
    g("s_add_u32 s38, s38, s39")
    g("s_add_u32 s20, s6, s38\ns_addc_u32 s21, s7, 0\ns_mov_b32 s22, 0x20000\ns_mov_b32 s23, 0x20000")
    g("s_add_u32 s96, s8, s38\ns_addc_u32 s97, s9, 0\ns_mov_b32 s98, 0x20000\ns_mov_b32 s99, 0x20000")
    g("s_movk_i32 s38, 0x1000\ns_movk_i32 s39, 0x2000")
    g(f"v_mbcnt_lo_u32_b32 v{TMP2}, -1, 0")
    g(f"v_mbcnt_hi_u32_b32 v{TMP2}, -1, v{TMP2}")
    addr_setup(g, TMP2, 96)
    g("s_cmp_eq_u32 s19, 3\ns_cselect_b32 s42, 8, s19")
    g(f"s_mul_i32 s42, s42, {SLOT}")
    g(f"v_add_u32 v{KADDR}, s42, v{KADDR}")
    g(f"v_add_u32 v{VADDR}, s42, v{VADDR}")
    g(f"v_lshlrev_b32 v{TMP2}, 4, v{TMP2}")
    g("s_lshl_b32 s43, s17, 6")
    g(f"v_xor_b32 v{TMP3}, s43, v{TMP2}")
    for i in range(96): g(f"v_mov_b32 v{i}, 0")
    for i in range(6): g(f"v_mov_b32 v{L0+i}, 0")
    for b in range(3): g(f"v_mov_b32 v{C0+4*b}, 0x7f000000")
    g("s_mov_b32 s44, 0")
    g("L_slow_loop:")
    g("s_mov_b32 s45, s44")
    g("s_mov_b32 s46, s42")
    g("L_slow_ld:")
    g("s_mov_b32 m0, s46")
    g(f"s_add_u32 s47, s46, {TILE}")
    g(f"buffer_load_dwordx4 v{TMP2}, s[20:23], s45 offen lds")
    g("s_mov_b32 m0, s47")
    g(f"s_add_u32 s46, s46, {PIECE}")
    g(f"buffer_load_dwordx4 v{TMP3}, s[96:99], s45 offen lds")
    g("s_add_u32 s45, s45, 1024")
    g("s_and_b32 s47, s45, 0x1fff")
    g("s_cbranch_scc1 L_slow_ld")
    g("s_waitcnt vmcnt(0)")
    for i in range(8): g(kread(i, 0))
    for r in range(16): g(vread(r, 0))
    g("s_waitcnt lgkmcnt(0)")
    for b in range(3):
        c = C0 + 4 * b
        s = lambda i: f"v{S(0, i)}"
        for kb in range(2):
            for st in range(4):
                cc = "0" if st == 0 else Sq(0, kb)
                g(f"v_mfma_f32_16x16x32_bf16 {Sq(0,kb)}, {Ka(kb,st)}, {Qa(b,st)}, {cc}")
        g("s_nop 7")
        g(f"v_max3_f32 v{TMP0}, {s(0)}, {s(1)}, {s(2)}")
        g(f"v_max3_f32 v{TMP0}, v{TMP0}, {s(3)}, {s(4)}")
        g(f"v_max3_f32 v{TMP0}, v{TMP0}, {s(5)}, {s(6)}")
        g(f"v_max3_f32 v{TMP0}, v{TMP0}, {s(7)}, -v{c}")
        xlane(g, TMP0, TMP1, "v_max_f32")
        g(f"v_add_f32 v{TMP1}, v{c}, v{TMP0}")
        g(f"v_exp_f32 v{TMP1}, -v{TMP1}")
        g(f"v_sub_f32 v{c}, 0, v{TMP0}")
        for i in range(8): g(f"v_sub_f32 {s(i)}, {s(i)}, v{TMP0}")
        for i in range(8): g(f"v_exp_f32 {s(i)}, {s(i)}")
        g(f"v_mul_f32 v{L0+2*b}, v{L0+2*b}, v{TMP1}")
        for db in range(8):
            for r in range(4): g(f"v_mul_f32 v{O(db,b,r)}, v{O(db,b,r)}, v{TMP1}")
        for i in range(4): g(f"v_cvt_pk_bf16_f32 v{P(0,i)}, {s(2*i)}, {s(2*i+1)}")
        for i in range(8): g(f"v_add_f32 v{L0+2*b}, v{L0+2*b}, {s(i)}")
        for db in range(8):
            g(f"v_mfma_f32_16x16x32_bf16 {Oq(db,b)}, {Va(db)}, {Pq(0)}, {Oq(db,b)}")
    g("s_add_u32 s44, s44, 0x2000")
    g("s_cmp_lt_u32 s44, 0x20000")
    g("s_cbranch_scc1 L_slow_loop")
    g("s_nop 7")
    xlane3(g, [L0, L0 + 2, L0 + 4], [TMP0, TMP1, TMP2], "v_add_f32")
    g(f"v_mbcnt_lo_u32_b32 v{TMP3}, -1, 0")
    g(f"v_mbcnt_hi_u32_b32 v{TMP3}, -1, v{TMP3}")
    g(f"v_lshlrev_b32 v{TMP3}, 4, v{TMP3}")
    g(f"v_and_b32 v{TMP2}, 0xf0, v{TMP3}")
    g(f"v_mov_b32 v{TMP0}, 0")
    g(f"v_mov_b32 v100, v{C0}\nv_mov_b32 v101, v{C0+4}\nv_mov_b32 v102, v{C0+8}\nv_mov_b32 v103, 0")
    g(f"buffer_store_dwordx4 v[100:103], v{TMP2}, s[28:31], s59 offen offset:256 sc1")
    g(f"v_mov_b32 v96, v{L0}\nv_mov_b32 v97, v{L0+2}\nv_mov_b32 v98, v{L0+4}\nv_mov_b32 v99, 1")
    g(f"buffer_store_dwordx4 v[96:99], v{TMP2}, s[28:31], s59 offen sc1")
    for b in range(3):
        for x in range(1, 4):
            g(pack_ops(x, b))
            g(pay_store(x, b, opt))
    g("s_branch L_sent")


def pack_ops(x, b):
    o, p = O(2 * x, b), O(2 * x + 1, b)
    return [f"v_cvt_pk_bf16_f32 v{o}, v{o}, v{o+1}", f"v_cvt_pk_bf16_f32 v{o+1}, v{o+2}, v{o+3}",
            f"v_cvt_pk_bf16_f32 v{o+2}, v{p}, v{p+1}", f"v_cvt_pk_bf16_f32 v{o+3}, v{p+2}, v{p+3}"]

def pay_store(x, b, opt):
    if opt.exp_x1 and x > 1: return "s_nop 0"
    return f"buffer_store_dwordx4 {Oq(2*x, b)}, v{TMP3}, s[28:31], s{55+x} offen offset:{b*1024} {opt.stpol}"


def addr_setup(g, lane, t):
    g(f"v_and_b32 v{t}, 7, v{lane}")
    g(f"v_mul_u32_u24 v{t}, {PIECE}, v{t}")
    g(f"v_bfe_u32 v{t+1}, v{lane}, 3, 1")
    g(f"v_lshlrev_b32 v{t+1}, 8, v{t+1}")
    g(f"v_and_b32 v{t+2}, 48, v{lane}")
    g(f"v_add3_u32 v{KADDR}, v{t}, v{t+1}, v{t+2}")
    g(f"v_bfe_u32 v{t}, v{lane}, 2, 3")
    g(f"v_mul_u32_u24 v{t}, {PIECE}, v{t}")
    g(f"v_lshrrev_b32 v{t+1}, 5, v{lane}")
    g(f"v_lshlrev_b32 v{t+1}, 8, v{t+1}")
    g(f"v_and_b32 v{t+3}, 3, v{lane}")
    g(f"v_lshlrev_b32 v{t+3}, 3, v{t+3}")
    g(f"v_add3_u32 v{VADDR}, v{t}, v{t+1}, v{t+3}")
    g(f"v_add_u32 v{VADDR}, {TILE}, v{VADDR}")


def gen(opt):
    g = G(opt)
    kvpol, qpol = opt.kvpol, opt.qpol
    vpol = opt.vpol if opt.vpol is not None else kvpol
    g.o.append(f"; @launch grid=(256,1,1) block=(512,1,1) lds={LDS_BYTES}")
    g.o.append('.amdgcn_target "amdgcn-amd-amdhsa--gfx950"')
    g.o.append(".text")
    g.o.append(f".globl {KN}")
    g.o.append(".p2align 8")
    g.o.append(f".type {KN},@function")
    g(f"{KN}:")
    g("s_load_dwordx8 s[4:11], s[0:1], 0")
    g("s_load_dwordx4 s[12:15], s[0:1], 32")
    g.ts(0)
    g("s_cmp_ge_u32 s2, 256")
    g("s_cbranch_scc1 L_end")
    g("v_lshrrev_b32 v1, 6, v0")
    g("s_and_b32 s16, s2, 7")
    g("s_lshr_b32 s17, s2, 3")
    g("v_readfirstlane_b32 s18, v1")
    g("s_lshl_b32 s16, s16, 3")
    g("s_lshr_b32 s19, s17, 2")
    g("s_add_u32 s16, s16, s19")
    g("s_and_b32 s17, s17, 3")
    if opt.linear:
        g("s_lshr_b32 s16, s2, 2\ns_and_b32 s17, s2, 3")
    g(f"v_and_b32 v{TMP2}, 63, v0")
    g(f"v_lshlrev_b32 v{TMP3}, 4, v{TMP2}")
    g("s_and_b32 s19, s18, 3")
    g("s_mov_b32 s23, 0x20000")
    g("s_mov_b32 s27, 0x20000")
    g("s_mov_b32 s31, 0x20000")
    g("s_cmp_lt_u32 s18, 4")
    g("s_cbranch_scc1 L_compute")

    g("s_lshl_b32 s36, s19, 11")
    g("s_lshl_b32 s37, s17, 6")
    g(f"v_xor_b32 v2, s37, v{TMP3}")
    g(f"v_add_u32 v1, s36, v{TMP3}")
    g("v_add_u32 v2, s36, v2")
    g("s_lshl_b32 s38, s16, 19")
    g("s_lshl_b32 s39, s17, 17")
    g("s_add_u32 s39, s38, s39")
    g(f"s_mul_i32 s42, s19, {2*PIECE}")
    g("s_mov_b32 s22, 0x20000")
    g("s_mov_b32 s26, 0x20000")
    g("s_movk_i32 s30, 0x1000")
    g(f"s_mul_i32 s44, s19, {RPITCH}")
    g(f"s_add_u32 m0, s44, {RBASE}")
    g(f"v_and_b32 v5, 48, v{TMP2}")
    g(f"v_xor_b32 v5, v5, v{TMP3}")
    g("s_lshl_b32 s45, s19, 10")
    if opt.rot:
        g(f"s_lshr_b32 s41, s2, {opt.rot - 1}\ns_and_b32 s41, s41, 15\ns_lshl_b32 s41, s41, 13")
    else:
        g("s_mov_b32 s41, 0")
    g("s_lshl_b32 s46, s16, 9")
    g("s_lshl_b32 s47, s17, 2")
    g("s_add_u32 s46, s46, s47")
    g(f"s_add_u32 s46, s46, {WS_FLAG}")
    g(f"v_and_b32 v3, 3, v{TMP2}")
    g("v_lshlrev_b32 v3, 7, v3")
    g(f"v_lshlrev_b32 v13, 2, v{TMP2}")
    g("s_mov_b32 s34, 0x10000000")
    g("s_mov_b32 s35, 0x20000")
    g("s_mov_b32 s50, 256")
    g("s_mov_b32 s51, 0x20000")
    g("s_waitcnt lgkmcnt(0)")
    g("s_add_u32 s28, s6, s38")
    g("s_addc_u32 s29, s7, 0")
    g("buffer_load_dwordx4 v5, s[28:31], s45 offen lds")
    g(f"s_add_u32 m0, s42, {7*SLOT}")
    g("s_add_u32 s20, s6, s39")
    g("s_addc_u32 s21, s7, 0")
    g(f"buffer_load_dwordx4 v1, s[20:23], s41 offen {kvpol} lds")
    g(f"s_add_u32 m0, s42, {7*SLOT+32}")
    g("s_add_u32 s24, s8, s39")
    g("s_addc_u32 s25, s9, 0")
    g(f"buffer_load_dwordx4 v1, s[20:23], s41 offen offset:1024 {kvpol} lds")
    g("s_mov_b32 s32, s14")
    g("s_mov_b32 s33, s15")
    g("s_mov_b32 s48, s12")
    g("s_mov_b32 s49, s13")
    if opt.hs == "loader":
        g("s_cmp_lg_u32 s19, 0")
        g("s_cbranch_scc1 L_nohs1")
        g(f"buffer_load_dword v4, v3, s[32:35], s46 offen {opt.stalepol}")
        g("L_nohs1:")
    g("s_barrier")
    g.ts(1)
    def hs2():
        if opt.hs != "loader": return
        g("s_cmp_lg_u32 s19, 0")
        g("s_cbranch_scc1 L_nohs2")
        g("v_and_b32 v4, 1, v4")
        g("v_cmp_eq_u32 vcc, 0, v4")
        g("s_getreg_b32 s46, hwreg(HW_REG_XCC_ID)")
        g("s_and_b32 s46, s46, 7")
        g("s_lshl_b32 s46, s46, 4")
        g("s_and_b32 s47, vcc_lo, 15")
        g("s_or_b32 s46, s46, s47")
        g("s_or_b32 s46, s46, 0x80")
        g("s_lshl_b32 s47, s17, 3")
        g("s_lshl_b32 s46, s46, s47")
        g("v_mov_b32 v4, s46")
        g("s_lshl_b32 s47, s16, 2")
        g("s_mov_b64 exec, 1")
        g("buffer_atomic_or v4, off, s[48:51], s47 sc1")
        g("s_mov_b64 exec, -1")
        g("L_nohs2:")
    def pair(u):
        slot = (u & 7) * SLOT
        if u < 15:
            g(f"s_add_u32 m0, s42, {slot}")
            g("s_add_u32 s40, s41, 0x2000")
            if opt.rot: g("s_and_b32 s40, s40, 0x1ffff")
            g(f"buffer_load_dwordx4 v1, s[20:23], s40 offen {kvpol} lds")
            g(f"s_add_u32 m0, s42, {slot+32}")
            g("s_nop 0")
            g(f"buffer_load_dwordx4 v1, s[20:23], s40 offen offset:1024 {kvpol} lds")
        g(f"s_add_u32 m0, s42, {slot+TILE}")
        g("s_nop 0")
        g(f"buffer_load_dwordx4 v2, s[24:27], s41 offen {vpol} lds")
        g(f"s_add_u32 m0, s42, {slot+TILE+32}")
        g("s_nop 0")
        g(f"buffer_load_dwordx4 v2, s[24:27], s41 offen offset:1024 {vpol} lds")
        g("s_mov_b32 s41, s40")
    sched = [int(x) for x in opt.sched.split(",")]
    cnt = [0]
    def tr():
        if not opt.trace: return
        g("s_memrealtime s[60:61]\ns_waitcnt lgkmcnt(0)")
        g(f"v_writelane_b32 v10, s60, {cnt[0]}")
        cnt[0] += 1
    if opt.trace:
        g("s_waitcnt lgkmcnt(0)")
        g("v_writelane_b32 v10, s64, 63")
    issued = [0]
    queue = []
    def issue(n, limit):
        for _ in range(n):
            u = issued[0]
            if u >= 16 or u > limit: break
            pair(u); issued[0] += 1
            queue.extend([u] * (4 if u < 15 else 2))
    def wait_for(t):
        n = sum(1 for x in queue if x > t)
        g(f"s_waitcnt vmcnt({n})")
    issue(sched[0], 6)
    tr(); g.ts(2)
    wait_for(-1)
    tr(); g.ts(3)
    g("s_barrier")
    tr()
    issue(sched[1], 6)
    for t in range(16):
        tr()
        assert issued[0] > t
        wait_for(t)
        tr()
        g("s_barrier")
        tr()
        if t == opt.hs_at:
            hs2()
        issue(sched[min(t + 2, len(sched) - 1)], t + 7)
        if opt.prewarm is not None and opt.pw_at <= t < opt.pw_at + 3:
            i = t - opt.pw_at
            if i == 0:
                g("s_lshl_b32 s36, s16, 2\ns_add_u32 s36, s36, s19\ns_lshl_b32 s36, s36, 2\ns_add_u32 s36, s36, s17")
                g("s_mul_i32 s37, s36, 9216")
                g(f"s_lshl_b32 s38, s36, 9\ns_add_u32 s38, s38, {WS_ML}")
                g(f"buffer_load_dword v12, v{TMP2}, s[32:35], s38 offen {opt.prewarm}".replace(f"v{TMP2},", "v13,"))
                queue.append(99)
            for k in range(3):
                g(f"buffer_load_dwordx4 v[{16+4*k}:{19+4*k}], v{TMP3}, s[32:35], s37 offen offset:{k*1024} {opt.prewarm}")
                queue.append(99)
            g("s_add_u32 s37, s37, 3072")
    if opt.trace:
        g("s_mov_b32 s28, s14\ns_mov_b32 s29, s15\ns_mov_b32 s30, 0x10000000\ns_mov_b32 s31, 0x20000")
        g("s_lshl_b32 s42, s2, 2\ns_add_u32 s42, s42, s19\ns_lshl_b32 s42, s42, 8")
        g(f"s_add_u32 s42, s42, {WS_TS + (1<<20)}")
        g(f"v_lshrrev_b32 v11, 2, v{TMP3}")
        g("buffer_store_dword v10, v11, s[28:31], s42 offen")
    g.ts_store(1)
    g("s_endpgm")

    g("L_compute:")
    g("s_lshl_b32 s36, s16, 2")
    g("s_add_u32 s36, s36, s19")
    g("s_mul_i32 s37, s36, 12288")
    g("s_mov_b32 s22, 12288")
    g("s_movk_i32 s38, 0x1000")
    g("s_movk_i32 s39, 0x2000")
    def setup():
        addr_setup(g, TMP2, 100)
        g(f"s_mul_i32 s42, s19, {QWAVE}")
        g(f"s_add_u32 s42, s42, {QBASE}")
        g(f"v_lshrrev_b32 v103, 4, v{TMP2}")
        g(f"v_mul_u32_u24 v105, {QPITCH}, v103")
        g(f"v_and_b32 v107, 15, v{TMP2}")
        g("v_lshlrev_b32 v108, 4, v107")
        g("v_add3_u32 v105, v105, v108, s42")
        g(f"v_mul_u32_u24 v106, {QPITCH}, v107")
        g("v_add3_u32 v106, v106, v102, s42")
        g(f"v_bfe_u32 v107, v{TMP2}, 2, 2")
        g(f"v_mul_u32_u24 v107, {RPITCH}, v107")
        g(f"v_and_b32 v109, 3, v{TMP2}")
        g("v_xor_b32 v110, v109, v103")
        g("v_lshlrev_b32 v110, 4, v110")
        g("v_lshlrev_b32 v109, 8, v109")
        g("v_add3_u32 v107, v107, v109, v110")
        g(f"v_add_u32 v107, {RBASE}, v107")
        g(f"v_and_b32 v111, 3, v{TMP2}")
        g("v_lshlrev_b32 v111, 7, v111")
        g("s_lshl_b32 s46, s16, 9\ns_lshl_b32 s47, s17, 2\ns_add_u32 s46, s46, s47")
        g(f"s_add_u32 s47, s46, {WS_FLAG}")
        g("s_cmp_eq_u32 s19, 0\ns_cselect_b32 s63, 2, 99")
        g(f"v_mov_b32 v{TMP2}, v108")
        for i in range(48, 96): g(f"v_mov_b32 v{i}, 0")
        for i in range(6): g(f"v_mov_b32 v{L0+i}, 0")
        g(f"s_mov_b32 s52, 0x{C_SCALE:08x}")
        g(f"s_mov_b32 s53, 0x{C_SCALE:08x}")
        g("s_mov_b32 s51, 0xffff0000")
        g(f"v_add_u32 v{TMP0}, {7*SLOT}, v{KADDR}")
        g(f"s_mov_b32 s54, {2*SLOT}")
        g("s_mov_b32 s44, 0")
        g("s_lshl_b32 s40, s36, 2")
        for x in range(1, 4):
            g(f"s_xor_b32 s42, s17, {x}")
            g("s_add_u32 s42, s42, s40")
            g(f"s_mul_i32 s{55+x}, s42, 9216")
            if x > 1: g(f"s_add_u32 s{55+x}, s{55+x}, {(x-1)*3072}")
        g("s_add_u32 s42, s40, s17")
        g("s_lshl_b32 s59, s42, 9")
        g(f"s_add_u32 s59, s59, {WS_ML}")
        g("s_mul_i32 s60, s42, 9216")
        g("s_lshl_b32 s61, s36, 7")
        g(f"s_add_u32 s61, s61, {WS_FLAG}")
        g("s_lshl_b32 s62, s16, 2")
        g("s_mov_b32 s26, 12288")
        g("s_mov_b32 s30, 0x10000000")
        g("s_mov_b32 s34, 256")
        g("s_mov_b32 s35, 0x20000")
        g("s_mov_b32 s48, 0x3f80")
        g("s_mov_b32 s49, 0x3f800000")
    if opt.setup == "early": setup()
    if opt.ramp:
        for i in range(8):
            g(f"v_mul_u32_u24 v{112+i}, {0x9e37 + 977*i}, v{TMP3}")
            g(f"v_xor_b32 v{112+i}, 0x3f5a3e91, v{112+i}")
            g(f"v_and_b32 v{112+i}, 0xbfffbfff, v{112+i}")
        for i in range(opt.ramp):
            g(f"v_mfma_f32_16x16x32_bf16 v[{120+4*(i%3)}:{123+4*(i%3)}], v[{112+4*(i&1)}:{115+4*(i&1)}], v[{116-4*(i&1)}:{119-4*(i&1)}], 0")
            if opt.rampgap: g(f"s_nop {opt.rampgap}")
    g.ts(2)
    g("s_waitcnt lgkmcnt(0)")
    g("s_add_u32 s20, s4, s37")
    g("s_addc_u32 s21, s5, 0")
    for i in range(12):
        so = ["0", "s38", "s39"][i // 4]
        g(f"buffer_load_dwordx4 v[{4*i}:{4*i+3}], v{TMP3}, s[20:23], {so} offen offset:{(i%4)*1024} {qpol}")
    g("s_barrier")
    g.ts(1)
    if opt.tsout:
        g("s_add_u32 s24, s14, s37\ns_addc_u32 s25, s15, 0\ns_add_u32 s24, s24, 0x2800000\ns_addc_u32 s25, s25, 0")
    else:
        g("s_add_u32 s24, s10, s37")
        g("s_addc_u32 s25, s11, 0")
    if opt.setup != "early": setup()
    g("s_mov_b32 s28, s14")
    g("s_mov_b32 s29, s15")
    g("s_mov_b32 s32, s12")
    g("s_mov_b32 s33, s13")
    QX = 0
    if opt.hs == "loop":
        g(f"buffer_load_dword v{TMP1}, v111, s[28:31], s47 offen {opt.stalepol}")
        QX = 1
    def qscale_ops(b):
        out = []
        for i in range(4):
            li = b * 4 + i
            grp = [f"s_waitcnt vmcnt({11-li+QX})"]
            for r in range(4): grp += [f"v_lshlrev_b32 v{112+2*r}, 16, v{4*li+r}", f"v_and_b32 v{113+2*r}, s51, v{4*li+r}"]
            for r in range(4): grp.append(f"v_pk_mul_f32 v[{112+2*r}:{113+2*r}], v[{112+2*r}:{113+2*r}], s[52:53]")
            for r in range(4): grp.append(f"v_cvt_pk_bf16_f32 v{4*li+r}, v{112+2*r}, v{113+2*r}")
            grp.append(f"ds_write_b128 v105, v[{4*li}:{4*li+3}] offset:{i*4*QPITCH}")
            out.append(grp)
        out.append([f"ds_read_b128 {Qa(b,s)}, v106 offset:{64*s}" for s in range(4)])
        return out
    def pp_mfma(b, s):
        c = "0" if s == 0 else Cq(b)
        return f"v_mfma_f32_16x16x32_bf16 {Cq(b)}, {Va(s)}, {Qa(b,s)}, {c}"
    for grp in qscale_ops(0): g(grp)
    g.ts(3)
    for grp in qscale_ops(1): g(grp)
    for grp in qscale_ops(2): g(grp)
    zero = [f"v_mov_b32 v{i}, 0" for i in range(48)]
    g(zero[:32])
    g.ts(4)
    g("s_barrier")
    g.ts(5)
    for s in range(4):
        g(f"ds_read_b128 {Va(s)}, v107 offset:{64*s}")
    k0r = [f"ds_read_b128 {Ka(kb,s)}, v{TMP0} offset:{kb*512 + s*64}" for kb in range(2) for s in range(4)]
    g(k0r[:4])
    g(zero[32:40])
    g("s_waitcnt lgkmcnt(4)")
    if opt.pts: g.ts(9)
    pm = [pp_mfma(b, s) for b in range(3) for s in range(4)]
    qk0 = [m.replace(Cq(0), "0") for m in slot_mfmas(5)[:8]]
    class Lst(list):
        def __call__(self, x): self.append(x)
    red = Lst()
    for b in range(3):
        c = C0 + 4 * b
        red += [f"v_max3_f32 v{c}, v{c}, v{c+1}, v{c+2}", f"v_max_f32 v{c}, v{c}, v{c+3}"]
    xlane3(red, [C0, C0 + 4, C0 + 8], [C0 + 1, C0 + 5, C0 + 9], "v_max_f32")
    for i in range(12):
        g(pm[i])
        if i < 4: g(k0r[4 + i])
        elif i < 8: g(zero[40 + 2 * (i - 4):42 + 2 * (i - 4)])
        elif i >= 10: g(red[2 * (i - 10):2 * (i - 10) + 2])
    if opt.pts: g.ts(10)
    g("s_waitcnt lgkmcnt(0)")
    rest = red[4:]
    for i in range(8):
        g(qk0[i])
        if i == 3: g("s_nop 2")
        if i >= 3: g(rest[(i - 3) * len(rest) // 5:(i - 2) * len(rest) // 5])
    if opt.pts: g.ts(11)
    g("s_barrier")
    if opt.pts: g.ts(12)
    for r in range(8): g(vread(r, 0))
    for i in range(8): g(f"v_sub_f32 v{S(0,i)}, v{S(0,i)}, v{C0}")
    smA = softmax_ops(6, "add")
    neg = []
    for b in (1, 2, 0):
        c = C0 + 4 * b
        for i in (1, 2, 3, 0):
            neg.append(f"v_sub_f32 v{c+i}, 0, v{c}")
    side = [f"v_mov_b32 v108, v{C0}", f"v_mov_b32 v109, v{C0+4}", f"v_mov_b32 v110, v{C0+8}",
            f"buffer_store_dwordx4 v[108:111], v{TMP2}, s[28:31], s59 offen offset:256 sc1"]
    for i in range(8):
        g(smA[8 + i])
        g(neg[i * 12 // 8:(i + 1) * 12 // 8])
    g(side)
    g.ts(6)
    g("s_branch L_k0")
    NT = opt.nt
    niter = 8 - NT // 2 if NT else 8
    slots = loop_body("add", rotated=True, niter=niter, vlast=int(opt.vlast, 0), klast=int(opt.klast, 0))
    def padded(sl, pad):
        res = {}
        for k in sl:
            out, cnt = [], 0
            for l in sl[k]:
                out.append(l)
                if l.startswith("v_exp"):
                    n = pad // 8 + (1 if cnt < pad % 8 else 0)
                    if n: out.append(f"s_nop {n-1}")
                    cnt += 1
            res[k] = out
        return res
    if opt.split:
        s1 = padded(loop_body("add", rotated=True, niter=opt.split), opt.pad)
        s2 = padded(slots, opt.pad2)
        g("L_loop:")
        g(s1[4]); g(s1[-1])
        g("L_k0:")
        for k in range(4): g(s1[k])
        g("s_cbranch_scc1 L_loop")
        g("L_loop2:")
        g(s2[4]); g(s2[-1])
        for k in range(4): g(s2[k])
        g("s_cbranch_scc1 L_loop2")
    else:
        slots = padded(slots, opt.pad)
        g("L_loop:")
        g(slots[4]); g(slots[-1])
        g("L_k0:")
        for k in range(4): g(slots[k])
        g("s_cbranch_scc1 L_loop")
    g.ts(7)
    T0 = 16 - NT
    units = [(t, b) for t in range(T0) for b in range(3)] + [(t, b) for t in range(T0, 16) for b in range(2)] + [(t, 2) for t in range(T0, 16)]
    n0 = 6 * (niter - 1) + 4
    base = (2 * (niter - 1)) & 7
    first, last = {}, {}
    kslot0, vslot0 = base + 1, base + 2
    if NT:
        g(f"v_add_u32 v{KADDR}, {SLOT}, v{KADDR}")
        g(f"v_add_u32 v{VADDR}, {2*SLOT}, v{VADDR}")
    g(f"buffer_load_dword v{TMP0}, off, s[32:35], s62 sc1")
    fin = {b: max(n for n in range(48) if units[n][1] == b) for b in range(3)}
    for b in range(2):
        n = fin[b] + 1
        for x in range(1, 4):
            ops = pack_ops(x, b)
            if n < 47:
                gp = {1: (3, 4), 2: (6, 6), 3: (7, 7)}[x]
                last.setdefault((n, gp[0]), []).extend(ops[:2]); last.setdefault((n, gp[1]), []).extend(ops[2:])
                first.setdefault((n, gp[1] + 1), []).append(pay_store(x, b, opt))
            else:
                last.setdefault((n, 2 * x - 1), []).extend(ops + [pay_store(x, b, opt)])
    lred = Lst()
    for b in range(3): lred(f"v_add_f32 v{96+b}, v{L0+2*b}, v{L0+2*b+1}")
    xlane3(lred, [96, 97, 98], [100, 101, 102], "v_add_f32")
    lred("v_mov_b32 v99, 0")
    lred(f"buffer_store_dwordx4 v[96:99], v{TMP2}, s[28:31], s59 offen {opt.stpol}")
    lred(f"v_add_f32 v{TMP1}, v96, v97")
    lred("s_mov_b32 s50, " + ("0x5f800000" if not opt.force_fb else "0x00000000"))
    lred(f"v_add_f32 v{TMP1}, v{TMP1}, v98")
    lred(f"v_cmp_nlt_f32 vcc, v{TMP1}, s50")
    for i in range(5):
        last.setdefault((47, 8 + i), []).extend(lred[i * len(lred) // 5:(i + 1) * len(lred) // 5])
    last.setdefault((47, 13), []).extend(pack_ops(1, 2) + [pay_store(1, 2, opt)])
    last.setdefault((47, 15), []).extend(pack_ops(2, 2) + [pay_store(2, 2, opt)] + pack_ops(3, 2) + [pay_store(3, 2, opt)])
    last.setdefault((47, 7), []).append("s_nop 0")
    g(tail_slots(n0, units, kslot0, vslot0, 2 * niter - 1, first, last, pv_last=[2, 3, 4, 5, 6, 7, 0, 1]))
    g.ts(8)
    g("s_cbranch_vccz L_sent")
    g("s_waitcnt vmcnt(0)")
    g("s_branch L_slow")
    g("L_sent:")
    g("s_mov_b32 s47, 0x100000")
    g(f"s_waitcnt vmcnt({4 if opt.exp_x1 else 10})")
    g("L_hs:")
    g(f"v_readfirstlane_b32 s44, v{TMP0}")
    g("s_and_b32 s45, s44, 0x80808080")
    g("s_cmp_eq_u32 s45, 0x80808080")
    g("s_cbranch_scc0 L_hs_retry")
    g("L_hs_ok:")
    g("s_lshr_b32 s45, s44, 8")
    g("s_xor_b32 s45, s45, s44")
    g("s_and_b32 s45, s45, 0x00707070")
    if opt.force_slow:
        g("s_mov_b32 s45, 1")
    g(f"v_bfe_u32 v100, v{TMP3}, 4, 2")
    g("v_lshlrev_b32 v101, 3, v100")
    g("v_add_u32 v101, s19, v101")
    g("v_lshrrev_b32 v101, v101, s44")
    g("v_and_b32 v101, 1, v101")
    g("v_lshlrev_b32 v100, 2, v100")
    g("s_lshl_b32 s46, s17, 3")
    g("s_add_u32 s46, s46, s19")
    g("s_lshr_b32 s46, s44, s46")
    g("s_and_b32 s46, s46, 1")
    g("v_mov_b32 v102, s46")
    g("s_lshl_b32 s46, s17, 2")
    g("s_add_u32 s46, s46, s61")
    for x in range(1, 4):
        g(f"s_xor_b32 s{55+x}, s59, {x<<9}")
    g("s_mov_b32 s47, 0x100000")
    g("s_cmp_lg_u32 s45, 0")
    g.ts(9)
    g("s_waitcnt vmcnt(0)")
    g.ts(10)
    g("s_cbranch_scc1 L_xcd_flag")
    g(f"buffer_store_dword v102, off, s[28:31], s46 {opt.flagpol}")
    g("L_poll:")
    g(f"buffer_load_dword v103, v100, s[28:31], s61 offen {opt.pollpol}")
    g("s_waitcnt vmcnt(0)")
    g("v_and_b32 v103, 1, v103")
    g("v_cmp_ne_u32 vcc, v103, v101")
    g("s_cbranch_vccz L_poll_ok")
    g("s_sub_u32 s47, s47, 1")
    g("s_cbranch_scc0 L_poll")
    g("L_poll_ok:")
    g.ts(11)
    lp = opt.ldpol
    LR = lambda x: 100 + 4 * x
    PR = lambda x, b: 24 + ((x - 1) * 3 + b) * 4
    for x in range(1, 4):
        g(f"buffer_load_dwordx4 v[{LR(x)}:{LR(x)+3}], v{TMP2}, s[28:31], s{55+x} offen {lp}")
    for x in range(1, 4):
        for b in range(3):
            if opt.exp_x1 and x < 3: continue
            g(f"buffer_load_dwordx4 v[{PR(x,b)}:{PR(x,b)+3}], v{TMP3}, s[28:31], s60 offen offset:{b*1024} {lp}")
        if x < 3 and not opt.exp_x1: g("s_add_u32 s60, s60, 3072")
    g(f"v_bfe_u32 v132, v{TMP3}, 4, 4")
    g("v_lshlrev_b32 v132, 8, v132")
    if opt.out4:
        g(f"v_bfe_u32 v133, v{TMP3}, 8, 1\nv_lshlrev_b32 v133, 5, v133")
        g(f"v_bfe_u32 v134, v{TMP3}, 9, 1\nv_lshl_add_u32 v133, v134, 4, v133")
    else:
        g(f"v_lshrrev_b32 v133, 8, v{TMP3}")
        g("v_lshlrev_b32 v133, 3, v133")
    g("s_lshl_b32 s42, s17, 6")
    g("v_add3_u32 v132, v132, v133, s42")
    g(f"s_waitcnt vmcnt({3 if opt.exp_x1 else 9})")
    g.ts(12)
    g(f"v_or3_b32 v99, v99, v{LR(1)+3}, v{LR(2)+3}")
    g(f"v_or_b32 v99, v99, v{LR(3)+3}")
    g("v_cmp_ne_u32 vcc, 0, v99")
    g("s_cbranch_vccnz L_general")
    for x in range(1, 4):
        for b in range(3):
            g(f"v_add_f32 v{96+b}, v{96+b}, v{LR(x)+b}")
    for b in range(3): g(f"v_rcp_f32 v{96+b}, v{96+b}")
    def acc_reg(b, i): return O(i // 4, b, i % 4)
    for x in range(3 if opt.exp_x1 else 1, 4):
        for b in range(3):
            g(f"s_waitcnt vmcnt({9 - ((x-1)*3 + b) - 1})")
            if x == 3 and b == 2: g.ts(13)
            for r in range(4):
                src = PR(x, b) + r
                if opt.dot:
                    g(f"v_dot2c_f32_bf16 v{acc_reg(b,2*r)}, s48, v{src}")
                    g(f"v_dot2c_f32_bf16 v{acc_reg(b,2*r+1)}, s49, v{src}")
                else:
                    t = 116 + 2 * (r & 1)
                    g(f"v_lshlrev_b32 v{t}, 16, v{src}")
                    g(f"v_and_b32 v{t+1}, s51, v{src}")
                    g(f"v_pk_add_f32 v[{acc_reg(b,2*r)}:{acc_reg(b,2*r+1)}], v[{acc_reg(b,2*r)}:{acc_reg(b,2*r+1)}], v[{t}:{t+1}]")
            if x == 3:
                if opt.dot: g("s_nop 2")
                out_store(g, b, 96 + b, opt)
    g("L_done:")
    g.ts(14)
    if opt.ts:
        g("s_waitcnt vmcnt(0)")
        g.ts(15)
    g.ts_store(0)
    g("L_end:")
    g("s_endpgm")
    if opt.hs == "loop":
        g("L_hs2:")
        g("s_waitcnt vmcnt(0)")
        g(f"v_and_b32 v{TMP1}, 1, v{TMP1}")
        g(f"v_cmp_eq_u32 vcc, 0, v{TMP1}")
        g("s_getreg_b32 s46, hwreg(HW_REG_XCC_ID)")
        g("s_and_b32 s46, s46, 7")
        g("s_lshl_b32 s46, s46, 4")
        g("s_and_b32 s47, vcc_lo, 15")
        g("s_or_b32 s46, s46, s47")
        g("s_or_b32 s46, s46, 0x80")
        g("s_lshl_b32 s47, s17, 3")
        g("s_lshl_b32 s46, s46, s47")
        g(f"v_mov_b32 v{TMP1}, s46")
        g("s_mov_b64 exec, 1")
        g(f"buffer_atomic_or v{TMP1}, off, s[32:35], s62 sc1")
        g("s_mov_b64 exec, -1")
        g("s_branch L_hs2_ret")
    g("L_hs_retry:")
    g("s_sleep 2")
    g(f"buffer_load_dword v{TMP0}, off, s[32:35], s62 sc1")
    g("s_sub_u32 s47, s47, 1")
    g("s_waitcnt vmcnt(0)")
    g("s_cbranch_scc0 L_hs")
    g("s_branch L_hs_ok")
    g("L_xcd_flag:")
    g("buffer_store_dword v102, off, s[28:31], s46 sc1")
    g("L_poll2:")
    g("buffer_load_dword v103, v100, s[28:31], s61 offen sc1")
    g("s_waitcnt vmcnt(0)")
    g("v_and_b32 v103, 1, v103")
    g("v_cmp_ne_u32 vcc, v103, v101")
    g("s_cbranch_vccz L_poll_ok")
    g("s_sub_u32 s47, s47, 1")
    g("s_cbranch_scc0 L_poll2")
    g("s_branch L_poll_ok")
    g("L_general:")
    CR = lambda x: 60 + 4 * x
    for x in range(1, 4):
        g(f"buffer_load_dwordx4 v[{CR(x)}:{CR(x)+3}], v{TMP2}, s[28:31], s{55+x} offen offset:256 sc1")
    for b in range(3): g(f"v_mov_b32 v{CR(0)+b}, v{C0+4*b}")
    g("s_waitcnt vmcnt(0)")
    for b in range(3):
        g(f"v_min3_f32 v100, v{CR(0)+b}, v{CR(1)+b}, v{CR(2)+b}")
        g(f"v_min_f32 v100, v100, v{CR(3)+b}")
        for x in range(4): g(f"v_sub_f32 v{CR(x)+b}, v100, v{CR(x)+b}")
        for x in range(4): g(f"v_exp_f32 v{CR(x)+b}, v{CR(x)+b}")
        g("s_nop 0")
        g(f"v_mul_f32 v{96+b}, v{96+b}, v{CR(0)+b}")
        for x in range(1, 4): g(f"v_fmac_f32 v{96+b}, v{CR(x)+b}, v{LR(x)+b}")
    for b in range(3): g(f"v_rcp_f32 v{96+b}, v{96+b}")
    for b in range(3):
        for i in range(8): g(f"v_mul_f32 v{acc_reg(b,i)}, v{acc_reg(b,i)}, v{CR(0)+b}")
        for x in range(1, 4):
            for r in range(4):
                src = PR(x, b) + r
                g(f"v_lshlrev_b32 v116, 16, v{src}")
                g(f"v_and_b32 v117, s51, v{src}")
                g(f"v_fmac_f32 v{acc_reg(b,2*r)}, v116, v{CR(x)+b}")
                g(f"v_fmac_f32 v{acc_reg(b,2*r+1)}, v117, v{CR(x)+b}")
        out_store(g, b, 96 + b, opt)
    g("s_branch L_done")
    slow_path(g, opt)
    g.o.append(f""".section .rodata,"a"
.p2align 6
.amdhsa_kernel {KN}
  .amdhsa_next_free_vgpr {NV+NA}
  .amdhsa_next_free_sgpr 102
  .amdhsa_accum_offset {NV}
  .amdhsa_group_segment_fixed_size 0
  .amdhsa_kernarg_size 48
  .amdhsa_user_sgpr_count 2
  .amdhsa_user_sgpr_kernarg_segment_ptr 1
  .amdhsa_system_sgpr_workgroup_id_x 1
.end_amdhsa_kernel""")
    return "\n".join(g.o) + "\n"


def out_store(g, b, rl, opt):
    o, p = O(0, b), O(1, b)
    so = ["0", "s38", "s39"][b]
    for r in range(4): g(f"v_mul_f32 v{o+r}, v{o+r}, v{rl}")
    for r in range(4): g(f"v_mul_f32 v{p+r}, v{p+r}, v{rl}")
    if opt.out4:
        g(f"v_cvt_pk_bf16_f32 v{o}, v{o}, v{o+1}")
        g(f"v_cvt_pk_bf16_f32 v{o+1}, v{o+2}, v{o+3}")
        g(f"v_cvt_pk_bf16_f32 v{o+2}, v{p}, v{p+1}")
        g(f"v_cvt_pk_bf16_f32 v{o+3}, v{p+2}, v{p+3}")
        g("s_nop 0")
        g(f"v_permlane16_swap_b32 v{o}, v{o+2}")
        g(f"v_permlane16_swap_b32 v{o+1}, v{o+3}")
        g("s_nop 0")
        g(f"buffer_store_dwordx4 v[{o}:{o+3}], v132, s[24:27], {so} offen {opt.outpol}")
        return
    for h in range(2):
        o = O(h, b)
        g(f"v_cvt_pk_bf16_f32 v{o}, v{o}, v{o+1}")
        g(f"v_cvt_pk_bf16_f32 v{o+1}, v{o+2}, v{o+3}")
        g(f"buffer_store_dwordx2 v[{o}:{o+1}], v132, s[24:27], {so} offen offset:{32*h} {opt.outpol}")


if __name__ == "__main__":
    ap = argparse.ArgumentParser()
    ap.add_argument("-o", default="standalone__gqa_softmax__near_ridge.s")
    ap.add_argument("--kvpol", default="nt")
    ap.add_argument("--qpol", default="nt")
    ap.add_argument("--stpol", default="sc1")
    ap.add_argument("--ldpol", default="sc1")
    ap.add_argument("--outpol", default="")
    ap.add_argument("--ts", type=int, default=0)
    ap.add_argument("--vlast", default="0")
    ap.add_argument("--klast", default="0")
    ap.add_argument("--split", type=int, default=0)
    ap.add_argument("--pad2", type=int, default=0)
    ap.add_argument("--ramp", type=int, default=0)
    ap.add_argument("--rampgap", type=int, default=0)
    ap.add_argument("--pad", type=int, default=0)
    ap.add_argument("--out4", type=int, default=1)
    ap.add_argument("--pw_at", type=int, default=11)
    ap.add_argument("--nt", type=int, default=0)
    ap.add_argument("--sched", default="2,2,1")
    ap.add_argument("--rot", type=int, default=0)
    ap.add_argument("--hs_at", type=int, default=2)
    ap.add_argument("--probe", type=int, default=0)
    ap.add_argument("--vpol", default=None)
    ap.add_argument("--hs", default="loader")
    ap.add_argument("--setup", default="early")
    ap.add_argument("--tsout", type=int, default=0)
    ap.add_argument("--pts", type=int, default=0)
    ap.add_argument("--exp_x1", type=int, default=0)
    ap.add_argument("--exp_2x", type=int, default=0)
    ap.add_argument("--prewarm", default=None)
    ap.add_argument("--linear", type=int, default=0)
    ap.add_argument("--trace", type=int, default=0)
    ap.add_argument("--pollpol", default="nt")
    ap.add_argument("--stalepol", default="")
    ap.add_argument("--dot", type=int, default=1)
    ap.add_argument("--flagpol", default="")
    ap.add_argument("--depth", type=int, default=3)
    ap.add_argument("--init_pairs", type=int, default=2)
    ap.add_argument("--force_slow", type=int, default=0)
    ap.add_argument("--force_fb", type=int, default=0)
    opt = ap.parse_args()
    open(opt.o, "w").write(gen(opt))
```

```python
PIECE = 1056
TILE = 8 * PIECE
SLOT = 2 * TILE

def O(db, b, r=0): return (db * 3 + b) * 4 + r
def Oq(db, b): x = O(db, b); return f"v[{x}:{x+3}]"
S0 = 96
def S(par, i): return S0 + par * 8 + i
def Sq(par, kb): x = S(par, kb * 4); return f"v[{x}:{x+3}]"
P0 = 112
def P(par, i): return P0 + par * 4 + i
def Pq(par): x = P(par, 0); return f"v[{x}:{x+3}]"
C0 = 120
def Cq(b): x = C0 + 4 * b; return f"v[{x}:{x+3}]"
L0 = 132
KADDR, VADDR = 138, 139
TMP0, TMP1, TMP2, TMP3 = 140, 141, 142, 143
NV = 144
def Qa(b, s): x = (b * 4 + s) * 4; return f"a[{x}:{x+3}]"
def Ka(kb, s): x = 48 + (kb * 4 + s) * 4; return f"a[{x}:{x+3}]"
def Va(db): x = 80 + db * 4; return f"a[{x}:{x+3}]"
def Vh(db, h): x = 80 + db * 4 + 2 * h; return f"a[{x}:{x+1}]"
NA = 112

def softmax_ops(n, mode, b=None):
    par, b = n & 1, (n % 3 if b is None else b)
    s = lambda i: f"v{S(par, i)}"
    X = lambda i: f"v_exp_f32 {s(i)}, {s(i)}"
    CV = lambda i: f"v_cvt_pk_bf16_f32 v{P(par,i)}, {s(2*i)}, {s(2*i+1)}"
    l0, l1 = L0 + 2 * b, L0 + 2 * b + 1
    AD = lambda i: f"v_add_f32 v{l0 + (i & 1)}, v{l0 + (i & 1)}, {s(i)}"
    PK = lambda i: f"v_pk_add_f32 v[{l0}:{l1}], v[{l0}:{l1}], v[{S(par,2*i)}:{S(par,2*i+1)}]"
    DT = lambda i: f"v_dot2c_f32_bf16 v{l0 + (i & 1)}, v{P(par,i)}, v{TMP3}"
    if mode == "fma":
        F = lambda i: f"v_fma_f32 {s(i)}, {s(i)}, s52, v{C0+4*b}"
        seq = [F(0), F(1), X(0), X(1), F(2), F(3), CV(0), AD(0), X(2), X(3), AD(1), F(4), F(5), CV(1), AD(2), X(4), X(5), AD(3),
               F(6), F(7), CV(2), AD(4), X(6), X(7), AD(5), CV(3), AD(6), AD(7)]
        d = {k: [] for k in range(8, 24)}
        cum = 0
        for x in seq:
            c = 8 if x.startswith("v_exp") else 4
            d[8 + (cum + c // 2) // 9].append(x)
            cum += c
        return d
    if mode == "add":
        return {8: [X(0)], 9: [X(1)], 10: [X(2)], 11: [CV(0), AD(0)], 12: [X(3)], 13: [X(4)], 14: [CV(1), AD(1)], 15: [AD(2), AD(3)],
                16: [X(5)], 17: [X(6)], 18: [CV(2), AD(4)], 19: [X(7)], 20: [AD(5), AD(6)], 21: [CV(3), AD(7)], 22: [], 23: []}
    if mode == "pk":
        return {8: [X(0)], 9: [X(1)], 10: [X(2)], 11: [CV(0), PK(0)], 12: [X(3)], 13: [X(4)], 14: [CV(1), PK(1)], 15: [],
                16: [X(5)], 17: [X(6)], 18: [CV(2), PK(2)], 19: [X(7)], 20: [], 21: [CV(3), PK(3)], 22: [], 23: []}
    if mode == "dot":
        return {8: [X(0)], 9: [X(1)], 10: [X(2)], 11: [CV(0)], 12: [X(3)], 13: [X(4)], 14: [CV(1), DT(0)], 15: [DT(1)],
                16: [X(5)], 17: [X(6)], 18: [CV(2)], 19: [X(7)], 20: [DT(2)], 21: [CV(3)], 22: [DT(3)], 23: []}
    if mode.startswith("m4"):
        sel = [136, 140, 142][b]
        M4 = lambda h: f"v_mfma_f32_4x4x4_16b_bf16 v[132:135], v[{sel}:{sel+1}], v[{P(par,2*h)}:{P(par,2*h+1)}], v[132:135]"
        if mode == "m4a":
            return {8: [X(0)], 9: [X(1)], 10: [X(2)], 11: [CV(0)], 12: [X(3)], 13: [X(4)], 14: [CV(1)], 15: [],
                    16: [X(5)], 17: [X(6)], 18: [CV(2)], 19: [X(7)], 20: [M4(0)], 21: [CV(3)], 22: [], 23: [M4(1)]}
        if mode == "m4b":
            return {8: [X(0)], 9: [X(1)], 10: [X(2)], 11: [X(3)], 12: [CV(0), CV(1)], 13: [X(4)], 14: [X(5)], 15: [M4(0)],
                    16: [X(6)], 17: [X(7)], 18: [], 19: [CV(2), CV(3)], 20: [], 21: [], 22: [M4(1)], 23: []}
    if mode == "none":
        return {8: [X(0)], 9: [X(1)], 10: [X(2)], 11: [CV(0)], 12: [X(3)], 13: [X(4)], 14: [CV(1)], 15: [],
                16: [X(5)], 17: [X(6)], 18: [CV(2)], 19: [X(7)], 20: [], 21: [CV(3)], 22: [], 23: []}
    raise ValueError(mode)

CINIT = True
def cinit(b): return Cq(b) if CINIT else "0"

def slot_mfmas(n, pv_order=None):
    bq, pq, bp, pp = (n + 1) % 3, (n + 1) & 1, n % 3, n & 1
    mf = []
    for kb in range(2):
        for s in range(4):
            c = cinit(bq) if s == 0 else Sq(pq, kb)
            mf.append(f"v_mfma_f32_16x16x32_bf16 {Sq(pq,kb)}, {Ka(kb,s)}, {Qa(bq,s)}, {c}")
    for db in (pv_order or range(8)):
        mf.append(f"v_mfma_f32_16x16x32_bf16 {Oq(db,bp)}, {Va(db)}, {Pq(pp)}, {Oq(db,bp)}")
    return mf

def emit_slot(out, n, mode, qk=True, partA=True, first=None, last=None, pre=None, pv_order=None, run=1):
    first, last, pre = first or {}, last or {}, pre or {}
    smB, smA = softmax_ops(n, mode), softmax_ops(n + 1, mode)
    mf = slot_mfmas(n, pv_order)
    pend = []
    for pos in range(16):
        out += pre.get(pos, [])
        if pos >= 8 or qk:
            if pos == 8:
                d = [i for i, x in enumerate(reversed(out)) if x.startswith("v_cvt")][0]
                if d < 2: out.append(f"s_nop {1 - d}")
            out.append(mf[pos])
        pend += first.get(pos, [])
        if pos < 8:
            pend += smB[16 + pos]
        elif partA:
            pend += smA[pos]
        pend += last.get(pos, [])
        if pos % run == run - 1:
            for x in pend:
                if out and out[-1].startswith("v_exp") and not x.startswith("v_exp") and out[-1].split()[1].rstrip(",") in x.replace(",", " ").split():
                    out.append("s_nop 0")
                out.append(x)
            pend = []

def kread(i, off):
    kb, s = i // 4, i % 4
    return f"ds_read_b128 {Ka(kb,s)}, v{KADDR} offset:{off + kb*512 + s*64}"
def vread(r, off):
    db, h = r >> 1, r & 1
    return f"ds_read_b64_tr_b16 {Vh(db,h)}, v{VADDR} offset:{off + h*512 + db*32}"

def loop_body(mode="add", kg=None, vg=None, barrier=True, rotated=False, flags=False, niter=8, vlast=0, klast=0, run=1):
    kg = kg or [6, 6, 7, 7, 9, 10, 12, 15]
    vg = vg or [8 + r for r in range(16)]
    first = {k: {} for k in range(-1, 6)}
    pre = {k: {} for k in range(-1, 6)}
    last = {k: {} for k in range(-1, 6)}
    for tt, k2 in ((0, -1), (1, 2)):
        for r in range(16):
            kk, gp = k2 + vg[r] // 16, vg[r] % 16
            assert vg[r] >= 8 + (r >> 1)
            (last if (vlast >> r) & 1 else first)[kk].setdefault(gp, []).append(vread(r, tt * SLOT))
    for tt, k1 in ((0, 1), (1, 4)):
        for i in range(8):
            assert i <= kg[i] < 16
            (last if (klast >> i) & 1 else first)[k1].setdefault(kg[i], []).append(kread(i, tt * SLOT))
    for k2 in (-1, 2):
        pre[k2].setdefault(0, []).append(f"s_waitcnt lgkmcnt({5 if flags else 4})")
        pre[k2].setdefault(4, []).append("s_waitcnt lgkmcnt(0)")
        n_after = lambda pos: sum(1 for r in range(16) if vg[r] < pos)
        for db0 in (0, 4):
            pos = 16 + 8 + db0
            issued = n_after(pos)
            need = 2 * (db0 + 4)
            assert issued >= need, (issued, need)
            pre[k2 + 1].setdefault(8 + db0, []).append(f"s_waitcnt lgkmcnt({issued - need})")
        if flags:
            kp = 4 if k2 == -1 else k2 - 1
            first[kp].setdefault(15, []).append(f"ds_read_b32 v{TMP1}, v{TMP0}")
            op = "v_cmp_gt_u32" if k2 == -1 else "v_cmp_ge_u32"
            last[k2].setdefault(5, []).append(f"{op} vcc, s44, v{TMP1}")
            first[k2].setdefault(7, []).extend([f"s_cbranch_vccnz L_wait{k2+1}", f"L_wret{k2+1}:"])
        elif barrier:
            pre[k2].setdefault(8, []).append("s_barrier")
    last[-1].setdefault(6, []).append(f"v_add_u32 v{VADDR}, s45, v{VADDR}")
    last[-1].setdefault(7, []).append(f"v_add_u32 v{KADDR}, s45, v{KADDR}")
    kc, g0 = (3, 8) if rotated else (4, 0)
    if flags:
        first[kc].setdefault(g0 + 0, []).append("s_add_u32 s44, s44, 2")
        first[kc].setdefault(g0 + 1, []).append("s_and_b32 s46, s44, 7")
        first[kc].setdefault(g0 + 2, []).append("s_cmp_eq_u32 s46, 2")
        first[kc].setdefault(g0 + 3, []).append(f"s_cselect_b32 s45, {-(6*SLOT) & 0xffffffff}, s54")
        first[kc].setdefault(g0 + 4, []).append("s_cmp_lt_u32 s44, 18")
        last[0].setdefault(12, []).append(f"v_mov_b32 v{TMP1}, s44")
        first[0].setdefault(14, []).append(f"ds_write_b32 v{TMP0}, v{TMP1} offset:16")
    else:
        first[kc].setdefault(g0 + 0, []).append("s_add_u32 s44, s44, 1")
        first[kc].setdefault(g0 + 1, []).append("s_and_b32 s46, s44, 3")
        first[kc].setdefault(g0 + 2, []).append(f"s_cselect_b32 s45, s54, {-(6*SLOT) & 0xffffffff}")
        first[kc].setdefault(g0 + 4, []).append(f"s_cmp_lt_u32 s44, {niter}")
    slots = {}
    for k in range(-1, 5):
        out = []
        emit_slot(out, k + 6, mode, first=first[k], last=last[k], pre=pre[k], run=run)
        slots[k] = out
    if rotated:
        return slots
    return sum((slots[k] for k in range(-1, 5)), [])


def tail_slots(n0, units, kslot0, vslot0, synced, extra_first=None, extra_last=None, pv_last=None, mode="add"):
    N = len(units)
    extra_first, extra_last = extra_first or {}, extra_last or {}
    plan = {}
    for n in range(n0, N):
        kre = n + 2 < N and units[n + 2][0] != units[n + 1][0]
        vre = n + 1 < N and units[n + 1][0] != units[n][0]
        vprev = n - 1 >= n0 and units[n][0] != units[n - 1][0]
        knext = n + 3 < N and units[n + 3][0] != units[n + 2][0]
        if kre:
            t = units[n + 2][0]
            off = (((t - 1) & 7) - kslot0) * SLOT
            assert 0 <= off <= 65535 - 704
            kg = list(range(8)) if vre else [6, 6, 7, 7, 9, 10, 12, 15]
            for i in range(8):
                plan.setdefault((n, kg[i]), []).append((kread(i, off), ("K", i), t - 1))
        if vre:
            t = units[n + 1][0]
            off = ((t & 7) - vslot0) * SLOT
            assert 0 <= off <= 65535 - 736
            vnext = n + 2 < N and units[n + 2][0] != units[n + 1][0]
            dense = knext and vnext
            for r in range(16):
                gp = 8 + (r >> 1) if dense else 8 + r
                plan.setdefault((n + gp // 16, gp % 16), []).append((vread(r, off), ("V", r >> 1), t))
    out = []
    queue = []
    for n in range(n0, N):
        t, b = units[n]
        par = n & 1
        mf, need = [], []
        if n + 1 < N:
            tq, bq = units[n + 1]
            pq = (n + 1) & 1
            for kb in range(2):
                for s in range(4):
                    c = cinit(bq) if s == 0 else Sq(pq, kb)
                    mf.append(f"v_mfma_f32_16x16x32_bf16 {Sq(pq,kb)}, {Ka(kb,s)}, {Qa(bq,s)}, {c}")
                    need.append(("K", kb * 4 + s))
        else:
            mf += [None] * 8; need += [None] * 8
        order = pv_last if (n == N - 1 and pv_last) else range(8)
        for db in order:
            mf.append(f"v_mfma_f32_16x16x32_bf16 {Oq(db,b)}, {Va(db)}, {Pq(par)}, {Oq(db,b)}")
            need.append(("V", db))
        smB = softmax_ops(n, mode, b)
        smA = softmax_ops(n + 1, mode, units[n + 1][1]) if n + 1 < N else None
        for pos in range(16):
            if pos % 4 == 0:
                grp = [x for x in need[pos:pos + 4] if x]
                idx = [i for i, k in enumerate(queue) if k in grp]
                if idx:
                    cnt = len(queue) - 1 - max(idx)
                    out.append(f"s_waitcnt lgkmcnt({min(cnt, 15)})")
                    queue = queue[max(idx) + 1:] if cnt <= 15 else queue[-15:]
            items = plan.get((n, pos), [])
            while items and max(x[2] for x in items) > synced:
                out.append("s_barrier"); synced += 1
            if mf[pos]: out.append(mf[pos])
            for ins, key, _ in items:
                out.append(ins); queue.append(key)
            out += extra_first.get((n, pos), [])
            if pos < 8: out += smB[16 + pos]
            elif smA: out += smA[pos]
            out += extra_last.get((n, pos), [])
    assert synced == 15, synced
    return out
```

```python
import sys, argparse, struct, math
from body import *

KN = "standalone__gqa_softmax__near_ridge_kernel"
NSLOT = 8
RING = NSLOT * SLOT
QBASE = RING
QPITCH = 288
QWAVE = 16 * QPITCH
RBASE = QBASE + 4 * QWAVE
RPITCH = 1088
LDS_BYTES = RBASE + 4 * RPITCH

WS_ML = 16 << 20
WS_FLAG = 24 << 20
WS_TS = 32 << 20
C_SCALE = struct.unpack("<I", struct.pack("<f", math.log2(math.e) / math.sqrt(128.0)))[0]
NTS = 16


class G:
    def __init__(self, opt):
        self.o = []
        self.opt = opt
    def __call__(self, s):
        if isinstance(s, list):
            for x in s: self(x)
            return
        for l in s.split("\n"):
            l = l.strip()
            if l:
                self.o.append(("" if l.endswith(":") else "    ") + l)
    def ts(self, idx):
        if self.opt.pts and idx >= 9:
            self.seen = getattr(self, "seen", set())
            if idx in self.seen: return
            self.seen.add(idx)
        if self.opt.ts:
            self(f"s_memrealtime s[{64+2*idx}:{65+2*idx}]" if self.opt.ts == 2 else f"s_memtime s[{64+2*idx}:{65+2*idx}]")
    def ts_store(self, widx):
        if not self.opt.ts: return
        self("s_waitcnt vmcnt(0) lgkmcnt(0)")
        if self.opt.probe:
            if widx == 0:
                i = self.opt.probe
                self(f"s_sub_u32 s40, s{64+2*i}, s64\ns_lshl_b32 s40, s40, 3")
                self("L_probe:\ns_sleep 8\ns_memrealtime s[42:43]\ns_waitcnt lgkmcnt(0)\ns_sub_u32 s41, s42, s64\ns_cmp_lt_u32 s41, s40\ns_cbranch_scc1 L_probe")
            return
        if self.opt.tsout:
            self("s_mov_b32 s28, s10\ns_mov_b32 s29, s11\ns_mov_b32 s30, 0x300000\ns_mov_b32 s31, 0x20000")
            self("s_lshl_b32 s42, s2, 3\ns_add_u32 s42, s42, s18\ns_lshl_b32 s42, s42, 6")
            for i in range(1, NTS):
                self(f"s_sub_u32 s{64+2*i}, s{64+2*i}, s64")
            self("v_mov_b32 v1, 0")
            for i in range(NTS):
                self(f"v_writelane_b32 v1, s{64+2*i}, {i}")
            self("v_and_b32 v1, 0x3fff, v1")
            self("v_lshrrev_b32 v2, 6, v1\nv_and_b32 v3, 63, v1\nv_cvt_f32_u32 v2, v2\nv_cvt_f32_u32 v3, v3\nv_cvt_pk_bf16_f32 v2, v2, v3")
            self("v_mbcnt_lo_u32_b32 v4, -1, 0\nv_lshlrev_b32 v4, 2, v4")
            self("s_mov_b64 exec, 0xffff")
            self("buffer_store_dword v2, v4, s[28:31], s42 offen")
            return
        self("s_mov_b32 s28, s14\ns_mov_b32 s29, s15\ns_mov_b32 s30, 0x10000000\ns_mov_b32 s31, 0x20000")
        self("s_lshl_b32 s42, s2, 3")
        self("s_add_u32 s42, s42, s18")
        self("s_lshl_b32 s42, s42, 6")
        self(f"s_add_u32 s42, s42, {WS_TS}")
        for i in range(NTS):
            self(f"v_mov_b32 v1, s{64+2*i}")
            self(f"buffer_store_dword v1, off, s[28:31], s42 offset:{4*i}")
            self("s_nop 1")


def xlane(g, a, t, op):
    g(f"v_mov_b32 v{t}, v{a}")
    g("s_nop 1")
    g(f"v_permlane32_swap_b32 v{a}, v{t}")
    g("s_nop 1")
    g(f"{op} v{a}, v{a}, v{t}")
    g(f"v_mov_b32 v{t}, v{a}")
    g("s_nop 1")
    g(f"v_permlane16_swap_b32 v{a}, v{t}")
    g("s_nop 1")
    g(f"{op} v{a}, v{a}, v{t}")


def xlane3(g, regs, tmps, op):
    for sw in ("v_permlane32_swap_b32", "v_permlane16_swap_b32"):
        for a, t in zip(regs, tmps): g(f"v_mov_b32 v{t}, v{a}")
        g("s_nop 0")
        for a, t in zip(regs, tmps): g(f"{sw} v{a}, v{t}")
        g("s_nop 0")
        for a, t in zip(regs, tmps): g(f"{op} v{a}, v{a}, v{t}")


def slow_path(g, opt):
    g("L_slow:")
    g("s_lshl_b32 s38, s16, 19")
    g("s_lshl_b32 s39, s17, 17")
    g("s_add_u32 s38, s38, s39")
    g("s_add_u32 s20, s6, s38\ns_addc_u32 s21, s7, 0\ns_mov_b32 s22, 0x20000\ns_mov_b32 s23, 0x20000")
    g("s_add_u32 s96, s8, s38\ns_addc_u32 s97, s9, 0\ns_mov_b32 s98, 0x20000\ns_mov_b32 s99, 0x20000")
    g("s_movk_i32 s38, 0x1000\ns_movk_i32 s39, 0x2000")
    g(f"v_mbcnt_lo_u32_b32 v{TMP2}, -1, 0")
    g(f"v_mbcnt_hi_u32_b32 v{TMP2}, -1, v{TMP2}")
    addr_setup(g, TMP2, 96)
    g("s_cmp_eq_u32 s19, 3\ns_cselect_b32 s42, 8, s19")
    g(f"s_mul_i32 s42, s42, {SLOT}")
    g(f"v_add_u32 v{KADDR}, s42, v{KADDR}")
    g(f"v_add_u32 v{VADDR}, s42, v{VADDR}")
    g(f"v_lshlrev_b32 v{TMP2}, 4, v{TMP2}")
    g("s_lshl_b32 s43, s17, 6")
    g(f"v_xor_b32 v{TMP3}, s43, v{TMP2}")
    for i in range(96): g(f"v_mov_b32 v{i}, 0")
    for i in range(6): g(f"v_mov_b32 v{L0+i}, 0")
    for b in range(3): g(f"v_mov_b32 v{C0+4*b}, 0x7f000000")
    g("s_mov_b32 s44, 0")
    g("L_slow_loop:")
    g("s_mov_b32 s45, s44")
    g("s_mov_b32 s46, s42")
    g("L_slow_ld:")
    g("s_mov_b32 m0, s46")
    g(f"s_add_u32 s47, s46, {TILE}")
    g(f"buffer_load_dwordx4 v{TMP2}, s[20:23], s45 offen lds")
    g("s_mov_b32 m0, s47")
    g(f"s_add_u32 s46, s46, {PIECE}")
    g(f"buffer_load_dwordx4 v{TMP3}, s[96:99], s45 offen lds")
    g("s_add_u32 s45, s45, 1024")
    g("s_and_b32 s47, s45, 0x1fff")
    g("s_cbranch_scc1 L_slow_ld")
    g("s_waitcnt vmcnt(0)")
    for i in range(8): g(kread(i, 0))
    for r in range(16): g(vread(r, 0))
    g("s_waitcnt lgkmcnt(0)")
    for b in range(3):
        c = C0 + 4 * b
        s = lambda i: f"v{S(0, i)}"
        for kb in range(2):
            for st in range(4):
                cc = "0" if st == 0 else Sq(0, kb)
                g(f"v_mfma_f32_16x16x32_bf16 {Sq(0,kb)}, {Ka(kb,st)}, {Qa(b,st)}, {cc}")
        g("s_nop 7")
        g(f"v_max3_f32 v{TMP0}, {s(0)}, {s(1)}, {s(2)}")
        g(f"v_max3_f32 v{TMP0}, v{TMP0}, {s(3)}, {s(4)}")
        g(f"v_max3_f32 v{TMP0}, v{TMP0}, {s(5)}, {s(6)}")
        g(f"v_max3_f32 v{TMP0}, v{TMP0}, {s(7)}, -v{c}")
        xlane(g, TMP0, TMP1, "v_max_f32")
        g(f"v_add_f32 v{TMP1}, v{c}, v{TMP0}")
        g(f"v_exp_f32 v{TMP1}, -v{TMP1}")
        g(f"v_sub_f32 v{c}, 0, v{TMP0}")
        for i in range(8): g(f"v_sub_f32 {s(i)}, {s(i)}, v{TMP0}")
        for i in range(8): g(f"v_exp_f32 {s(i)}, {s(i)}")
        g(f"v_mul_f32 v{L0+2*b}, v{L0+2*b}, v{TMP1}")
        for db in range(8):
            for r in range(4): g(f"v_mul_f32 v{O(db,b,r)}, v{O(db,b,r)}, v{TMP1}")
        for i in range(4): g(f"v_cvt_pk_bf16_f32 v{P(0,i)}, {s(2*i)}, {s(2*i+1)}")
        for i in range(8): g(f"v_add_f32 v{L0+2*b}, v{L0+2*b}, {s(i)}")
        for db in range(8):
            g(f"v_mfma_f32_16x16x32_bf16 {Oq(db,b)}, {Va(db)}, {Pq(0)}, {Oq(db,b)}")
    g("s_add_u32 s44, s44, 0x2000")
    g("s_cmp_lt_u32 s44, 0x20000")
    g("s_cbranch_scc1 L_slow_loop")
    g("s_nop 7")
    xlane3(g, [L0, L0 + 2, L0 + 4], [TMP0, TMP1, TMP2], "v_add_f32")
    g(f"v_mbcnt_lo_u32_b32 v{TMP3}, -1, 0")
    g(f"v_mbcnt_hi_u32_b32 v{TMP3}, -1, v{TMP3}")
    g(f"v_lshlrev_b32 v{TMP3}, 4, v{TMP3}")
    g(f"v_and_b32 v{TMP2}, 0xf0, v{TMP3}")
    g(f"v_mov_b32 v{TMP0}, 0")
    g(f"v_mov_b32 v100, v{C0}\nv_mov_b32 v101, v{C0+4}\nv_mov_b32 v102, v{C0+8}\nv_mov_b32 v103, 0")
    g(f"buffer_store_dwordx4 v[100:103], v{TMP2}, s[28:31], s59 offen offset:256 sc1")
    g(f"v_mov_b32 v96, v{L0}\nv_mov_b32 v97, v{L0+2}\nv_mov_b32 v98, v{L0+4}\nv_mov_b32 v99, 1")
    g(f"buffer_store_dwordx4 v[96:99], v{TMP2}, s[28:31], s59 offen sc1")
    for b in range(3):
        for x in range(1, 4):
            g(pack_ops(x, b))
            g(pay_store(x, b, opt))
    g("s_branch L_sent")


def pack_ops(x, b):
    o, p = O(2 * x, b), O(2 * x + 1, b)
    return [f"v_cvt_pk_bf16_f32 v{o}, v{o}, v{o+1}", f"v_cvt_pk_bf16_f32 v{o+1}, v{o+2}, v{o+3}",
            f"v_cvt_pk_bf16_f32 v{o+2}, v{p}, v{p+1}", f"v_cvt_pk_bf16_f32 v{o+3}, v{p+2}, v{p+3}"]

def pay_store(x, b, opt, pol=None):
    return f"buffer_store_dwordx4 {Oq(2*x, b)}, v{TMP3}, s[28:31], s{55+x} offen offset:{b*1024} {opt.stpol if pol is None else pol}"


def addr_setup(g, lane, t):
    g(f"v_and_b32 v{t}, 7, v{lane}")
    g(f"v_mul_u32_u24 v{t}, {PIECE}, v{t}")
    g(f"v_bfe_u32 v{t+1}, v{lane}, 3, 1")
    g(f"v_lshlrev_b32 v{t+1}, 8, v{t+1}")
    g(f"v_and_b32 v{t+2}, 48, v{lane}")
    g(f"v_add3_u32 v{KADDR}, v{t}, v{t+1}, v{t+2}")
    g(f"v_bfe_u32 v{t}, v{lane}, 2, 3")
    g(f"v_mul_u32_u24 v{t}, {PIECE}, v{t}")
    g(f"v_lshrrev_b32 v{t+1}, 5, v{lane}")
    g(f"v_lshlrev_b32 v{t+1}, 8, v{t+1}")
    g(f"v_and_b32 v{t+3}, 3, v{lane}")
    g(f"v_lshlrev_b32 v{t+3}, 3, v{t+3}")
    g(f"v_add3_u32 v{VADDR}, v{t}, v{t+1}, v{t+3}")
    g(f"v_add_u32 v{VADDR}, {TILE}, v{VADDR}")


def gen(opt):
    g = G(opt)
    kvpol, qpol = opt.kvpol, opt.qpol
    vpol = opt.vpol if opt.vpol is not None else kvpol
    g.o.append(f"; @launch grid=(256,1,1) block=(512,1,1) lds={LDS_BYTES}")
    g.o.append('.amdgcn_target "amdgcn-amd-amdhsa--gfx950"')
    g.o.append(".text")
    g.o.append(f".globl {KN}")
    g.o.append(".p2align 8")
    g.o.append(f".type {KN},@function")
    g(f"{KN}:")
    g("s_load_dwordx8 s[4:11], s[0:1], 0")
    g("s_load_dwordx4 s[12:15], s[0:1], 32")
    g.ts(0)
    g("s_cmp_ge_u32 s2, 256")
    g("s_cbranch_scc1 L_end")
    g("v_lshrrev_b32 v1, 6, v0")
    g("s_and_b32 s16, s2, 7")
    g("s_lshr_b32 s17, s2, 3")
    g("v_readfirstlane_b32 s18, v1")
    g("s_lshl_b32 s16, s16, 3")
    g("s_lshr_b32 s19, s17, 2")
    g("s_add_u32 s16, s16, s19")
    g("s_and_b32 s17, s17, 3")
    if opt.linear:
        g("s_lshr_b32 s16, s2, 2\ns_and_b32 s17, s2, 3")
    g(f"v_and_b32 v{TMP2}, 63, v0")
    g(f"v_lshlrev_b32 v{TMP3}, 4, v{TMP2}")
    g("s_and_b32 s19, s18, 3")
    g("s_mov_b32 s23, 0x20000")
    g("s_mov_b32 s27, 0x20000")
    g("s_mov_b32 s31, 0x20000")
    g("s_cmp_lt_u32 s18, 4")
    g("s_cbranch_scc1 L_compute")

    g("s_lshl_b32 s36, s19, 11")
    g("s_lshl_b32 s37, s17, 6")
    g(f"v_xor_b32 v2, s37, v{TMP3}")
    g(f"v_add_u32 v1, s36, v{TMP3}")
    g("v_add_u32 v2, s36, v2")
    g("s_lshl_b32 s38, s16, 19")
    g("s_lshl_b32 s39, s17, 17")
    g("s_add_u32 s39, s38, s39")
    g(f"s_mul_i32 s42, s19, {2*PIECE}")
    g("s_mov_b32 s22, 0x20000")
    g("s_mov_b32 s26, 0x20000")
    g("s_movk_i32 s30, 0x1000")
    g(f"s_mul_i32 s44, s19, {RPITCH}")
    g(f"s_add_u32 m0, s44, {RBASE}")
    g(f"v_and_b32 v5, 48, v{TMP2}")
    g(f"v_xor_b32 v5, v5, v{TMP3}")
    g("s_lshl_b32 s45, s19, 10")
    if opt.rot:
        g(f"s_lshr_b32 s41, s2, {opt.rot - 1}\ns_and_b32 s41, s41, 15\ns_lshl_b32 s41, s41, 13")
    else:
        g("s_mov_b32 s41, 0")
    g("s_lshl_b32 s46, s16, 9")
    g("s_lshl_b32 s47, s17, 2")
    g("s_add_u32 s46, s46, s47")
    g(f"s_add_u32 s46, s46, {WS_FLAG}")
    g(f"v_and_b32 v3, 3, v{TMP2}")
    g("v_lshlrev_b32 v3, 7, v3")
    g(f"v_lshlrev_b32 v13, 2, v{TMP2}")
    g("s_mov_b32 s34, 0x10000000")
    g("s_mov_b32 s35, 0x20000")
    g("s_mov_b32 s50, 256")
    g("s_mov_b32 s51, 0x20000")
    if opt.cpf:
        g(f"s_cmp_ge_u32 s2, {8*opt.cpf}")
        g("s_cbranch_scc1 L_nocpf")
        g("s_getpc_b64 s[52:53]")
        g("L_pc:")
        if opt.cpf_from:
            g(f"s_add_u32 s52, s52, {opt.cpf_from}-L_pc")
            g("s_addc_u32 s53, s53, 0")
            g(f"s_mov_b32 s54, L_general-{opt.cpf_from}")
        else:
            g(f"s_sub_u32 s52, s52, L_pc-{KN}")
            g("s_subb_u32 s53, s53, 0")
            g(f"s_mov_b32 s54, L_code_end-{KN}")
        g("s_mov_b32 s55, 0x20000")
        g("s_lshr_b32 s56, s2, 3\ns_lshl_b32 s56, s56, 2\ns_add_u32 s56, s56, s19\ns_lshl_b32 s56, s56, 10")
        g(f"buffer_load_dwordx4 v[20:23], v{TMP3}, s[52:55], s56 offen")
        g("L_nocpf:")
    g("s_waitcnt lgkmcnt(0)")
    g("s_add_u32 s28, s6, s38")
    g("s_addc_u32 s29, s7, 0")
    g("buffer_load_dwordx4 v5, s[28:31], s45 offen lds")
    g(f"s_add_u32 m0, s42, {7*SLOT}")
    g("s_add_u32 s20, s6, s39")
    g("s_addc_u32 s21, s7, 0")
    g(f"buffer_load_dwordx4 v1, s[20:23], s41 offen {kvpol} lds")
    g(f"s_add_u32 m0, s42, {7*SLOT+32}")
    g("s_add_u32 s24, s8, s39")
    g("s_addc_u32 s25, s9, 0")
    g(f"buffer_load_dwordx4 v1, s[20:23], s41 offen offset:1024 {kvpol} lds")
    g("s_mov_b32 s32, s14")
    g("s_mov_b32 s33, s15")
    g("s_mov_b32 s48, s12")
    g("s_mov_b32 s49, s13")
    if opt.hs == "loader":
        g("s_cmp_lg_u32 s19, 0")
        g("s_cbranch_scc1 L_nohs1")
        g(f"buffer_load_dword v4, v3, s[32:35], s46 offen {opt.stalepol}")
        g("L_nohs1:")
    g("s_barrier")
    g.ts(1)
    def hs2():
        if opt.hs != "loader": return
        g("s_cmp_lg_u32 s19, 0")
        g("s_cbranch_scc1 L_nohs2")
        g("v_and_b32 v4, 1, v4")
        g("v_cmp_eq_u32 vcc, 0, v4")
        g("s_getreg_b32 s46, hwreg(HW_REG_XCC_ID)")
        g("s_and_b32 s46, s46, 7")
        g("s_lshl_b32 s46, s46, 4")
        g("s_and_b32 s47, vcc_lo, 15")
        g("s_or_b32 s46, s46, s47")
        g("s_or_b32 s46, s46, 0x80")
        g("s_lshl_b32 s47, s17, 3")
        g("s_lshl_b32 s46, s46, s47")
        g("v_mov_b32 v4, s46")
        g("s_lshl_b32 s47, s16, 2")
        g("s_mov_b64 exec, 1")
        g("buffer_atomic_or v4, off, s[48:51], s47 sc1")
        g("s_mov_b64 exec, -1")
        g("L_nohs2:")
    def pair(u):
        slot = (u & 7) * SLOT
        if u < 15:
            g(f"s_add_u32 m0, s42, {slot}")
            g("s_add_u32 s40, s41, 0x2000")
            if opt.rot: g("s_and_b32 s40, s40, 0x1ffff")
            g(f"buffer_load_dwordx4 v1, s[20:23], s40 offen {kvpol} lds")
            g(f"s_add_u32 m0, s42, {slot+32}")
            g("s_nop 0")
            g(f"buffer_load_dwordx4 v1, s[20:23], s40 offen offset:1024 {kvpol} lds")
        g(f"s_add_u32 m0, s42, {slot+TILE}")
        g("s_nop 0")
        g(f"buffer_load_dwordx4 v2, s[24:27], s41 offen {vpol} lds")
        g(f"s_add_u32 m0, s42, {slot+TILE+32}")
        g("s_nop 0")
        g(f"buffer_load_dwordx4 v2, s[24:27], s41 offen offset:1024 {vpol} lds")
        g("s_mov_b32 s41, s40")
    sched = [int(x) for x in opt.sched.split(",")]
    cnt = [0]
    def tr():
        if not opt.trace: return
        g("s_memrealtime s[60:61]\ns_waitcnt lgkmcnt(0)")
        g(f"v_writelane_b32 v10, s60, {cnt[0]}")
        cnt[0] += 1
    if opt.trace:
        g("s_waitcnt lgkmcnt(0)")
        g("v_writelane_b32 v10, s64, 63")
    issued = [0]
    queue = []
    def issue(n, limit):
        for _ in range(n):
            u = issued[0]
            if u >= 16 or u > limit: break
            pair(u); issued[0] += 1
            queue.extend([u] * (4 if u < 15 else 2))
    def wait_for(t):
        n = sum(1 for x in queue if x > t)
        g(f"s_waitcnt vmcnt({n})")
    issue(sched[0], 6)
    tr(); g.ts(2)
    wait_for(-1)
    tr(); g.ts(3)
    g("s_barrier")
    tr()
    issue(sched[1], 6)
    for t in range(16):
        tr()
        assert issued[0] > t
        wait_for(t)
        tr()
        g("s_barrier")
        tr()
        if t == opt.hs_at:
            hs2()
        issue(sched[min(t + 2, len(sched) - 1)], t + 7)
        if opt.prewarm is not None and t == opt.pw_at - 4:
            g("s_lshl_b32 s47, s16, 2")
            g("buffer_load_dword v14, off, s[48:51], s47 sc1")
            queue.append(issued[0] - 1)
        if opt.prewarm is not None and opt.pw_at <= t < opt.pw_at + 3:
            i = t - opt.pw_at
            if i == 0:
                g("v_readfirstlane_b32 s36, v14")
                g("s_lshr_b32 s37, s36, 8\ns_xor_b32 s37, s37, s36\ns_and_b32 s37, s37, 0x00f0f0f0")
                g("s_andn2_b32 s36, 0x80, s36\ns_or_b32 s37, s37, s36")
                if opt.pw_always: g("s_cmp_eq_u32 s37, 0x12345")
                g("s_cselect_b32 s34, 0, s34")
                g("s_lshl_b32 s36, s16, 2\ns_add_u32 s36, s36, s19\ns_lshl_b32 s36, s36, 2\ns_add_u32 s36, s36, s17")
                g("s_mul_i32 s37, s36, 9216")
                g(f"s_lshl_b32 s38, s36, 9\ns_add_u32 s38, s38, {WS_ML}")
                g(f"buffer_load_dword v12, v{TMP2}, s[32:35], s38 offen {opt.prewarm}".replace(f"v{TMP2},", "v13,"))
                queue.append(99)
            for k in range(3):
                g(f"buffer_load_dwordx4 v[{16+4*k}:{19+4*k}], v{TMP3}, s[32:35], s37 offen offset:{k*1024} {opt.prewarm}")
                queue.append(99)
            g("s_add_u32 s37, s37, 3072")
    if opt.trace:
        g("s_mov_b32 s28, s14\ns_mov_b32 s29, s15\ns_mov_b32 s30, 0x10000000\ns_mov_b32 s31, 0x20000")
        g("s_lshl_b32 s42, s2, 2\ns_add_u32 s42, s42, s19\ns_lshl_b32 s42, s42, 8")
        g(f"s_add_u32 s42, s42, {WS_TS + (1<<20)}")
        g(f"v_lshrrev_b32 v11, 2, v{TMP3}")
        g("buffer_store_dword v10, v11, s[28:31], s42 offen")
    g.ts_store(1)
    g("s_endpgm")

    g("L_compute:")
    g("s_lshl_b32 s36, s16, 2")
    g("s_add_u32 s36, s36, s19")
    g("s_mul_i32 s37, s36, 12288")
    g("s_mov_b32 s22, 12288")
    g("s_movk_i32 s38, 0x1000")
    g("s_movk_i32 s39, 0x2000")
    def setup():
        addr_setup(g, TMP2, 100)
        g(f"s_mul_i32 s42, s19, {QWAVE}")
        g(f"s_add_u32 s42, s42, {QBASE}")
        g(f"v_lshrrev_b32 v103, 4, v{TMP2}")
        g(f"v_mul_u32_u24 v105, {QPITCH}, v103")
        g(f"v_and_b32 v107, 15, v{TMP2}")
        g("v_lshlrev_b32 v108, 4, v107")
        g("v_add3_u32 v105, v105, v108, s42")
        g(f"v_mul_u32_u24 v106, {QPITCH}, v107")
        g("v_add3_u32 v106, v106, v102, s42")
        g(f"v_bfe_u32 v107, v{TMP2}, 2, 2")
        g(f"v_mul_u32_u24 v107, {RPITCH}, v107")
        g(f"v_and_b32 v109, 3, v{TMP2}")
        g("v_xor_b32 v110, v109, v103")
        g("v_lshlrev_b32 v110, 4, v110")
        g("v_lshlrev_b32 v109, 8, v109")
        g("v_add3_u32 v107, v107, v109, v110")
        g(f"v_add_u32 v107, {RBASE}, v107")
        g(f"v_and_b32 v111, 3, v{TMP2}")
        g("v_lshlrev_b32 v111, 7, v111")
        g("s_lshl_b32 s46, s16, 9\ns_lshl_b32 s47, s17, 2\ns_add_u32 s46, s46, s47")
        g(f"s_add_u32 s47, s46, {WS_FLAG}")
        g("s_cmp_eq_u32 s19, 0\ns_cselect_b32 s63, 2, 99")
        g(f"v_mov_b32 v{TMP2}, v108")
        for i in range(48, 96): g(f"v_mov_b32 v{i}, 0")
        for i in range(6): g(f"v_mov_b32 v{L0+i}, 0")
        g(f"s_mov_b32 s52, 0x{C_SCALE:08x}")
        g(f"s_mov_b32 s53, 0x{C_SCALE:08x}")
        g("s_mov_b32 s51, 0xffff0000")
        g(f"v_add_u32 v{TMP0}, {7*SLOT}, v{KADDR}")
        g(f"s_mov_b32 s54, {2*SLOT}")
        g("s_mov_b32 s44, 0")
        g("s_lshl_b32 s40, s36, 2")
        for x in range(1, 4):
            g(f"s_xor_b32 s42, s17, {x}")
            g("s_add_u32 s42, s42, s40")
            g(f"s_mul_i32 s{55+x}, s42, 9216")
            if x > 1: g(f"s_add_u32 s{55+x}, s{55+x}, {(x-1)*3072}")
        g("s_add_u32 s42, s40, s17")
        g("s_lshl_b32 s59, s42, 9")
        g(f"s_add_u32 s59, s59, {WS_ML}")
        g("s_mul_i32 s60, s42, 9216")
        g("s_lshl_b32 s61, s36, 7")
        g(f"s_add_u32 s61, s61, {WS_FLAG}")
        g("s_lshl_b32 s62, s16, 2")
        g("s_mov_b32 s26, 12288")
        g("s_mov_b32 s30, 0x10000000")
        g("s_mov_b32 s34, 256")
        g("s_mov_b32 s35, 0x20000")
        g("s_mov_b32 s48, 0x3f80")
        g("s_mov_b32 s49, 0x3f800000")
    if opt.setup == "early": setup()
    if opt.ramp:
        for i in range(8):
            g(f"v_mul_u32_u24 v{112+i}, {0x9e37 + 977*i}, v{TMP3}")
            g(f"v_xor_b32 v{112+i}, 0x3f5a3e91, v{112+i}")
            g(f"v_and_b32 v{112+i}, 0xbfffbfff, v{112+i}")
        for i in range(opt.ramp):
            g(f"v_mfma_f32_16x16x32_bf16 v[{120+4*(i%3)}:{123+4*(i%3)}], v[{112+4*(i&1)}:{115+4*(i&1)}], v[{116-4*(i&1)}:{119-4*(i&1)}], 0")
            if opt.rampgap: g(f"s_nop {opt.rampgap}")
    g.ts(2)
    g("s_waitcnt lgkmcnt(0)")
    g("s_add_u32 s20, s4, s37")
    g("s_addc_u32 s21, s5, 0")
    for i in range(12):
        so = ["0", "s38", "s39"][i // 4]
        g(f"buffer_load_dwordx4 v[{4*i}:{4*i+3}], v{TMP3}, s[20:23], {so} offen offset:{(i%4)*1024} {qpol}")
    g("s_barrier")
    g.ts(1)
    if opt.tsout:
        g("s_add_u32 s24, s14, s37\ns_addc_u32 s25, s15, 0\ns_add_u32 s24, s24, 0x2800000\ns_addc_u32 s25, s25, 0")
    else:
        g("s_add_u32 s24, s10, s37")
        g("s_addc_u32 s25, s11, 0")
    if opt.setup != "early": setup()
    g("s_mov_b32 s28, s14")
    g("s_mov_b32 s29, s15")
    g("s_mov_b32 s32, s12")
    g("s_mov_b32 s33, s13")
    QX = 0
    if opt.hs == "loop":
        g(f"buffer_load_dword v{TMP1}, v111, s[28:31], s47 offen {opt.stalepol}")
        QX = 1
    def qscale_ops(b):
        out = []
        for i in range(4):
            li = b * 4 + i
            grp = [f"s_waitcnt vmcnt({11-li+QX})"]
            for r in range(4): grp += [f"v_lshlrev_b32 v{112+2*r}, 16, v{4*li+r}", f"v_and_b32 v{113+2*r}, s51, v{4*li+r}"]
            for r in range(4): grp.append(f"v_pk_mul_f32 v[{112+2*r}:{113+2*r}], v[{112+2*r}:{113+2*r}], s[52:53]")
            for r in range(4): grp.append(f"v_cvt_pk_bf16_f32 v{4*li+r}, v{112+2*r}, v{113+2*r}")
            grp.append(f"ds_write_b128 v105, v[{4*li}:{4*li+3}] offset:{i*4*QPITCH}")
            out.append(grp)
        out.append([f"ds_read_b128 {Qa(b,s)}, v106 offset:{64*s}" for s in range(4)])
        return out
    def pp_mfma(b, s):
        c = "0" if s == 0 else Cq(b)
        return f"v_mfma_f32_16x16x32_bf16 {Cq(b)}, {Va(s)}, {Qa(b,s)}, {c}"
    for grp in qscale_ops(0): g(grp)
    g.ts(3)
    for grp in qscale_ops(1): g(grp)
    for grp in qscale_ops(2): g(grp)
    zero = [f"v_mov_b32 v{i}, 0" for i in range(48)]
    g(zero[:32])
    g.ts(4)
    g("s_barrier")
    g.ts(5)
    for s in range(4):
        g(f"ds_read_b128 {Va(s)}, v107 offset:{64*s}")
    k0r = [f"ds_read_b128 {Ka(kb,s)}, v{TMP0} offset:{kb*512 + s*64}" for kb in range(2) for s in range(4)]
    g(k0r[:4])
    g(zero[32:40])
    g("s_waitcnt lgkmcnt(4)")
    if opt.pts: g.ts(9)
    pm = [pp_mfma(b, s) for b in range(3) for s in range(4)]
    qk0 = [m.replace(Cq(0), "0") for m in slot_mfmas(5)[:8]]
    class Lst(list):
        def __call__(self, x): self.append(x)
    red = Lst()
    for b in range(3):
        c = C0 + 4 * b
        red += [f"v_max3_f32 v{c}, v{c}, v{c+1}, v{c+2}", f"v_max_f32 v{c}, v{c}, v{c+3}"]
    xlane3(red, [C0, C0 + 4, C0 + 8], [C0 + 1, C0 + 5, C0 + 9], "v_max_f32")
    for i in range(12):
        g(pm[i])
        if i < 4: g(k0r[4 + i])
        elif i < 8: g(zero[40 + 2 * (i - 4):42 + 2 * (i - 4)])
        elif i >= 10: g(red[2 * (i - 10):2 * (i - 10) + 2])
    if opt.pts: g.ts(10)
    g("s_waitcnt lgkmcnt(0)")
    rest = red[4:]
    for i in range(8):
        g(qk0[i])
        if i == 3: g("s_nop 2")
        if i >= 3: g(rest[(i - 3) * len(rest) // 5:(i - 2) * len(rest) // 5])
    if opt.pts: g.ts(11)
    g("s_barrier")
    if opt.pts: g.ts(12)
    for r in range(8): g(vread(r, 0))
    for i in range(8): g(f"v_sub_f32 v{S(0,i)}, v{S(0,i)}, v{C0}")
    smA = softmax_ops(6, "add")
    neg = []
    for b in (1, 2, 0):
        c = C0 + 4 * b
        for i in (1, 2, 3, 0):
            neg.append(f"v_sub_f32 v{c+i}, 0, v{c}")
    side = [f"v_mov_b32 v108, v{C0}", f"v_mov_b32 v109, v{C0+4}", f"v_mov_b32 v110, v{C0+8}",
            f"buffer_store_dwordx4 v[108:111], v{TMP2}, s[28:31], s59 offen offset:256 sc1"]
    for i in range(8):
        g(smA[8 + i])
        g(neg[i * 12 // 8:(i + 1) * 12 // 8])
    g(side)
    g.ts(6)
    g("s_branch L_k0")
    NT = opt.nt
    niter = 8 - NT // 2 if NT else 8
    slots = loop_body("add", rotated=True, niter=niter, vlast=int(opt.vlast, 0), klast=int(opt.klast, 0))
    for pi, ph in enumerate(opt.phases.split(",")):
        e, run, vl, kl = ph.split(":")
        e = min(int(e), niter)
        sl = loop_body("add", rotated=True, niter=e, vlast=int(vl, 16), klast=int(kl, 16), run=int(run))
        g(f"L_loop{pi}:")
        g(sl[4]); g(sl[-1])
        if pi == 0: g("L_k0:")
        for k in range(4): g(sl[k])
        g(f"s_cbranch_scc1 L_loop{pi}")
    assert e == niter
    g("L_tail:")
    g.ts(7)
    T0 = 16 - NT
    TS = 16 - opt.skew if opt.skew >= 0 else T0
    units = [(t, b) for t in range(TS) for b in range(3)] + [(t, b) for t in range(TS, 16) for b in range(2)] + [(t, 2) for t in range(TS, 16)]
    n0 = 6 * (niter - 1) + 4
    base = (2 * (niter - 1)) & 7
    first, last = {}, {}
    kslot0, vslot0 = base + 1, base + 2
    if NT:
        g(f"v_add_u32 v{KADDR}, {SLOT}, v{KADDR}")
        g(f"v_add_u32 v{VADDR}, {2*SLOT}, v{VADDR}")
    g(f"buffer_load_dword v{TMP0}, off, s[32:35], s62 sc1")
    fin = {b: max(n for n in range(48) if units[n][1] == b) for b in range(3)}
    for b in range(2):
        n = fin[b] + 1
        for x in range(1, 4):
            ops = pack_ops(x, b)
            if n < 47:
                gp = {1: (3, 4), 2: (6, 6), 3: (7, 7)}[x]
                last.setdefault((n, gp[0]), []).extend(ops[:2]); last.setdefault((n, gp[1]), []).extend(ops[2:])
                first.setdefault((n, gp[1] + 1), []).append(pay_store(x, b, opt))
            else:
                last.setdefault((n, 2 * x - 1), []).extend(ops + [pay_store(x, b, opt)])
    lred = Lst()
    for b in range(3): lred(f"v_add_f32 v{96+b}, v{L0+2*b}, v{L0+2*b+1}")
    xlane3(lred, [96, 97, 98], [100, 101, 102], "v_add_f32")
    lred("v_mov_b32 v99, 0")
    lred(f"buffer_store_dwordx4 v[96:99], v{TMP2}, s[28:31], s59 offen {opt.stpol}")
    lred(f"v_add_f32 v{TMP1}, v96, v97")
    lred("s_mov_b32 s50, " + ("0x5f800000" if not opt.force_fb else "0x00000000"))
    lred(f"v_add_f32 v{TMP1}, v{TMP1}, v98")
    lred(f"v_cmp_nlt_f32 vcc, v{TMP1}, s50")
    for i in range(5):
        last.setdefault((47, 8 + i), []).extend(lred[i * len(lred) // 5:(i + 1) * len(lred) // 5])
    last.setdefault((47, 13), []).extend(pack_ops(1, 2) + [pay_store(1, 2, opt)])
    last.setdefault((47, 15), []).extend(pack_ops(2, 2) + [pay_store(2, 2, opt)] + pack_ops(3, 2) + [pay_store(3, 2, opt)])
    last.setdefault((47, 7), []).append("s_nop 0")
    g(tail_slots(n0, units, kslot0, vslot0, 2 * niter - 1, first, last, pv_last=[2, 3, 4, 5, 6, 7, 0, 1]))
    g.ts(8)
    g("s_cbranch_vccz L_sent")
    g("s_waitcnt vmcnt(0)")
    g("s_branch L_slow")
    g("L_sent:")
    g("s_mov_b32 s47, 0x100000")
    g("s_waitcnt vmcnt(10)")
    g("L_hs:")
    g(f"v_readfirstlane_b32 s44, v{TMP0}")
    g("s_and_b32 s45, s44, 0x80808080")
    g("s_cmp_eq_u32 s45, 0x80808080")
    g("s_cbranch_scc0 L_hs_retry")
    g("L_hs_ok:")
    g("s_lshr_b32 s45, s44, 8")
    g("s_xor_b32 s45, s45, s44")
    g("s_and_b32 s45, s45, 0x00707070")
    if opt.force_slow:
        g("s_mov_b32 s45, 1")
    g(f"v_bfe_u32 v100, v{TMP3}, 4, 2")
    g("v_lshlrev_b32 v101, 3, v100")
    g("v_add_u32 v101, s19, v101")
    g("v_lshrrev_b32 v101, v101, s44")
    g("v_and_b32 v101, 1, v101")
    g("v_lshlrev_b32 v100, 2, v100")
    g("s_lshl_b32 s46, s17, 3")
    g("s_add_u32 s46, s46, s19")
    g("s_lshr_b32 s46, s44, s46")
    g("s_and_b32 s46, s46, 1")
    g("v_mov_b32 v102, s46")
    g("s_lshl_b32 s46, s17, 2")
    g("s_add_u32 s46, s46, s61")
    for x in range(1, 4):
        g(f"s_xor_b32 s{19+x}, s59, {x<<9}")
    g("s_add_u32 s40, s60, 3072\ns_add_u32 s41, s60, 6144")
    g("s_mov_b32 s47, 0x100000")
    g("s_cmp_lg_u32 s45, 0")
    g.ts(9)
    g("s_waitcnt vmcnt(0)")
    g.ts(10)
    g("s_cbranch_scc1 L_xcd_flag")
    g(f"buffer_store_dword v102, off, s[28:31], s46 {opt.flagpol}")
    g("L_poll:")
    g(f"buffer_load_dword v103, v100, s[28:31], s61 offen {opt.pollpol}")
    g("s_waitcnt vmcnt(0)")
    g("v_and_b32 v103, 1, v103")
    g("v_cmp_ne_u32 vcc, v103, v101")
    g("s_cbranch_vccz L_poll_ok")
    g("s_sub_u32 s47, s47, 1")
    g("s_cbranch_scc0 L_poll")
    g("L_poll_ok:")
    g.ts(11)
    LR = lambda x: 100 + 4 * x
    PR = lambda x, b: 24 + ((x - 1) * 3 + b) * 4
    def inbox_loads(lp):
        for x in range(1, 4):
            g(f"buffer_load_dwordx4 v[{LR(x)}:{LR(x)+3}], v{TMP2}, s[28:31], s{19+x} offen {lp}")
        for b in range(3):
            for x in range(1, 4):
                g(f"buffer_load_dwordx4 v[{PR(x,b)}:{PR(x,b)+3}], v{TMP3}, s[28:31], {['s60','s40','s41'][x-1]} offen offset:{b*1024} {lp}")
    inbox_loads(opt.ldpol)
    g("L_loaded:")
    g(f"v_bfe_u32 v132, v{TMP3}, 4, 4")
    g("v_lshlrev_b32 v132, 8, v132")
    if opt.out4:
        g(f"v_bfe_u32 v133, v{TMP3}, 8, 1\nv_lshlrev_b32 v133, 5, v133")
        g(f"v_bfe_u32 v134, v{TMP3}, 9, 1\nv_lshl_add_u32 v133, v134, 4, v133")
    else:
        g(f"v_lshrrev_b32 v133, 8, v{TMP3}")
        g("v_lshlrev_b32 v133, 3, v133")
    g("s_lshl_b32 s42, s17, 6")
    g("v_add3_u32 v132, v132, v133, s42")
    g("s_waitcnt vmcnt(9)")
    g.ts(12)
    g(f"v_or3_b32 v99, v99, v{LR(1)+3}, v{LR(2)+3}")
    g(f"v_or_b32 v99, v99, v{LR(3)+3}")
    g("v_cmp_ne_u32 vcc, 0, v99")
    g("s_cbranch_vccnz L_general")
    for x in range(1, 4):
        for b in range(3):
            g(f"v_add_f32 v{96+b}, v{96+b}, v{LR(x)+b}")
    for b in range(3): g(f"v_rcp_f32 v{96+b}, v{96+b}")
    def acc_reg(b, i): return O(i // 4, b, i % 4)
    nst = 1 if opt.out4 else 2
    for b in range(3):
        for x in range(1, 4):
            g(f"s_waitcnt vmcnt({9 - (b*3 + x) + b*nst})")
            if x == 3 and b == 2: g.ts(13)
            for r in range(4):
                src = PR(x, b) + r
                g(f"v_dot2c_f32_bf16 v{acc_reg(b,2*r)}, s48, v{src}")
                g(f"v_dot2c_f32_bf16 v{acc_reg(b,2*r+1)}, s49, v{src}")
        out_store(g, b, 96 + b, opt)
    g("L_done:")
    g.ts(14)
    if opt.ts:
        g("s_waitcnt vmcnt(0)")
        g.ts(15)
    g.ts_store(0)
    g("L_end:")
    g("s_endpgm")
    g("L_hs_retry:")
    g("s_sleep 2")
    g(f"buffer_load_dword v{TMP0}, off, s[32:35], s62 sc1")
    g("s_sub_u32 s47, s47, 1")
    g("s_waitcnt vmcnt(0)")
    g("s_cbranch_scc0 L_hs")
    g("s_branch L_hs_ok")
    g("L_xcd_flag:")
    g(f"buffer_store_dwordx4 v[96:99], v{TMP2}, s[28:31], s59 offen sc1")
    for b in range(3):
        for x in range(1, 4):
            g(pay_store(x, b, opt, "sc1"))
    g("s_waitcnt vmcnt(0)")
    g("buffer_store_dword v102, off, s[28:31], s46 sc1")
    g("L_poll2:")
    g("buffer_load_dword v103, v100, s[28:31], s61 offen sc1")
    g("s_waitcnt vmcnt(0)")
    g("v_and_b32 v103, 1, v103")
    g("v_cmp_ne_u32 vcc, v103, v101")
    g("s_cbranch_vccz L_poll2_ok")
    g("s_sub_u32 s47, s47, 1")
    g("s_cbranch_scc0 L_poll2")
    g("L_poll2_ok:")
    inbox_loads("sc1")
    g("s_branch L_loaded")
    g("L_general:")
    CR = lambda x: 60 + 4 * x
    for x in range(1, 4):
        g(f"buffer_load_dwordx4 v[{CR(x)}:{CR(x)+3}], v{TMP2}, s[28:31], s{19+x} offen offset:256 sc1")
    for b in range(3): g(f"v_mov_b32 v{CR(0)+b}, v{C0+4*b}")
    g("s_waitcnt vmcnt(0)")
    for b in range(3):
        g(f"v_min3_f32 v100, v{CR(0)+b}, v{CR(1)+b}, v{CR(2)+b}")
        g(f"v_min_f32 v100, v100, v{CR(3)+b}")
        for x in range(4): g(f"v_sub_f32 v{CR(x)+b}, v100, v{CR(x)+b}")
        for x in range(4): g(f"v_exp_f32 v{CR(x)+b}, v{CR(x)+b}")
        g("s_nop 0")
        g(f"v_mul_f32 v{96+b}, v{96+b}, v{CR(0)+b}")
        for x in range(1, 4): g(f"v_fmac_f32 v{96+b}, v{CR(x)+b}, v{LR(x)+b}")
    for b in range(3): g(f"v_rcp_f32 v{96+b}, v{96+b}")
    for b in range(3):
        for i in range(8): g(f"v_mul_f32 v{acc_reg(b,i)}, v{acc_reg(b,i)}, v{CR(0)+b}")
        for x in range(1, 4):
            for r in range(4):
                src = PR(x, b) + r
                g(f"v_lshlrev_b32 v116, 16, v{src}")
                g(f"v_and_b32 v117, s51, v{src}")
                g(f"v_fmac_f32 v{acc_reg(b,2*r)}, v116, v{CR(x)+b}")
                g(f"v_fmac_f32 v{acc_reg(b,2*r+1)}, v117, v{CR(x)+b}")
        out_store(g, b, 96 + b, opt)
    g("s_branch L_done")
    g("L_code_end:")
    slow_path(g, opt)
    g.o.append(f""".section .rodata,"a"
.p2align 6
.amdhsa_kernel {KN}
  .amdhsa_next_free_vgpr {NV+NA}
  .amdhsa_next_free_sgpr 102
  .amdhsa_accum_offset {NV}
  .amdhsa_group_segment_fixed_size 0
  .amdhsa_kernarg_size 48
  .amdhsa_user_sgpr_count 2
  .amdhsa_user_sgpr_kernarg_segment_ptr 1
  .amdhsa_system_sgpr_workgroup_id_x 1
.end_amdhsa_kernel""")
    return "\n".join(g.o) + "\n"


def out_store(g, b, rl, opt):
    o, p = O(0, b), O(1, b)
    so = ["0", "s38", "s39"][b]
    for r in range(4): g(f"v_mul_f32 v{o+r}, v{o+r}, v{rl}")
    for r in range(4): g(f"v_mul_f32 v{p+r}, v{p+r}, v{rl}")
    if opt.out4:
        g(f"v_cvt_pk_bf16_f32 v{o}, v{o}, v{o+1}")
        g(f"v_cvt_pk_bf16_f32 v{o+1}, v{o+2}, v{o+3}")
        g(f"v_cvt_pk_bf16_f32 v{o+2}, v{p}, v{p+1}")
        g(f"v_cvt_pk_bf16_f32 v{o+3}, v{p+2}, v{p+3}")
        g("s_nop 0")
        g(f"v_permlane16_swap_b32 v{o}, v{o+2}")
        g(f"v_permlane16_swap_b32 v{o+1}, v{o+3}")
        g("s_nop 0")
        g(f"buffer_store_dwordx4 v[{o}:{o+3}], v132, s[24:27], {so} offen {opt.outpol}")
        return
    for h in range(2):
        o = O(h, b)
        g(f"v_cvt_pk_bf16_f32 v{o}, v{o}, v{o+1}")
        g(f"v_cvt_pk_bf16_f32 v{o+1}, v{o+2}, v{o+3}")
        g(f"buffer_store_dwordx2 v[{o}:{o+1}], v132, s[24:27], {so} offen offset:{32*h} {opt.outpol}")


if __name__ == "__main__":
    ap = argparse.ArgumentParser()
    ap.add_argument("-o", default="standalone__gqa_softmax__near_ridge.s")
    ap.add_argument("--kvpol", default="nt")
    ap.add_argument("--qpol", default="nt")
    ap.add_argument("--stpol", default="")
    ap.add_argument("--ldpol", default="nt")
    ap.add_argument("--outpol", default="")
    ap.add_argument("--ts", type=int, default=0)
    ap.add_argument("--pw_always", type=int, default=0)
    ap.add_argument("--phases", default="6:1:ffff:ff,8:1:0:0")
    ap.add_argument("--cpf_from", default="L_loop1")
    ap.add_argument("--cpf", type=int, default=2)
    ap.add_argument("--skew", type=int, default=-1)
    ap.add_argument("--vlast", default="0")
    ap.add_argument("--klast", default="0")
    ap.add_argument("--split", type=int, default=0)
    ap.add_argument("--pad2", type=int, default=0)
    ap.add_argument("--ramp", type=int, default=0)
    ap.add_argument("--rampgap", type=int, default=0)
    ap.add_argument("--pad", type=int, default=0)
    ap.add_argument("--out4", type=int, default=1)
    ap.add_argument("--pw_at", type=int, default=12)
    ap.add_argument("--nt", type=int, default=0)
    ap.add_argument("--sched", default="2,1,1")
    ap.add_argument("--rot", type=int, default=0)
    ap.add_argument("--hs_at", type=int, default=2)
    ap.add_argument("--probe", type=int, default=0)
    ap.add_argument("--vpol", default=None)
    ap.add_argument("--hs", default="loader")
    ap.add_argument("--setup", default="early")
    ap.add_argument("--tsout", type=int, default=0)
    ap.add_argument("--pts", type=int, default=0)
    ap.add_argument("--exp_x1", type=int, default=0)
    ap.add_argument("--exp_2x", type=int, default=0)
    ap.add_argument("--prewarm", default="")
    ap.add_argument("--linear", type=int, default=0)
    ap.add_argument("--trace", type=int, default=0)
    ap.add_argument("--pollpol", default="nt")
    ap.add_argument("--stalepol", default="")
    ap.add_argument("--dot", type=int, default=1)
    ap.add_argument("--flagpol", default="")
    ap.add_argument("--depth", type=int, default=3)
    ap.add_argument("--init_pairs", type=int, default=2)
    ap.add_argument("--force_slow", type=int, default=0)
    ap.add_argument("--force_fb", type=int, default=0)
    opt = ap.parse_args()
    open(opt.o, "w").write(gen(opt))
```

```python
import sys, argparse, struct, math
from body import *

KN = "standalone__gqa_softmax__near_ridge_kernel"
NSLOT = 8
RING = NSLOT * SLOT
QBASE = RING
QPITCH = 288
QWAVE = 16 * QPITCH
RBASE = QBASE + 4 * QWAVE
RPITCH = 1088
LDS_BYTES = RBASE + 4 * RPITCH

WS_ML = 16 << 20
WS_FLAG = 24 << 20
WS_TS = 32 << 20
C_SCALE = struct.unpack("<I", struct.pack("<f", math.log2(math.e) / math.sqrt(128.0)))[0]
NTS = 16


class G:
    def __init__(self, opt):
        self.o = []
        self.opt = opt
    def __call__(self, s):
        if isinstance(s, list):
            for x in s: self(x)
            return
        for l in s.split("\n"):
            l = l.strip()
            if l:
                self.o.append(("" if l.endswith(":") else "    ") + l)
    def ts(self, idx):
        if self.opt.pts and idx >= 9:
            self.seen = getattr(self, "seen", set())
            if idx in self.seen: return
            self.seen.add(idx)
        if self.opt.ts:
            self(f"s_memrealtime s[{64+2*idx}:{65+2*idx}]" if self.opt.ts == 2 else f"s_memtime s[{64+2*idx}:{65+2*idx}]")
    def ts_store(self, widx):
        if not self.opt.ts: return
        self("s_waitcnt vmcnt(0) lgkmcnt(0)")
        if self.opt.probe:
            if widx == 0:
                i = self.opt.probe
                self(f"s_sub_u32 s40, s{64+2*i}, s64\ns_lshl_b32 s40, s40, 3")
                self("L_probe:\ns_sleep 8\ns_memrealtime s[42:43]\ns_waitcnt lgkmcnt(0)\ns_sub_u32 s41, s42, s64\ns_cmp_lt_u32 s41, s40\ns_cbranch_scc1 L_probe")
            return
        if self.opt.tsout:
            self("s_mov_b32 s28, s10\ns_mov_b32 s29, s11\ns_mov_b32 s30, 0x300000\ns_mov_b32 s31, 0x20000")
            self("s_lshl_b32 s42, s2, 3\ns_add_u32 s42, s42, s18\ns_lshl_b32 s42, s42, 6")
            for i in range(1, NTS):
                self(f"s_sub_u32 s{64+2*i}, s{64+2*i}, s64")
            self("v_mov_b32 v1, 0")
            for i in range(NTS):
                self(f"v_writelane_b32 v1, s{64+2*i}, {i}")
            self("v_and_b32 v1, 0x3fff, v1")
            self("v_lshrrev_b32 v2, 6, v1\nv_and_b32 v3, 63, v1\nv_cvt_f32_u32 v2, v2\nv_cvt_f32_u32 v3, v3\nv_cvt_pk_bf16_f32 v2, v2, v3")
            self("v_mbcnt_lo_u32_b32 v4, -1, 0\nv_lshlrev_b32 v4, 2, v4")
            self("s_mov_b64 exec, 0xffff")
            self("buffer_store_dword v2, v4, s[28:31], s42 offen")
            return
        self("s_mov_b32 s28, s14\ns_mov_b32 s29, s15\ns_mov_b32 s30, 0x10000000\ns_mov_b32 s31, 0x20000")
        self("s_lshl_b32 s42, s2, 3")
        self("s_add_u32 s42, s42, s18")
        self("s_lshl_b32 s42, s42, 6")
        self(f"s_add_u32 s42, s42, {WS_TS}")
        for i in range(NTS):
            self(f"v_mov_b32 v1, s{64+2*i}")
            self(f"buffer_store_dword v1, off, s[28:31], s42 offset:{4*i}")
            self("s_nop 1")


def xlane(g, a, t, op):
    g(f"v_mov_b32 v{t}, v{a}")
    g("s_nop 1")
    g(f"v_permlane32_swap_b32 v{a}, v{t}")
    g("s_nop 1")
    g(f"{op} v{a}, v{a}, v{t}")
    g(f"v_mov_b32 v{t}, v{a}")
    g("s_nop 1")
    g(f"v_permlane16_swap_b32 v{a}, v{t}")
    g("s_nop 1")
    g(f"{op} v{a}, v{a}, v{t}")


def xlane3(g, regs, tmps, op):
    for sw in ("v_permlane32_swap_b32", "v_permlane16_swap_b32"):
        for a, t in zip(regs, tmps): g(f"v_mov_b32 v{t}, v{a}")
        g("s_nop 0")
        for a, t in zip(regs, tmps): g(f"{sw} v{a}, v{t}")
        g("s_nop 0")
        for a, t in zip(regs, tmps): g(f"{op} v{a}, v{a}, v{t}")


def slow_path(g, opt):
    g("L_slow:")
    g("s_lshl_b32 s38, s16, 19")
    g("s_lshl_b32 s39, s17, 17")
    g("s_add_u32 s38, s38, s39")
    g("s_add_u32 s20, s6, s38\ns_addc_u32 s21, s7, 0\ns_mov_b32 s22, 0x20000\ns_mov_b32 s23, 0x20000")
    g("s_add_u32 s96, s8, s38\ns_addc_u32 s97, s9, 0\ns_mov_b32 s98, 0x20000\ns_mov_b32 s99, 0x20000")
    g("s_movk_i32 s38, 0x1000\ns_movk_i32 s39, 0x2000")
    g(f"v_mbcnt_lo_u32_b32 v{TMP2}, -1, 0")
    g(f"v_mbcnt_hi_u32_b32 v{TMP2}, -1, v{TMP2}")
    addr_setup(g, TMP2, 96)
    g("s_cmp_eq_u32 s19, 3\ns_cselect_b32 s42, 8, s19")
    g(f"s_mul_i32 s42, s42, {SLOT}")
    g(f"v_add_u32 v{KADDR}, s42, v{KADDR}")
    g(f"v_add_u32 v{VADDR}, s42, v{VADDR}")
    g(f"v_lshlrev_b32 v{TMP2}, 4, v{TMP2}")
    g("s_lshl_b32 s43, s17, 6")
    g(f"v_xor_b32 v{TMP3}, s43, v{TMP2}")
    for i in range(96): g(f"v_mov_b32 v{i}, 0")
    for i in range(6): g(f"v_mov_b32 v{L0+i}, 0")
    for b in range(3): g(f"v_mov_b32 v{C0+4*b}, 0x7f000000")
    g("s_mov_b32 s44, 0")
    g("L_slow_loop:")
    g("s_mov_b32 s45, s44")
    g("s_mov_b32 s46, s42")
    g("L_slow_ld:")
    g("s_mov_b32 m0, s46")
    g(f"s_add_u32 s47, s46, {TILE}")
    g(f"buffer_load_dwordx4 v{TMP2}, s[20:23], s45 offen lds")
    g("s_mov_b32 m0, s47")
    g(f"s_add_u32 s46, s46, {PIECE}")
    g(f"buffer_load_dwordx4 v{TMP3}, s[96:99], s45 offen lds")
    g("s_add_u32 s45, s45, 1024")
    g("s_and_b32 s47, s45, 0x1fff")
    g("s_cbranch_scc1 L_slow_ld")
    g("s_waitcnt vmcnt(0)")
    for i in range(8): g(kread(i, 0))
    for r in range(16): g(vread(r, 0))
    g("s_waitcnt lgkmcnt(0)")
    for b in range(3):
        c = C0 + 4 * b
        s = lambda i: f"v{S(0, i)}"
        for kb in range(2):
            for st in range(4):
                cc = "0" if st == 0 else Sq(0, kb)
                g(f"v_mfma_f32_16x16x32_bf16 {Sq(0,kb)}, {Ka(kb,st)}, {Qa(b,st)}, {cc}")
        g("s_nop 7")
        g(f"v_max3_f32 v{TMP0}, {s(0)}, {s(1)}, {s(2)}")
        g(f"v_max3_f32 v{TMP0}, v{TMP0}, {s(3)}, {s(4)}")
        g(f"v_max3_f32 v{TMP0}, v{TMP0}, {s(5)}, {s(6)}")
        g(f"v_max3_f32 v{TMP0}, v{TMP0}, {s(7)}, -v{c}")
        xlane(g, TMP0, TMP1, "v_max_f32")
        g(f"v_add_f32 v{TMP1}, v{c}, v{TMP0}")
        g(f"v_exp_f32 v{TMP1}, -v{TMP1}")
        g(f"v_sub_f32 v{c}, 0, v{TMP0}")
        for i in range(8): g(f"v_sub_f32 {s(i)}, {s(i)}, v{TMP0}")
        for i in range(8): g(f"v_exp_f32 {s(i)}, {s(i)}")
        g(f"v_mul_f32 v{L0+2*b}, v{L0+2*b}, v{TMP1}")
        for db in range(8):
            for r in range(4): g(f"v_mul_f32 v{O(db,b,r)}, v{O(db,b,r)}, v{TMP1}")
        for i in range(4): g(f"v_cvt_pk_bf16_f32 v{P(0,i)}, {s(2*i)}, {s(2*i+1)}")
        for i in range(8): g(f"v_add_f32 v{L0+2*b}, v{L0+2*b}, {s(i)}")
        for db in range(8):
            g(f"v_mfma_f32_16x16x32_bf16 {Oq(db,b)}, {Va(db)}, {Pq(0)}, {Oq(db,b)}")
    g("s_add_u32 s44, s44, 0x2000")
    g("s_cmp_lt_u32 s44, 0x20000")
    g("s_cbranch_scc1 L_slow_loop")
    g("s_nop 7")
    xlane3(g, [L0, L0 + 2, L0 + 4], [TMP0, TMP1, TMP2], "v_add_f32")
    g(f"v_mbcnt_lo_u32_b32 v{TMP3}, -1, 0")
    g(f"v_mbcnt_hi_u32_b32 v{TMP3}, -1, v{TMP3}")
    g(f"v_lshlrev_b32 v{TMP3}, 4, v{TMP3}")
    g(f"v_and_b32 v{TMP2}, 0xf0, v{TMP3}")
    g(f"v_mov_b32 v{TMP0}, 0")
    g(f"v_mov_b32 v100, v{C0}\nv_mov_b32 v101, v{C0+4}\nv_mov_b32 v102, v{C0+8}\nv_mov_b32 v103, 0")
    g(f"buffer_store_dwordx4 v[100:103], v{TMP2}, s[28:31], s59 offen offset:256 sc1")
    g(f"v_mov_b32 v96, v{L0}\nv_mov_b32 v97, v{L0+2}\nv_mov_b32 v98, v{L0+4}\nv_mov_b32 v99, 1")
    g(f"buffer_store_dwordx4 v[96:99], v{TMP2}, s[28:31], s59 offen sc1")
    for b in range(3):
        for x in range(1, 4):
            g(pack_ops(x, b))
            g(pay_store(x, b, opt))
    g("s_branch L_sent")


def pack_ops(x, b):
    o, p = O(2 * x, b), O(2 * x + 1, b)
    return [f"v_cvt_pk_bf16_f32 v{o}, v{o}, v{o+1}", f"v_cvt_pk_bf16_f32 v{o+1}, v{o+2}, v{o+3}",
            f"v_cvt_pk_bf16_f32 v{o+2}, v{p}, v{p+1}", f"v_cvt_pk_bf16_f32 v{o+3}, v{p+2}, v{p+3}"]

def pay_store(x, b, opt, pol=None):
    if pol is None and (opt.sc1b >> b) & 1: pol = "sc1"
    return f"buffer_store_dwordx4 {Oq(2*x, b)}, v{TMP3}, s[28:31], s{55+x} offen offset:{b*1024} {opt.stpol if pol is None else pol}"


def addr_setup(g, lane, t):
    g(f"v_and_b32 v{t}, 7, v{lane}")
    g(f"v_mul_u32_u24 v{t}, {PIECE}, v{t}")
    g(f"v_bfe_u32 v{t+1}, v{lane}, 3, 1")
    g(f"v_lshlrev_b32 v{t+1}, 8, v{t+1}")
    g(f"v_and_b32 v{t+2}, 48, v{lane}")
    g(f"v_add3_u32 v{KADDR}, v{t}, v{t+1}, v{t+2}")
    g(f"v_bfe_u32 v{t}, v{lane}, 2, 3")
    g(f"v_mul_u32_u24 v{t}, {PIECE}, v{t}")
    g(f"v_lshrrev_b32 v{t+1}, 5, v{lane}")
    g(f"v_lshlrev_b32 v{t+1}, 8, v{t+1}")
    g(f"v_and_b32 v{t+3}, 3, v{lane}")
    g(f"v_lshlrev_b32 v{t+3}, 3, v{t+3}")
    g(f"v_add3_u32 v{VADDR}, v{t}, v{t+1}, v{t+3}")
    g(f"v_add_u32 v{VADDR}, {TILE}, v{VADDR}")


def gen(opt):
    g = G(opt)
    kvpol, qpol = opt.kvpol, opt.qpol
    vpol = opt.vpol if opt.vpol is not None else kvpol
    g.o.append(f"; @launch grid=(256,1,1) block=(512,1,1) lds={LDS_BYTES}")
    g.o.append('.amdgcn_target "amdgcn-amd-amdhsa--gfx950"')
    g.o.append(".text")
    g.o.append(f".globl {KN}")
    g.o.append(".p2align 8")
    g.o.append(f".type {KN},@function")
    g(f"{KN}:")
    g("s_load_dwordx8 s[4:11], s[0:1], 0")
    g("s_load_dwordx4 s[12:15], s[0:1], 32")
    g.ts(0)
    g("s_cmp_ge_u32 s2, 256")
    g("s_cbranch_scc1 L_end")
    g("v_lshrrev_b32 v1, 6, v0")
    g("s_and_b32 s16, s2, 7")
    g("s_lshr_b32 s17, s2, 3")
    g("v_readfirstlane_b32 s18, v1")
    g("s_lshl_b32 s16, s16, 3")
    g("s_lshr_b32 s19, s17, 2")
    g("s_add_u32 s16, s16, s19")
    g("s_and_b32 s17, s17, 3")
    if opt.linear:
        g("s_lshr_b32 s16, s2, 2\ns_and_b32 s17, s2, 3")
    g(f"v_and_b32 v{TMP2}, 63, v0")
    g(f"v_lshlrev_b32 v{TMP3}, 4, v{TMP2}")
    g("s_and_b32 s19, s18, 3")
    g("s_mov_b32 s23, 0x20000")
    g("s_mov_b32 s27, 0x20000")
    g("s_mov_b32 s31, 0x20000")
    g("s_cmp_lt_u32 s18, 4")
    g("s_cbranch_scc1 L_compute")

    g("s_lshl_b32 s36, s19, 11")
    g("s_lshl_b32 s37, s17, 6")
    g(f"v_xor_b32 v2, s37, v{TMP3}")
    g(f"v_add_u32 v1, s36, v{TMP3}")
    g("v_add_u32 v2, s36, v2")
    g("s_lshl_b32 s38, s16, 19")
    g("s_lshl_b32 s39, s17, 17")
    g("s_add_u32 s39, s38, s39")
    g(f"s_mul_i32 s42, s19, {2*PIECE}")
    g("s_mov_b32 s22, 0x20000")
    g("s_mov_b32 s26, 0x20000")
    g("s_movk_i32 s30, 0x1000")
    g(f"s_mul_i32 s44, s19, {RPITCH}")
    g(f"s_add_u32 m0, s44, {RBASE}")
    g(f"v_and_b32 v5, 48, v{TMP2}")
    g(f"v_xor_b32 v5, v5, v{TMP3}")
    g("s_lshl_b32 s45, s19, 10")
    if opt.rot:
        g(f"s_lshr_b32 s41, s2, {opt.rot - 1}\ns_and_b32 s41, s41, 15\ns_lshl_b32 s41, s41, 13")
    else:
        g("s_mov_b32 s41, 0")
    g("s_lshl_b32 s46, s16, 9")
    g("s_lshl_b32 s47, s17, 2")
    g("s_add_u32 s46, s46, s47")
    g(f"s_add_u32 s46, s46, {WS_FLAG}")
    g(f"v_and_b32 v3, 3, v{TMP2}")
    g("v_lshlrev_b32 v3, 7, v3")
    g(f"v_lshlrev_b32 v13, 2, v{TMP2}")
    g("s_mov_b32 s34, 0x10000000")
    g("s_mov_b32 s35, 0x20000")
    g("s_mov_b32 s50, 256")
    g("s_mov_b32 s51, 0x20000")
    if opt.cpf:
        g(f"s_cmp_ge_u32 s2, {8*opt.cpf}")
        g("s_cbranch_scc1 L_nocpf")
        g("s_getpc_b64 s[52:53]")
        g("L_pc:")
        if opt.cpf_from:
            g(f"s_add_u32 s52, s52, {opt.cpf_from}-L_pc")
            g("s_addc_u32 s53, s53, 0")
            g(f"s_mov_b32 s54, L_general-{opt.cpf_from}")
        else:
            g(f"s_sub_u32 s52, s52, L_pc-{KN}")
            g("s_subb_u32 s53, s53, 0")
            g(f"s_mov_b32 s54, L_code_end-{KN}")
        g("s_mov_b32 s55, 0x20000")
        g("s_lshr_b32 s56, s2, 3\ns_lshl_b32 s56, s56, 2\ns_add_u32 s56, s56, s19\ns_lshl_b32 s56, s56, 10")
        g(f"buffer_load_dwordx4 v[20:23], v{TMP3}, s[52:55], s56 offen")
        g("L_nocpf:")
    g("s_waitcnt lgkmcnt(0)")
    g("s_add_u32 s28, s6, s38")
    g("s_addc_u32 s29, s7, 0")
    g("buffer_load_dwordx4 v5, s[28:31], s45 offen lds")
    g(f"s_add_u32 m0, s42, {7*SLOT}")
    g("s_add_u32 s20, s6, s39")
    g("s_addc_u32 s21, s7, 0")
    g(f"buffer_load_dwordx4 v1, s[20:23], s41 offen {kvpol} lds")
    g(f"s_add_u32 m0, s42, {7*SLOT+32}")
    g("s_add_u32 s24, s8, s39")
    g("s_addc_u32 s25, s9, 0")
    g(f"buffer_load_dwordx4 v1, s[20:23], s41 offen offset:1024 {kvpol} lds")
    g("s_mov_b32 s32, s14")
    g("s_mov_b32 s33, s15")
    g("s_mov_b32 s48, s12")
    g("s_mov_b32 s49, s13")
    if opt.hs == "loader":
        g("s_cmp_lg_u32 s19, 0")
        g("s_cbranch_scc1 L_nohs1")
        g(f"buffer_load_dword v4, v3, s[32:35], s46 offen {opt.stalepol}")
        g("L_nohs1:")
    g("s_barrier")
    g.ts(1)
    def hs2():
        if opt.hs != "loader": return
        g("s_cmp_lg_u32 s19, 0")
        g("s_cbranch_scc1 L_nohs2")
        g("v_and_b32 v4, 1, v4")
        g("v_cmp_eq_u32 vcc, 0, v4")
        g("s_getreg_b32 s46, hwreg(HW_REG_XCC_ID)")
        g("s_and_b32 s46, s46, 7")
        g("s_lshl_b32 s46, s46, 4")
        g("s_and_b32 s47, vcc_lo, 15")
        g("s_or_b32 s46, s46, s47")
        g("s_or_b32 s46, s46, 0x80")
        g("s_lshl_b32 s47, s17, 3")
        g("s_lshl_b32 s46, s46, s47")
        g("v_mov_b32 v4, s46")
        g("s_lshl_b32 s47, s16, 2")
        g("s_mov_b64 exec, 1")
        g("buffer_atomic_or v4, off, s[48:51], s47 sc1")
        g("s_mov_b64 exec, -1")
        g("L_nohs2:")
    def pair(u):
        slot = (u & 7) * SLOT
        if u < 15:
            g(f"s_add_u32 m0, s42, {slot}")
            g("s_add_u32 s40, s41, 0x2000")
            if opt.rot: g("s_and_b32 s40, s40, 0x1ffff")
            g(f"buffer_load_dwordx4 v1, s[20:23], s40 offen {kvpol} lds")
            g(f"s_add_u32 m0, s42, {slot+32}")
            g("s_nop 0")
            g(f"buffer_load_dwordx4 v1, s[20:23], s40 offen offset:1024 {kvpol} lds")
        g(f"s_add_u32 m0, s42, {slot+TILE}")
        g("s_nop 0")
        g(f"buffer_load_dwordx4 v2, s[24:27], s41 offen {vpol} lds")
        g(f"s_add_u32 m0, s42, {slot+TILE+32}")
        g("s_nop 0")
        g(f"buffer_load_dwordx4 v2, s[24:27], s41 offen offset:1024 {vpol} lds")
        g("s_mov_b32 s41, s40")
    sched = [int(x) for x in opt.sched.split(",")]
    cnt = [0]
    def tr():
        if not opt.trace: return
        g("s_memrealtime s[60:61]\ns_waitcnt lgkmcnt(0)")
        g(f"v_writelane_b32 v10, s60, {cnt[0]}")
        cnt[0] += 1
    if opt.trace:
        g("s_waitcnt lgkmcnt(0)")
        g("v_writelane_b32 v10, s64, 63")
    issued = [0]
    queue = []
    def issue(n, limit):
        for _ in range(n):
            u = issued[0]
            if u >= 16 or u > limit: break
            pair(u); issued[0] += 1
            queue.extend([u] * (4 if u < 15 else 2))
    def wait_for(t):
        n = sum(1 for x in queue if x > t)
        g(f"s_waitcnt vmcnt({n})")
    issue(sched[0], 6)
    tr(); g.ts(2)
    wait_for(-1)
    tr(); g.ts(3)
    g("s_barrier")
    tr()
    issue(sched[1], 6)
    for t in range(16):
        tr()
        assert issued[0] > t
        wait_for(t)
        tr()
        g("s_barrier")
        tr()
        if t == opt.hs_at:
            hs2()
        issue(sched[min(t + 2, len(sched) - 1)], t + 7)
        if opt.prewarm is not None and t == opt.pw_at - 4:
            g("s_lshl_b32 s47, s16, 2")
            g("buffer_load_dword v14, off, s[48:51], s47 sc1")
            queue.append(issued[0] - 1)
        if opt.prewarm is not None and opt.pw_at <= t < opt.pw_at + 3:
            i = t - opt.pw_at
            if i == 0:
                g("v_readfirstlane_b32 s36, v14")
                g("s_lshr_b32 s37, s36, 8\ns_xor_b32 s37, s37, s36\ns_and_b32 s37, s37, 0x00f0f0f0")
                g("s_andn2_b32 s36, 0x80, s36\ns_or_b32 s37, s37, s36")
                if opt.pw_always: g("s_cmp_eq_u32 s37, 0x12345")
                g("s_cselect_b32 s34, 0, s34")
                g("s_lshl_b32 s36, s16, 2\ns_add_u32 s36, s36, s19\ns_lshl_b32 s36, s36, 2\ns_add_u32 s36, s36, s17")
                g("s_mul_i32 s37, s36, 9216")
                g(f"s_lshl_b32 s38, s36, 9\ns_add_u32 s38, s38, {WS_ML}")
                g(f"buffer_load_dword v12, v{TMP2}, s[32:35], s38 offen {opt.prewarm}".replace(f"v{TMP2},", "v13,"))
                queue.append(99)
            for k in range(3):
                if (opt.sc1b >> k) & 1: continue
                g(f"buffer_load_dwordx4 v[{16+4*k}:{19+4*k}], v{TMP3}, s[32:35], s37 offen offset:{k*1024} {opt.prewarm}")
                queue.append(99)
            g("s_add_u32 s37, s37, 3072")
    if opt.trace:
        g("s_mov_b32 s28, s14\ns_mov_b32 s29, s15\ns_mov_b32 s30, 0x10000000\ns_mov_b32 s31, 0x20000")
        g("s_lshl_b32 s42, s2, 2\ns_add_u32 s42, s42, s19\ns_lshl_b32 s42, s42, 8")
        g(f"s_add_u32 s42, s42, {WS_TS + (1<<20)}")
        g(f"v_lshrrev_b32 v11, 2, v{TMP3}")
        g("buffer_store_dword v10, v11, s[28:31], s42 offen")
    if opt.lpf:
        g("s_sub_u32 s37, s37, 9216\ns_add_u32 s38, s37, 3072\ns_add_u32 s39, s37, 6144")
        for i, pt in enumerate(opt.lpf.split(",")):
            g("s_barrier")
            for k in ([i] if len(opt.lpf.split(",")) > 1 else [0, 1]):
                for x in range(3):
                    g(f"buffer_load_dwordx4 v[{16+4*x}:{19+4*x}], v{TMP3}, s[32:35], s{37+x} offen offset:{k*1024}")
    if opt.wb:
        g(f"s_lshr_b32 s36, s2, 3\ns_and_b32 s36, s36, {opt.wb - 1}\ns_or_b32 s36, s36, s19")
        g("s_cbranch_scc1 L_nowb")
        g("s_barrier")
        g("buffer_wbl2 sc1")
        g("L_nowb:")
    g.ts_store(1)
    g("s_endpgm")

    g("L_compute:")
    g("s_lshl_b32 s36, s16, 2")
    g("s_add_u32 s36, s36, s19")
    g("s_mul_i32 s37, s36, 12288")
    g("s_mov_b32 s22, 12288")
    g("s_movk_i32 s38, 0x1000")
    g("s_movk_i32 s39, 0x2000")
    def setup():
        addr_setup(g, TMP2, 100)
        g(f"s_mul_i32 s42, s19, {QWAVE}")
        g(f"s_add_u32 s42, s42, {QBASE}")
        g(f"v_lshrrev_b32 v103, 4, v{TMP2}")
        g(f"v_mul_u32_u24 v105, {QPITCH}, v103")
        g(f"v_and_b32 v107, 15, v{TMP2}")
        g("v_lshlrev_b32 v108, 4, v107")
        g("v_add3_u32 v105, v105, v108, s42")
        g(f"v_mul_u32_u24 v106, {QPITCH}, v107")
        g("v_add3_u32 v106, v106, v102, s42")
        g(f"v_bfe_u32 v107, v{TMP2}, 2, 2")
        g(f"v_mul_u32_u24 v107, {RPITCH}, v107")
        g(f"v_and_b32 v109, 3, v{TMP2}")
        g("v_xor_b32 v110, v109, v103")
        g("v_lshlrev_b32 v110, 4, v110")
        g("v_lshlrev_b32 v109, 8, v109")
        g("v_add3_u32 v107, v107, v109, v110")
        g(f"v_add_u32 v107, {RBASE}, v107")
        g(f"v_and_b32 v111, 3, v{TMP2}")
        g("v_lshlrev_b32 v111, 7, v111")
        g("s_lshl_b32 s46, s16, 9\ns_lshl_b32 s47, s17, 2\ns_add_u32 s46, s46, s47")
        g(f"s_add_u32 s47, s46, {WS_FLAG}")
        g("s_cmp_eq_u32 s19, 0\ns_cselect_b32 s63, 2, 99")
        g(f"v_mov_b32 v{TMP2}, v108")
        for i in range(48, 96): g(f"v_mov_b32 v{i}, 0")
        for i in range(6): g(f"v_mov_b32 v{L0+i}, 0")
        g(f"s_mov_b32 s52, 0x{C_SCALE:08x}")
        g(f"s_mov_b32 s53, 0x{C_SCALE:08x}")
        g("s_mov_b32 s51, 0xffff0000")
        g(f"v_add_u32 v{TMP0}, {7*SLOT}, v{KADDR}")
        g(f"s_mov_b32 s54, {2*SLOT}")
        g("s_mov_b32 s44, 0")
        g("s_lshl_b32 s40, s36, 2")
        for x in range(1, 4):
            g(f"s_xor_b32 s42, s17, {x}")
            g("s_add_u32 s42, s42, s40")
            g(f"s_mul_i32 s{55+x}, s42, 9216")
            if x > 1: g(f"s_add_u32 s{55+x}, s{55+x}, {(x-1)*3072}")
        g("s_add_u32 s42, s40, s17")
        g("s_lshl_b32 s59, s42, 9")
        g(f"s_add_u32 s59, s59, {WS_ML}")
        g("s_mul_i32 s60, s42, 9216")
        g("s_lshl_b32 s61, s36, 7")
        g(f"s_add_u32 s61, s61, {WS_FLAG}")
        g("s_lshl_b32 s62, s16, 2")
        g("s_mov_b32 s26, 12288")
        g("s_mov_b32 s30, 0x10000000")
        g("s_mov_b32 s34, 256")
        g("s_mov_b32 s35, 0x20000")
        g("s_mov_b32 s48, 0x3f80")
        g("s_mov_b32 s49, 0x3f800000")
    if opt.setup == "early": setup()
    if opt.ramp:
        for i in range(8):
            g(f"v_mul_u32_u24 v{112+i}, {0x9e37 + 977*i}, v{TMP3}")
            g(f"v_xor_b32 v{112+i}, 0x3f5a3e91, v{112+i}")
            g(f"v_and_b32 v{112+i}, 0xbfffbfff, v{112+i}")
        for i in range(opt.ramp):
            g(f"v_mfma_f32_16x16x32_bf16 v[{120+4*(i%3)}:{123+4*(i%3)}], v[{112+4*(i&1)}:{115+4*(i&1)}], v[{116-4*(i&1)}:{119-4*(i&1)}], 0")
            if opt.rampgap: g(f"s_nop {opt.rampgap}")
    g.ts(2)
    g("s_waitcnt lgkmcnt(0)")
    g("s_add_u32 s20, s4, s37")
    g("s_addc_u32 s21, s5, 0")
    for i in range(12):
        so = ["0", "s38", "s39"][i // 4]
        g(f"buffer_load_dwordx4 v[{4*i}:{4*i+3}], v{TMP3}, s[20:23], {so} offen offset:{(i%4)*1024} {qpol}")
    g("s_barrier")
    g.ts(1)
    if opt.tsout:
        g("s_add_u32 s24, s14, s37\ns_addc_u32 s25, s15, 0\ns_add_u32 s24, s24, 0x2800000\ns_addc_u32 s25, s25, 0")
    else:
        g("s_add_u32 s24, s10, s37")
        g("s_addc_u32 s25, s11, 0")
    if opt.setup != "early": setup()
    g("s_mov_b32 s28, s14")
    g("s_mov_b32 s29, s15")
    g("s_mov_b32 s32, s12")
    g("s_mov_b32 s33, s13")
    QX = 0
    if opt.hs == "loop":
        g(f"buffer_load_dword v{TMP1}, v111, s[28:31], s47 offen {opt.stalepol}")
        QX = 1
    def qscale_ops(b):
        out = []
        for i in range(4):
            li = b * 4 + i
            grp = [f"s_waitcnt vmcnt({11-li+QX})"]
            for r in range(4): grp += [f"v_lshlrev_b32 v{112+2*r}, 16, v{4*li+r}", f"v_and_b32 v{113+2*r}, s51, v{4*li+r}"]
            for r in range(4): grp.append(f"v_pk_mul_f32 v[{112+2*r}:{113+2*r}], v[{112+2*r}:{113+2*r}], s[52:53]")
            for r in range(4): grp.append(f"v_cvt_pk_bf16_f32 v{4*li+r}, v{112+2*r}, v{113+2*r}")
            grp.append(f"ds_write_b128 v105, v[{4*li}:{4*li+3}] offset:{i*4*QPITCH}")
            out.append(grp)
        out.append([f"ds_read_b128 {Qa(b,s)}, v106 offset:{64*s}" for s in range(4)])
        return out
    def pp_mfma(b, s):
        c = "0" if s == 0 else Cq(b)
        return f"v_mfma_f32_16x16x32_bf16 {Cq(b)}, {Va(s)}, {Qa(b,s)}, {c}"
    for grp in qscale_ops(0): g(grp)
    g.ts(3)
    for grp in qscale_ops(1): g(grp)
    for grp in qscale_ops(2): g(grp)
    zero = [f"v_mov_b32 v{i}, 0" for i in range(48)]
    g(zero[:32])
    g.ts(4)
    g("s_barrier")
    g.ts(5)
    for s in range(4):
        g(f"ds_read_b128 {Va(s)}, v107 offset:{64*s}")
    k0r = [f"ds_read_b128 {Ka(kb,s)}, v{TMP0} offset:{kb*512 + s*64}" for kb in range(2) for s in range(4)]
    g(k0r[:4])
    g(zero[32:40])
    g("s_waitcnt lgkmcnt(4)")
    if opt.pts: g.ts(9)
    pm = [pp_mfma(b, s) for b in range(3) for s in range(4)]
    qk0 = [m.replace(Cq(0), "0") for m in slot_mfmas(5)[:8]]
    class Lst(list):
        def __call__(self, x): self.append(x)
    red = Lst()
    for b in range(3):
        c = C0 + 4 * b
        red += [f"v_max3_f32 v{c}, v{c}, v{c+1}, v{c+2}", f"v_max_f32 v{c}, v{c}, v{c+3}"]
    xlane3(red, [C0, C0 + 4, C0 + 8], [C0 + 1, C0 + 5, C0 + 9], "v_max_f32")
    for i in range(12):
        g(pm[i])
        if i < 4: g(k0r[4 + i])
        elif i < 8: g(zero[40 + 2 * (i - 4):42 + 2 * (i - 4)])
        elif i >= 10: g(red[2 * (i - 10):2 * (i - 10) + 2])
    if opt.pts: g.ts(10)
    g("s_waitcnt lgkmcnt(0)")
    rest = red[4:]
    for i in range(8):
        g(qk0[i])
        if i == 3: g("s_nop 2")
        if i >= 3: g(rest[(i - 3) * len(rest) // 5:(i - 2) * len(rest) // 5])
    if opt.pts: g.ts(11)
    g("s_barrier")
    if opt.pts: g.ts(12)
    for r in range(8): g(vread(r, 0))
    for i in range(8): g(f"v_sub_f32 v{S(0,i)}, v{S(0,i)}, v{C0}")
    smA = softmax_ops(6, "add")
    neg = []
    for b in (1, 2, 0):
        c = C0 + 4 * b
        for i in (1, 2, 3, 0):
            neg.append(f"v_sub_f32 v{c+i}, 0, v{c}")
    side = [f"v_mov_b32 v108, v{C0}", f"v_mov_b32 v109, v{C0+4}", f"v_mov_b32 v110, v{C0+8}",
            f"buffer_store_dwordx4 v[108:111], v{TMP2}, s[28:31], s59 offen offset:256 sc1"]
    for i in range(8):
        g(smA[8 + i])
        g(neg[i * 12 // 8:(i + 1) * 12 // 8])
    g(side)
    g.ts(6)
    g("s_branch L_k0")
    NT = opt.nt
    niter = 8 - NT // 2 if NT else 8
    slots = loop_body("add", rotated=True, niter=niter, vlast=int(opt.vlast, 0), klast=int(opt.klast, 0))
    for pi, ph in enumerate(opt.phases.split(",")):
        e, run, vl, kl = ph.split(":")
        e = min(int(e), niter)
        sl = loop_body("add", rotated=True, niter=e, vlast=int(vl, 16), klast=int(kl, 16), run=int(run))
        g(f"L_loop{pi}:")
        g(sl[4]); g(sl[-1])
        if pi == 0: g("L_k0:")
        for k in range(4): g(sl[k])
        g(f"s_cbranch_scc1 L_loop{pi}")
    assert e == niter
    g("L_tail:")
    g.ts(7)
    T0 = 16 - NT
    TS = 16 - opt.skew if opt.skew >= 0 else T0
    units = [(t, b) for t in range(TS) for b in range(3)] + [(t, b) for t in range(TS, 16) for b in range(2)] + [(t, 2) for t in range(TS, 16)]
    n0 = 6 * (niter - 1) + 4
    base = (2 * (niter - 1)) & 7
    first, last = {}, {}
    kslot0, vslot0 = base + 1, base + 2
    if NT:
        g(f"v_add_u32 v{KADDR}, {SLOT}, v{KADDR}")
        g(f"v_add_u32 v{VADDR}, {2*SLOT}, v{VADDR}")
    g(f"buffer_load_dword v{TMP0}, off, s[32:35], s62 sc1")
    fin = {b: max(n for n in range(48) if units[n][1] == b) for b in range(3)}
    for b in range(2):
        n = fin[b] + 1
        for x in range(1, 4):
            ops = pack_ops(x, b)
            if n < 47:
                gp = {1: (3, 4), 2: (6, 6), 3: (7, 7)}[x]
                last.setdefault((n, gp[0]), []).extend(ops[:2]); last.setdefault((n, gp[1]), []).extend(ops[2:])
                first.setdefault((n, gp[1] + 1), []).append(pay_store(x, b, opt))
            else:
                last.setdefault((n, 2 * x - 1), []).extend(ops + [pay_store(x, b, opt)])
    lred = Lst()
    for b in range(3): lred(f"v_add_f32 v{96+b}, v{L0+2*b}, v{L0+2*b+1}")
    xlane3(lred, [96, 97, 98], [100, 101, 102], "v_add_f32")
    lred("v_mov_b32 v99, 0")
    lred(f"buffer_store_dwordx4 v[96:99], v{TMP2}, s[28:31], s59 offen {opt.stpol}")
    lred(f"v_add_f32 v{TMP1}, v96, v97")
    lred("s_mov_b32 s50, " + ("0x5f800000" if not opt.force_fb else "0x00000000"))
    lred(f"v_add_f32 v{TMP1}, v{TMP1}, v98")
    lred(f"v_cmp_nlt_f32 vcc, v{TMP1}, s50")
    for i in range(5):
        last.setdefault((47, 8 + i), []).extend(lred[i * len(lred) // 5:(i + 1) * len(lred) // 5])
    last.setdefault((47, 13), []).extend(pack_ops(1, 2) + [pay_store(1, 2, opt)])
    last.setdefault((47, 15), []).extend(pack_ops(2, 2) + [pay_store(2, 2, opt)] + pack_ops(3, 2) + [pay_store(3, 2, opt)])
    last.setdefault((47, 7), []).append("s_nop 0")
    if opt.lpf:
        for pt in opt.lpf.split(","):
            n, gp = pt.split(":")
            first.setdefault((int(n), int(gp)), []).append("s_barrier")
    g(tail_slots(n0, units, kslot0, vslot0, 2 * niter - 1, first, last, pv_last=[2, 3, 4, 5, 6, 7, 0, 1]))
    g.ts(8)
    g("s_cbranch_vccz L_sent")
    g("s_waitcnt vmcnt(0)")
    g("s_branch L_slow")
    g("L_sent:")
    g("s_mov_b32 s47, 0x100000")
    g("s_waitcnt vmcnt(10)")
    g("L_hs:")
    g(f"v_readfirstlane_b32 s44, v{TMP0}")
    g("s_and_b32 s45, s44, 0x80808080")
    g("s_cmp_eq_u32 s45, 0x80808080")
    g("s_cbranch_scc0 L_hs_retry")
    g("L_hs_ok:")
    g("s_lshr_b32 s45, s44, 8")
    g("s_xor_b32 s45, s45, s44")
    g("s_and_b32 s45, s45, 0x00707070")
    if opt.force_slow:
        g("s_mov_b32 s45, 1")
    g(f"v_bfe_u32 v100, v{TMP3}, 4, 2")
    g("v_lshlrev_b32 v101, 3, v100")
    g("v_add_u32 v101, s19, v101")
    g("v_lshrrev_b32 v101, v101, s44")
    g("v_and_b32 v101, 1, v101")
    g("v_lshlrev_b32 v100, 2, v100")
    g("s_lshl_b32 s46, s17, 3")
    g("s_add_u32 s46, s46, s19")
    g("s_lshr_b32 s46, s44, s46")
    g("s_and_b32 s46, s46, 1")
    g("v_mov_b32 v102, s46")
    g("s_lshl_b32 s46, s17, 2")
    g("s_add_u32 s46, s46, s61")
    for x in range(1, 4):
        g(f"s_xor_b32 s{19+x}, s59, {x<<9}")
    g("s_add_u32 s40, s60, 3072\ns_add_u32 s41, s60, 6144")
    g("s_mov_b32 s47, 0x100000")
    g("s_cmp_lg_u32 s45, 0")
    g.ts(9)
    g("s_waitcnt vmcnt(0)")
    g.ts(10)
    g("s_cbranch_scc1 L_xcd_flag")
    g(f"buffer_store_dword v102, off, s[28:31], s46 {opt.flagpol}")
    if opt.wb and opt.wbpos == 0: g("s_barrier")
    g("L_poll:")
    g(f"buffer_load_dword v103, v100, s[28:31], s61 offen {opt.pollpol}")
    g("s_waitcnt vmcnt(0)")
    g("v_and_b32 v103, 1, v103")
    g("v_cmp_ne_u32 vcc, v103, v101")
    g("s_cbranch_vccz L_poll_ok")
    g("s_sub_u32 s47, s47, 1")
    g("s_cbranch_scc0 L_poll")
    g("L_poll_ok:")
    g.ts(11)
    LR = lambda x: 100 + 4 * x
    PR = lambda x, b: 24 + ((x - 1) * 3 + b) * 4
    def inbox_loads(lp):
        for x in range(1, 4):
            g(f"buffer_load_dwordx4 v[{LR(x)}:{LR(x)+3}], v{TMP2}, s[28:31], s{19+x} offen {lp}")
        for b in range(3):
            for x in range(1, 4):
                g(f"buffer_load_dwordx4 v[{PR(x,b)}:{PR(x,b)+3}], v{TMP3}, s[28:31], {['s60','s40','s41'][x-1]} offen offset:{b*1024} {lp}")
    inbox_loads(opt.ldpol)
    if opt.wb and opt.wbpos == 1: g("s_barrier")
    g("L_loaded:")
    g(f"v_bfe_u32 v132, v{TMP3}, 4, 4")
    g("v_lshlrev_b32 v132, 8, v132")
    if opt.out4:
        g(f"v_bfe_u32 v133, v{TMP3}, 8, 1\nv_lshlrev_b32 v133, 5, v133")
        g(f"v_bfe_u32 v134, v{TMP3}, 9, 1\nv_lshl_add_u32 v133, v134, 4, v133")
    else:
        g(f"v_lshrrev_b32 v133, 8, v{TMP3}")
        g("v_lshlrev_b32 v133, 3, v133")
    g("s_lshl_b32 s42, s17, 6")
    g("v_add3_u32 v132, v132, v133, s42")
    g("s_waitcnt vmcnt(9)")
    g.ts(12)
    g(f"v_or3_b32 v99, v99, v{LR(1)+3}, v{LR(2)+3}")
    g(f"v_or_b32 v99, v99, v{LR(3)+3}")
    g("v_cmp_ne_u32 vcc, 0, v99")
    g("s_cbranch_vccnz L_general")
    for x in range(1, 4):
        for b in range(3):
            g(f"v_add_f32 v{96+b}, v{96+b}, v{LR(x)+b}")
    for b in range(3): g(f"v_rcp_f32 v{96+b}, v{96+b}")
    def acc_reg(b, i): return O(i // 4, b, i % 4)
    nst = 1 if opt.out4 else 2
    for b in range(3):
        for x in range(1, 4):
            g(f"s_waitcnt vmcnt({9 - (b*3 + x) + b*nst})")
            if x == 3 and b == 2: g.ts(13)
            for r in range(4):
                src = PR(x, b) + r
                g(f"v_dot2c_f32_bf16 v{acc_reg(b,2*r)}, s48, v{src}")
                g(f"v_dot2c_f32_bf16 v{acc_reg(b,2*r+1)}, s49, v{src}")
        out_store(g, b, 96 + b, opt)
    g("L_done:")
    g.ts(14)
    if opt.ts:
        g("s_waitcnt vmcnt(0)")
        g.ts(15)
    g.ts_store(0)
    g("L_end:")
    g("s_endpgm")
    g("L_hs_retry:")
    g("s_sleep 2")
    g(f"buffer_load_dword v{TMP0}, off, s[32:35], s62 sc1")
    g("s_sub_u32 s47, s47, 1")
    g("s_waitcnt vmcnt(0)")
    g("s_cbranch_scc0 L_hs")
    g("s_branch L_hs_ok")
    g("L_xcd_flag:")
    g(f"buffer_store_dwordx4 v[96:99], v{TMP2}, s[28:31], s59 offen sc1")
    for b in range(3):
        for x in range(1, 4):
            g(pay_store(x, b, opt, "sc1"))
    g("s_waitcnt vmcnt(0)")
    g("buffer_store_dword v102, off, s[28:31], s46 sc1")
    g("L_poll2:")
    g("buffer_load_dword v103, v100, s[28:31], s61 offen sc1")
    g("s_waitcnt vmcnt(0)")
    g("v_and_b32 v103, 1, v103")
    g("v_cmp_ne_u32 vcc, v103, v101")
    g("s_cbranch_vccz L_poll2_ok")
    g("s_sub_u32 s47, s47, 1")
    g("s_cbranch_scc0 L_poll2")
    g("L_poll2_ok:")
    inbox_loads("sc1")
    g("s_branch L_loaded")
    g("L_general:")
    CR = lambda x: 60 + 4 * x
    for x in range(1, 4):
        g(f"buffer_load_dwordx4 v[{CR(x)}:{CR(x)+3}], v{TMP2}, s[28:31], s{19+x} offen offset:256 sc1")
    for b in range(3): g(f"v_mov_b32 v{CR(0)+b}, v{C0+4*b}")
    g("s_waitcnt vmcnt(0)")
    for b in range(3):
        g(f"v_min3_f32 v100, v{CR(0)+b}, v{CR(1)+b}, v{CR(2)+b}")
        g(f"v_min_f32 v100, v100, v{CR(3)+b}")
        for x in range(4): g(f"v_sub_f32 v{CR(x)+b}, v100, v{CR(x)+b}")
        for x in range(4): g(f"v_exp_f32 v{CR(x)+b}, v{CR(x)+b}")
        g("s_nop 0")
        g(f"v_mul_f32 v{96+b}, v{96+b}, v{CR(0)+b}")
        for x in range(1, 4): g(f"v_fmac_f32 v{96+b}, v{CR(x)+b}, v{LR(x)+b}")
    for b in range(3): g(f"v_rcp_f32 v{96+b}, v{96+b}")
    for b in range(3):
        for i in range(8): g(f"v_mul_f32 v{acc_reg(b,i)}, v{acc_reg(b,i)}, v{CR(0)+b}")
        for x in range(1, 4):
            for r in range(4):
                src = PR(x, b) + r
                g(f"v_lshlrev_b32 v116, 16, v{src}")
                g(f"v_and_b32 v117, s51, v{src}")
                g(f"v_fmac_f32 v{acc_reg(b,2*r)}, v116, v{CR(x)+b}")
                g(f"v_fmac_f32 v{acc_reg(b,2*r+1)}, v117, v{CR(x)+b}")
        out_store(g, b, 96 + b, opt)
    g("s_branch L_done")
    g("L_code_end:")
    slow_path(g, opt)
    g.o.append(f""".section .rodata,"a"
.p2align 6
.amdhsa_kernel {KN}
  .amdhsa_next_free_vgpr {NV+NA}
  .amdhsa_next_free_sgpr 102
  .amdhsa_accum_offset {NV}
  .amdhsa_group_segment_fixed_size 0
  .amdhsa_kernarg_size 48
  .amdhsa_user_sgpr_count 2
  .amdhsa_user_sgpr_kernarg_segment_ptr 1
  .amdhsa_system_sgpr_workgroup_id_x 1
.end_amdhsa_kernel""")
    return "\n".join(g.o) + "\n"


def out_store(g, b, rl, opt):
    o, p = O(0, b), O(1, b)
    so = ["0", "s38", "s39"][b]
    for r in range(4): g(f"v_mul_f32 v{o+r}, v{o+r}, v{rl}")
    for r in range(4): g(f"v_mul_f32 v{p+r}, v{p+r}, v{rl}")
    if opt.out4:
        g(f"v_cvt_pk_bf16_f32 v{o}, v{o}, v{o+1}")
        g(f"v_cvt_pk_bf16_f32 v{o+1}, v{o+2}, v{o+3}")
        g(f"v_cvt_pk_bf16_f32 v{o+2}, v{p}, v{p+1}")
        g(f"v_cvt_pk_bf16_f32 v{o+3}, v{p+2}, v{p+3}")
        g("s_nop 0")
        g(f"v_permlane16_swap_b32 v{o}, v{o+2}")
        g(f"v_permlane16_swap_b32 v{o+1}, v{o+3}")
        g("s_nop 0")
        g(f"buffer_store_dwordx4 v[{o}:{o+3}], v132, s[24:27], {so} offen {opt.outpol}")
        return
    for h in range(2):
        o = O(h, b)
        g(f"v_cvt_pk_bf16_f32 v{o}, v{o}, v{o+1}")
        g(f"v_cvt_pk_bf16_f32 v{o+1}, v{o+2}, v{o+3}")
        g(f"buffer_store_dwordx2 v[{o}:{o+1}], v132, s[24:27], {so} offen offset:{32*h} {opt.outpol}")


if __name__ == "__main__":
    ap = argparse.ArgumentParser()
    ap.add_argument("-o", default="standalone__gqa_softmax__near_ridge.s")
    ap.add_argument("--kvpol", default="nt")
    ap.add_argument("--qpol", default="nt")
    ap.add_argument("--stpol", default="")
    ap.add_argument("--ldpol", default="nt")
    ap.add_argument("--outpol", default="")
    ap.add_argument("--ts", type=int, default=0)
    ap.add_argument("--lpf", default="")
    ap.add_argument("--sc1b", type=int, default=0)
    ap.add_argument("--wb", type=int, default=0)
    ap.add_argument("--wbpos", type=int, default=0)
    ap.add_argument("--pw_always", type=int, default=0)
    ap.add_argument("--phases", default="6:1:ffff:ff,8:1:0:0")
    ap.add_argument("--cpf_from", default="L_loop1")
    ap.add_argument("--cpf", type=int, default=2)
    ap.add_argument("--skew", type=int, default=-1)
    ap.add_argument("--vlast", default="0")
    ap.add_argument("--klast", default="0")
    ap.add_argument("--split", type=int, default=0)
    ap.add_argument("--pad2", type=int, default=0)
    ap.add_argument("--ramp", type=int, default=0)
    ap.add_argument("--rampgap", type=int, default=0)
    ap.add_argument("--pad", type=int, default=0)
    ap.add_argument("--out4", type=int, default=1)
    ap.add_argument("--pw_at", type=int, default=12)
    ap.add_argument("--nt", type=int, default=0)
    ap.add_argument("--sched", default="2,1,1")
    ap.add_argument("--rot", type=int, default=0)
    ap.add_argument("--hs_at", type=int, default=2)
    ap.add_argument("--probe", type=int, default=0)
    ap.add_argument("--vpol", default=None)
    ap.add_argument("--hs", default="loader")
    ap.add_argument("--setup", default="early")
    ap.add_argument("--tsout", type=int, default=0)
    ap.add_argument("--pts", type=int, default=0)
    ap.add_argument("--exp_x1", type=int, default=0)
    ap.add_argument("--exp_2x", type=int, default=0)
    ap.add_argument("--prewarm", default="")
    ap.add_argument("--linear", type=int, default=0)
    ap.add_argument("--trace", type=int, default=0)
    ap.add_argument("--pollpol", default="nt")
    ap.add_argument("--stalepol", default="")
    ap.add_argument("--dot", type=int, default=1)
    ap.add_argument("--flagpol", default="")
    ap.add_argument("--depth", type=int, default=3)
    ap.add_argument("--init_pairs", type=int, default=2)
    ap.add_argument("--force_slow", type=int, default=0)
    ap.add_argument("--force_fb", type=int, default=0)
    opt = ap.parse_args()
    open(opt.o, "w").write(gen(opt))
```

```python
import sys, argparse, struct, math
from body import *

KN = "standalone__gqa_softmax__near_ridge_kernel"
NSLOT = 8
RING = NSLOT * SLOT
QBASE = RING
QPITCH = 288
QWAVE = 16 * QPITCH
RBASE = QBASE + 4 * QWAVE
RPITCH = 1088
LDS_BYTES = RBASE + 4 * RPITCH

WS_ML = 16 << 20
WS_FLAG = 24 << 20
WS_TS = 32 << 20
C_SCALE = struct.unpack("<I", struct.pack("<f", math.log2(math.e) / math.sqrt(128.0)))[0]
NTS = 16


class G:
    def __init__(self, opt):
        self.o = []
        self.opt = opt
    def __call__(self, s):
        if isinstance(s, list):
            for x in s: self(x)
            return
        for l in s.split("\n"):
            l = l.strip()
            if l:
                self.o.append(("" if l.endswith(":") else "    ") + l)
    def ts(self, idx):
        if self.opt.pts and idx >= 9:
            self.seen = getattr(self, "seen", set())
            if idx in self.seen: return
            self.seen.add(idx)
        if self.opt.ts:
            self(f"s_memrealtime s[{64+2*idx}:{65+2*idx}]" if self.opt.ts == 2 else f"s_memtime s[{64+2*idx}:{65+2*idx}]")
    def ts_store(self, widx):
        if not self.opt.ts: return
        self("s_waitcnt vmcnt(0) lgkmcnt(0)")
        if self.opt.probe:
            if widx == 0:
                i = self.opt.probe
                self(f"s_sub_u32 s40, s{64+2*i}, s64\ns_lshl_b32 s40, s40, 3")
                self("L_probe:\ns_sleep 8\ns_memrealtime s[42:43]\ns_waitcnt lgkmcnt(0)\ns_sub_u32 s41, s42, s64\ns_cmp_lt_u32 s41, s40\ns_cbranch_scc1 L_probe")
            return
        if self.opt.tsout:
            self("s_mov_b32 s28, s10\ns_mov_b32 s29, s11\ns_mov_b32 s30, 0x300000\ns_mov_b32 s31, 0x20000")
            self("s_lshl_b32 s42, s2, 3\ns_add_u32 s42, s42, s18\ns_lshl_b32 s42, s42, 6")
            for i in range(1, NTS):
                self(f"s_sub_u32 s{64+2*i}, s{64+2*i}, s64")
            self("v_mov_b32 v1, 0")
            for i in range(NTS):
                self(f"v_writelane_b32 v1, s{64+2*i}, {i}")
            self("v_and_b32 v1, 0x3fff, v1")
            self("v_lshrrev_b32 v2, 6, v1\nv_and_b32 v3, 63, v1\nv_cvt_f32_u32 v2, v2\nv_cvt_f32_u32 v3, v3\nv_cvt_pk_bf16_f32 v2, v2, v3")
            self("v_mbcnt_lo_u32_b32 v4, -1, 0\nv_lshlrev_b32 v4, 2, v4")
            self("s_mov_b64 exec, 0xffff")
            self("buffer_store_dword v2, v4, s[28:31], s42 offen")
            return
        self("s_mov_b32 s28, s14\ns_mov_b32 s29, s15\ns_mov_b32 s30, 0x10000000\ns_mov_b32 s31, 0x20000")
        self("s_lshl_b32 s42, s2, 3")
        self("s_add_u32 s42, s42, s18")
        self("s_lshl_b32 s42, s42, 6")
        self(f"s_add_u32 s42, s42, {WS_TS}")
        for i in range(NTS):
            self(f"v_mov_b32 v1, s{64+2*i}")
            self(f"buffer_store_dword v1, off, s[28:31], s42 offset:{4*i}")
            self("s_nop 1")


def xlane(g, a, t, op):
    g(f"v_mov_b32 v{t}, v{a}")
    g("s_nop 1")
    g(f"v_permlane32_swap_b32 v{a}, v{t}")
    g("s_nop 1")
    g(f"{op} v{a}, v{a}, v{t}")
    g(f"v_mov_b32 v{t}, v{a}")
    g("s_nop 1")
    g(f"v_permlane16_swap_b32 v{a}, v{t}")
    g("s_nop 1")
    g(f"{op} v{a}, v{a}, v{t}")


def xlane3(g, regs, tmps, op):
    for sw in ("v_permlane32_swap_b32", "v_permlane16_swap_b32"):
        for a, t in zip(regs, tmps): g(f"v_mov_b32 v{t}, v{a}")
        g("s_nop 0")
        for a, t in zip(regs, tmps): g(f"{sw} v{a}, v{t}")
        g("s_nop 0")
        for a, t in zip(regs, tmps): g(f"{op} v{a}, v{a}, v{t}")


def slow_path(g, opt):
    g("L_slow:")
    g("s_lshl_b32 s38, s16, 19")
    g("s_lshl_b32 s39, s17, 17")
    g("s_add_u32 s38, s38, s39")
    g("s_add_u32 s20, s6, s38\ns_addc_u32 s21, s7, 0\ns_mov_b32 s22, 0x20000\ns_mov_b32 s23, 0x20000")
    g("s_add_u32 s96, s8, s38\ns_addc_u32 s97, s9, 0\ns_mov_b32 s98, 0x20000\ns_mov_b32 s99, 0x20000")
    g("s_movk_i32 s38, 0x1000\ns_movk_i32 s39, 0x2000")
    g(f"v_mbcnt_lo_u32_b32 v{TMP2}, -1, 0")
    g(f"v_mbcnt_hi_u32_b32 v{TMP2}, -1, v{TMP2}")
    addr_setup(g, TMP2, 96)
    g("s_cmp_eq_u32 s19, 3\ns_cselect_b32 s42, 8, s19")
    g(f"s_mul_i32 s42, s42, {SLOT}")
    g(f"v_add_u32 v{KADDR}, s42, v{KADDR}")
    g(f"v_add_u32 v{VADDR}, s42, v{VADDR}")
    g(f"v_lshlrev_b32 v{TMP2}, 4, v{TMP2}")
    g("s_lshl_b32 s43, s17, 6")
    g(f"v_xor_b32 v{TMP3}, s43, v{TMP2}")
    for i in range(96): g(f"v_mov_b32 v{i}, 0")
    for i in range(6): g(f"v_mov_b32 v{L0+i}, 0")
    for b in range(3): g(f"v_mov_b32 v{C0+4*b}, 0x7f000000")
    g("s_mov_b32 s44, 0")
    g("L_slow_loop:")
    g("s_mov_b32 s45, s44")
    g("s_mov_b32 s46, s42")
    g("L_slow_ld:")
    g("s_mov_b32 m0, s46")
    g(f"s_add_u32 s47, s46, {TILE}")
    g(f"buffer_load_dwordx4 v{TMP2}, s[20:23], s45 offen lds")
    g("s_mov_b32 m0, s47")
    g(f"s_add_u32 s46, s46, {PIECE}")
    g(f"buffer_load_dwordx4 v{TMP3}, s[96:99], s45 offen lds")
    g("s_add_u32 s45, s45, 1024")
    g("s_and_b32 s47, s45, 0x1fff")
    g("s_cbranch_scc1 L_slow_ld")
    g("s_waitcnt vmcnt(0)")
    for i in range(8): g(kread(i, 0))
    for r in range(16): g(vread(r, 0))
    g("s_waitcnt lgkmcnt(0)")
    for b in range(3):
        c = C0 + 4 * b
        s = lambda i: f"v{S(0, i)}"
        for kb in range(2):
            for st in range(4):
                cc = "0" if st == 0 else Sq(0, kb)
                g(f"v_mfma_f32_16x16x32_bf16 {Sq(0,kb)}, {Ka(kb,st)}, {Qa(b,st)}, {cc}")
        g("s_nop 7")
        g(f"v_max3_f32 v{TMP0}, {s(0)}, {s(1)}, {s(2)}")
        g(f"v_max3_f32 v{TMP0}, v{TMP0}, {s(3)}, {s(4)}")
        g(f"v_max3_f32 v{TMP0}, v{TMP0}, {s(5)}, {s(6)}")
        g(f"v_max3_f32 v{TMP0}, v{TMP0}, {s(7)}, -v{c}")
        xlane(g, TMP0, TMP1, "v_max_f32")
        g(f"v_add_f32 v{TMP1}, v{c}, v{TMP0}")
        g(f"v_exp_f32 v{TMP1}, -v{TMP1}")
        g(f"v_sub_f32 v{c}, 0, v{TMP0}")
        for i in range(8): g(f"v_sub_f32 {s(i)}, {s(i)}, v{TMP0}")
        for i in range(8): g(f"v_exp_f32 {s(i)}, {s(i)}")
        g(f"v_mul_f32 v{L0+2*b}, v{L0+2*b}, v{TMP1}")
        for db in range(8):
            for r in range(4): g(f"v_mul_f32 v{O(db,b,r)}, v{O(db,b,r)}, v{TMP1}")
        for i in range(4): g(f"v_cvt_pk_bf16_f32 v{P(0,i)}, {s(2*i)}, {s(2*i+1)}")
        for i in range(8): g(f"v_add_f32 v{L0+2*b}, v{L0+2*b}, {s(i)}")
        for db in range(8):
            g(f"v_mfma_f32_16x16x32_bf16 {Oq(db,b)}, {Va(db)}, {Pq(0)}, {Oq(db,b)}")
    g("s_add_u32 s44, s44, 0x2000")
    g("s_cmp_lt_u32 s44, 0x20000")
    g("s_cbranch_scc1 L_slow_loop")
    g("s_nop 7")
    xlane3(g, [L0, L0 + 2, L0 + 4], [TMP0, TMP1, TMP2], "v_add_f32")
    g(f"v_mbcnt_lo_u32_b32 v{TMP3}, -1, 0")
    g(f"v_mbcnt_hi_u32_b32 v{TMP3}, -1, v{TMP3}")
    g(f"v_lshlrev_b32 v{TMP3}, 4, v{TMP3}")
    g(f"v_and_b32 v{TMP2}, 0xf0, v{TMP3}")
    g(f"v_mov_b32 v{TMP0}, 0")
    g(f"v_mov_b32 v100, v{C0}\nv_mov_b32 v101, v{C0+4}\nv_mov_b32 v102, v{C0+8}\nv_mov_b32 v103, 0")
    g(f"buffer_store_dwordx4 v[100:103], v{TMP2}, s[28:31], s59 offen offset:256 sc1")
    g(f"v_mov_b32 v96, v{L0}\nv_mov_b32 v97, v{L0+2}\nv_mov_b32 v98, v{L0+4}\nv_mov_b32 v99, 1")
    g(f"buffer_store_dwordx4 v[96:99], v{TMP2}, s[28:31], s59 offen sc1")
    for b in range(3):
        for x in range(1, 4):
            g(pack_ops(x, b))
            g(pay_store(x, b, opt))
    g("s_branch L_sent")


def pack_ops(x, b):
    o, p = O(2 * x, b), O(2 * x + 1, b)
    return [f"v_cvt_pk_bf16_f32 v{o}, v{o}, v{o+1}", f"v_cvt_pk_bf16_f32 v{o+1}, v{o+2}, v{o+3}",
            f"v_cvt_pk_bf16_f32 v{o+2}, v{p}, v{p+1}", f"v_cvt_pk_bf16_f32 v{o+3}, v{p+2}, v{p+3}"]

def pay_store(x, b, opt, pol=None):
    if pol is None and (opt.sc1b >> b) & 1: pol = "sc1"
    return f"buffer_store_dwordx4 {Oq(2*x, b)}, v{TMP3}, s[28:31], s{55+x} offen offset:{b*1024} {opt.stpol if pol is None else pol}"


def addr_setup(g, lane, t):
    g(f"v_and_b32 v{t}, 7, v{lane}")
    g(f"v_mul_u32_u24 v{t}, {PIECE}, v{t}")
    g(f"v_bfe_u32 v{t+1}, v{lane}, 3, 1")
    g(f"v_lshlrev_b32 v{t+1}, 8, v{t+1}")
    g(f"v_and_b32 v{t+2}, 48, v{lane}")
    g(f"v_add3_u32 v{KADDR}, v{t}, v{t+1}, v{t+2}")
    g(f"v_bfe_u32 v{t}, v{lane}, 2, 3")
    g(f"v_mul_u32_u24 v{t}, {PIECE}, v{t}")
    g(f"v_lshrrev_b32 v{t+1}, 5, v{lane}")
    g(f"v_lshlrev_b32 v{t+1}, 8, v{t+1}")
    g(f"v_and_b32 v{t+3}, 3, v{lane}")
    g(f"v_lshlrev_b32 v{t+3}, 3, v{t+3}")
    g(f"v_add3_u32 v{VADDR}, v{t}, v{t+1}, v{t+3}")
    g(f"v_add_u32 v{VADDR}, {TILE}, v{VADDR}")


def gen(opt):
    g = G(opt)
    kvpol, qpol = opt.kvpol, opt.qpol
    vpol = opt.vpol if opt.vpol is not None else kvpol
    g.o.append(f"; @launch grid=(256,1,1) block=(512,1,1) lds={LDS_BYTES}")
    g.o.append('.amdgcn_target "amdgcn-amd-amdhsa--gfx950"')
    g.o.append(".text")
    g.o.append(f".globl {KN}")
    g.o.append(".p2align 8")
    g.o.append(f".type {KN},@function")
    g(f"{KN}:")
    g("s_load_dwordx8 s[4:11], s[0:1], 0")
    g("s_load_dwordx4 s[12:15], s[0:1], 32")
    g.ts(0)
    g("s_cmp_ge_u32 s2, 256")
    g("s_cbranch_scc1 L_end")
    g("v_lshrrev_b32 v1, 6, v0")
    g("s_and_b32 s16, s2, 7")
    g("s_lshr_b32 s17, s2, 3")
    g("v_readfirstlane_b32 s18, v1")
    g("s_lshl_b32 s16, s16, 3")
    g("s_lshr_b32 s19, s17, 2")
    g("s_add_u32 s16, s16, s19")
    g("s_and_b32 s17, s17, 3")
    if opt.linear:
        g("s_lshr_b32 s16, s2, 2\ns_and_b32 s17, s2, 3")
    g(f"v_and_b32 v{TMP2}, 63, v0")
    g(f"v_lshlrev_b32 v{TMP3}, 4, v{TMP2}")
    g("s_and_b32 s19, s18, 3")
    g("s_mov_b32 s23, 0x20000")
    g("s_mov_b32 s27, 0x20000")
    g("s_mov_b32 s31, 0x20000")
    def q_issue():
        g("s_waitcnt lgkmcnt(0)")
        g("s_add_u32 s20, s4, s37")
        g("s_addc_u32 s21, s5, 0")
        for i in range(12):
            so = ["0", "s38", "s39"][i // 4]
            g(f"buffer_load_dwordx4 v[{4*i}:{4*i+3}], v{TMP3}, s[20:23], {so} offen offset:{(i%4)*1024} {qpol}")
        g("s_barrier")
    def q_pre():
        g("s_lshl_b32 s36, s16, 2")
        g("s_add_u32 s36, s36, s19")
        g("s_mul_i32 s37, s36, 12288")
        g("s_mov_b32 s22, 12288")
        g("s_movk_i32 s38, 0x1000")
        g("s_movk_i32 s39, 0x2000")
    if opt.qfirst:
        g("s_cmp_ge_u32 s18, 4")
        g("s_cbranch_scc1 L_loader")
        q_pre()
        q_issue()
        g("s_branch L_compute")
        g("L_loader:")
    else:
        g("s_cmp_lt_u32 s18, 4")
        g("s_cbranch_scc1 L_compute")

    g("s_lshl_b32 s36, s19, 11")
    g("s_lshl_b32 s37, s17, 6")
    g(f"v_xor_b32 v2, s37, v{TMP3}")
    g(f"v_add_u32 v1, s36, v{TMP3}")
    g("v_add_u32 v2, s36, v2")
    g("s_lshl_b32 s38, s16, 19")
    g("s_lshl_b32 s39, s17, 17")
    g("s_add_u32 s39, s38, s39")
    g(f"s_mul_i32 s42, s19, {2*PIECE}")
    g("s_mov_b32 s22, 0x20000")
    g("s_mov_b32 s26, 0x20000")
    g("s_movk_i32 s30, 0x1000")
    g(f"s_mul_i32 s44, s19, {RPITCH}")
    g(f"s_add_u32 m0, s44, {RBASE}")
    g(f"v_and_b32 v5, 48, v{TMP2}")
    g(f"v_xor_b32 v5, v5, v{TMP3}")
    g("s_lshl_b32 s45, s19, 10")
    if opt.rot:
        g(f"s_lshr_b32 s41, s2, {opt.rot - 1}\ns_and_b32 s41, s41, 15\ns_lshl_b32 s41, s41, 13")
    else:
        g("s_mov_b32 s41, 0")
    g("s_lshl_b32 s46, s16, 9")
    g("s_lshl_b32 s47, s17, 2")
    g("s_add_u32 s46, s46, s47")
    g(f"s_add_u32 s46, s46, {WS_FLAG}")
    g(f"v_and_b32 v3, 3, v{TMP2}")
    g("v_lshlrev_b32 v3, 7, v3")
    g(f"v_lshlrev_b32 v13, 2, v{TMP2}")
    g("s_mov_b32 s34, 0x10000000")
    g("s_mov_b32 s35, 0x20000")
    g("s_mov_b32 s50, 256")
    g("s_mov_b32 s51, 0x20000")
    if opt.cpf:
        g(f"s_cmp_ge_u32 s2, {8*opt.cpf}")
        g("s_cbranch_scc1 L_nocpf")
        g("s_getpc_b64 s[52:53]")
        g("L_pc:")
        if opt.cpf_from:
            g(f"s_add_u32 s52, s52, {opt.cpf_from}-L_pc")
            g("s_addc_u32 s53, s53, 0")
            g(f"s_mov_b32 s54, L_general-{opt.cpf_from}")
        else:
            g(f"s_sub_u32 s52, s52, L_pc-{KN}")
            g("s_subb_u32 s53, s53, 0")
            g(f"s_mov_b32 s54, L_code_end-{KN}")
        g("s_mov_b32 s55, 0x20000")
        g("s_lshr_b32 s56, s2, 3\ns_lshl_b32 s56, s56, 2\ns_add_u32 s56, s56, s19\ns_lshl_b32 s56, s56, 10")
        g(f"buffer_load_dwordx4 v[20:23], v{TMP3}, s[52:55], s56 offen")
        g("L_nocpf:")
    g("s_waitcnt lgkmcnt(0)")
    g("s_add_u32 s28, s6, s38")
    g("s_addc_u32 s29, s7, 0")
    g("buffer_load_dwordx4 v5, s[28:31], s45 offen lds")
    g(f"s_add_u32 m0, s42, {7*SLOT}")
    g("s_add_u32 s20, s6, s39")
    g("s_addc_u32 s21, s7, 0")
    g(f"buffer_load_dwordx4 v1, s[20:23], s41 offen {kvpol} lds")
    g(f"s_add_u32 m0, s42, {7*SLOT+32}")
    g("s_add_u32 s24, s8, s39")
    g("s_addc_u32 s25, s9, 0")
    g(f"buffer_load_dwordx4 v1, s[20:23], s41 offen offset:1024 {kvpol} lds")
    g("s_mov_b32 s32, s14")
    g("s_mov_b32 s33, s15")
    g("s_mov_b32 s48, s12")
    g("s_mov_b32 s49, s13")
    if opt.hs == "loader":
        g("s_cmp_lg_u32 s19, 0")
        g("s_cbranch_scc1 L_nohs1")
        g(f"buffer_load_dword v4, v3, s[32:35], s46 offen {opt.stalepol}")
        g("L_nohs1:")
    g("s_barrier")
    g.ts(1)
    def hs2():
        if opt.hs != "loader": return
        g("s_cmp_lg_u32 s19, 0")
        g("s_cbranch_scc1 L_nohs2")
        g("v_and_b32 v4, 1, v4")
        g("v_cmp_eq_u32 vcc, 0, v4")
        g("s_getreg_b32 s46, hwreg(HW_REG_XCC_ID)")
        g("s_and_b32 s46, s46, 7")
        g("s_lshl_b32 s46, s46, 4")
        g("s_and_b32 s47, vcc_lo, 15")
        g("s_or_b32 s46, s46, s47")
        g("s_or_b32 s46, s46, 0x80")
        g("s_lshl_b32 s47, s17, 3")
        g("s_lshl_b32 s46, s46, s47")
        g("v_mov_b32 v4, s46")
        g("s_lshl_b32 s47, s16, 2")
        g("s_mov_b64 exec, 1")
        g("buffer_atomic_or v4, off, s[48:51], s47 sc1")
        g("s_mov_b64 exec, -1")
        g("L_nohs2:")
    def pair(u):
        slot = (u & 7) * SLOT
        if u < 15:
            g(f"s_add_u32 m0, s42, {slot}")
            g("s_add_u32 s40, s41, 0x2000")
            if opt.rot: g("s_and_b32 s40, s40, 0x1ffff")
            g(f"buffer_load_dwordx4 v1, s[20:23], s40 offen {kvpol} lds")
            g(f"s_add_u32 m0, s42, {slot+32}")
            g("s_nop 0")
            g(f"buffer_load_dwordx4 v1, s[20:23], s40 offen offset:1024 {kvpol} lds")
        g(f"s_add_u32 m0, s42, {slot+TILE}")
        g("s_nop 0")
        g(f"buffer_load_dwordx4 v2, s[24:27], s41 offen {vpol} lds")
        g(f"s_add_u32 m0, s42, {slot+TILE+32}")
        g("s_nop 0")
        g(f"buffer_load_dwordx4 v2, s[24:27], s41 offen offset:1024 {vpol} lds")
        g("s_mov_b32 s41, s40")
    sched = [int(x) for x in opt.sched.split(",")]
    cnt = [0]
    def tr():
        if not opt.trace: return
        g("s_memrealtime s[60:61]\ns_waitcnt lgkmcnt(0)")
        g(f"v_writelane_b32 v10, s60, {cnt[0]}")
        cnt[0] += 1
    if opt.trace:
        g("s_waitcnt lgkmcnt(0)")
        g("v_writelane_b32 v10, s64, 63")
    issued = [0]
    queue = []
    def issue(n, limit):
        for _ in range(n):
            u = issued[0]
            if u >= 16 or u > limit: break
            pair(u); issued[0] += 1
            queue.extend([u] * (4 if u < 15 else 2))
    def wait_for(t):
        n = sum(1 for x in queue if x > t)
        g(f"s_waitcnt vmcnt({n})")
    issue(sched[0], 6)
    tr(); g.ts(2)
    wait_for(-1)
    tr(); g.ts(3)
    g("s_barrier")
    tr()
    issue(sched[1], 6)
    for t in range(16):
        tr()
        assert issued[0] > t
        wait_for(t)
        tr()
        g("s_barrier")
        tr()
        if t == opt.hs_at:
            hs2()
        issue(sched[min(t + 2, len(sched) - 1)], t + 7)
        if opt.prewarm is not None and t == opt.pw_at - 4:
            g("s_lshl_b32 s47, s16, 2")
            g("buffer_load_dword v14, off, s[48:51], s47 sc1")
            queue.append(issued[0] - 1)
        if opt.prewarm is not None and opt.pw_at <= t < opt.pw_at + 3:
            i = t - opt.pw_at
            if i == 0:
                g("v_readfirstlane_b32 s36, v14")
                g("s_lshr_b32 s37, s36, 8\ns_xor_b32 s37, s37, s36\ns_and_b32 s37, s37, 0x00f0f0f0")
                g("s_andn2_b32 s36, 0x80, s36\ns_or_b32 s37, s37, s36")
                if opt.pw_always: g("s_cmp_eq_u32 s37, 0x12345")
                g("s_cselect_b32 s34, 0, s34")
                g("s_lshl_b32 s36, s16, 2\ns_add_u32 s36, s36, s19\ns_lshl_b32 s36, s36, 2\ns_add_u32 s36, s36, s17")
                g("s_mul_i32 s37, s36, 9216")
                g(f"s_lshl_b32 s38, s36, 9\ns_add_u32 s38, s38, {WS_ML}")
                g(f"buffer_load_dword v12, v{TMP2}, s[32:35], s38 offen {opt.prewarm}".replace(f"v{TMP2},", "v13,"))
                queue.append(99)
            for k in range(3):
                if (opt.sc1b >> k) & 1: continue
                g(f"buffer_load_dwordx4 v[{16+4*k}:{19+4*k}], v{TMP3}, s[32:35], s37 offen offset:{k*1024} {opt.prewarm}")
                queue.append(99)
            g("s_add_u32 s37, s37, 3072")
    if opt.trace:
        g("s_mov_b32 s28, s14\ns_mov_b32 s29, s15\ns_mov_b32 s30, 0x10000000\ns_mov_b32 s31, 0x20000")
        g("s_lshl_b32 s42, s2, 2\ns_add_u32 s42, s42, s19\ns_lshl_b32 s42, s42, 8")
        g(f"s_add_u32 s42, s42, {WS_TS + (1<<20)}")
        g(f"v_lshrrev_b32 v11, 2, v{TMP3}")
        g("buffer_store_dword v10, v11, s[28:31], s42 offen")
    if opt.lpf:
        g("s_sub_u32 s37, s37, 9216\ns_add_u32 s38, s37, 3072\ns_add_u32 s39, s37, 6144")
        for i, pt in enumerate(opt.lpf.split(",")):
            g("s_barrier")
            for k in ([i] if len(opt.lpf.split(",")) > 1 else [0, 1]):
                for x in range(3):
                    g(f"buffer_load_dwordx4 v[{16+4*x}:{19+4*x}], v{TMP3}, s[32:35], s{37+x} offen offset:{k*1024}")
    if opt.wb:
        g(f"s_lshr_b32 s36, s2, 3\ns_and_b32 s36, s36, {opt.wb - 1}\ns_or_b32 s36, s36, s19")
        g("s_cbranch_scc1 L_nowb")
        g("s_barrier")
        g("buffer_wbl2 sc1")
        g("L_nowb:")
    g.ts_store(1)
    g("s_endpgm")

    g("L_compute:")
    if not opt.qfirst: q_pre()
    def setup():
        addr_setup(g, TMP2, 100)
        g(f"s_mul_i32 s42, s19, {QWAVE}")
        g(f"s_add_u32 s42, s42, {QBASE}")
        g(f"v_lshrrev_b32 v103, 4, v{TMP2}")
        g(f"v_mul_u32_u24 v105, {QPITCH}, v103")
        g(f"v_and_b32 v107, 15, v{TMP2}")
        g("v_lshlrev_b32 v108, 4, v107")
        g("v_add3_u32 v105, v105, v108, s42")
        g(f"v_mul_u32_u24 v106, {QPITCH}, v107")
        g("v_add3_u32 v106, v106, v102, s42")
        g(f"v_bfe_u32 v107, v{TMP2}, 2, 2")
        g(f"v_mul_u32_u24 v107, {RPITCH}, v107")
        g(f"v_and_b32 v109, 3, v{TMP2}")
        g("v_xor_b32 v110, v109, v103")
        g("v_lshlrev_b32 v110, 4, v110")
        g("v_lshlrev_b32 v109, 8, v109")
        g("v_add3_u32 v107, v107, v109, v110")
        g(f"v_add_u32 v107, {RBASE}, v107")
        g(f"v_and_b32 v111, 3, v{TMP2}")
        g("v_lshlrev_b32 v111, 7, v111")
        g("s_lshl_b32 s46, s16, 9\ns_lshl_b32 s47, s17, 2\ns_add_u32 s46, s46, s47")
        g(f"s_add_u32 s47, s46, {WS_FLAG}")
        g("s_cmp_eq_u32 s19, 0\ns_cselect_b32 s63, 2, 99")
        g(f"v_mov_b32 v{TMP2}, v108")
        for i in range(48, 96): g(f"v_mov_b32 v{i}, 0")
        for i in range(6): g(f"v_mov_b32 v{L0+i}, 0")
        g(f"s_mov_b32 s52, 0x{C_SCALE:08x}")
        g(f"s_mov_b32 s53, 0x{C_SCALE:08x}")
        g("s_mov_b32 s51, 0xffff0000")
        g(f"v_add_u32 v{TMP0}, {7*SLOT}, v{KADDR}")
        g(f"s_mov_b32 s54, {2*SLOT}")
        g("s_mov_b32 s44, 0")
        g("s_lshl_b32 s40, s36, 2")
        for x in range(1, 4):
            g(f"s_xor_b32 s42, s17, {x}")
            g("s_add_u32 s42, s42, s40")
            g(f"s_mul_i32 s{55+x}, s42, 9216")
            if x > 1: g(f"s_add_u32 s{55+x}, s{55+x}, {(x-1)*3072}")
        g("s_add_u32 s42, s40, s17")
        g("s_lshl_b32 s59, s42, 9")
        g(f"s_add_u32 s59, s59, {WS_ML}")
        g("s_mul_i32 s60, s42, 9216")
        g("s_lshl_b32 s61, s36, 7")
        g(f"s_add_u32 s61, s61, {WS_FLAG}")
        g("s_lshl_b32 s62, s16, 2")
        g("s_mov_b32 s26, 12288")
        g("s_mov_b32 s30, 0x10000000")
        g("s_mov_b32 s34, 256")
        g("s_mov_b32 s35, 0x20000")
        g("s_mov_b32 s48, 0x3f80")
        g("s_mov_b32 s49, 0x3f800000")
    setup()
    g.ts(2)
    if not opt.qfirst: q_issue()
    g.ts(1)
    if opt.tsout:
        g("s_add_u32 s24, s14, s37\ns_addc_u32 s25, s15, 0\ns_add_u32 s24, s24, 0x2800000\ns_addc_u32 s25, s25, 0")
    else:
        g("s_add_u32 s24, s10, s37")
        g("s_addc_u32 s25, s11, 0")
    g("s_mov_b32 s28, s14")
    g("s_mov_b32 s29, s15")
    g("s_mov_b32 s32, s12")
    g("s_mov_b32 s33, s13")
    QX = 0
    if opt.hs == "loop":
        g(f"buffer_load_dword v{TMP1}, v111, s[28:31], s47 offen {opt.stalepol}")
        QX = 1
    def qscale_ops(b):
        out = []
        for i in range(4):
            li = b * 4 + i
            grp = [f"s_waitcnt vmcnt({11-li+QX})"]
            for r in range(4): grp += [f"v_lshlrev_b32 v{112+2*r}, 16, v{4*li+r}", f"v_and_b32 v{113+2*r}, s51, v{4*li+r}"]
            for r in range(4): grp.append(f"v_pk_mul_f32 v[{112+2*r}:{113+2*r}], v[{112+2*r}:{113+2*r}], s[52:53]")
            for r in range(4): grp.append(f"v_cvt_pk_bf16_f32 v{4*li+r}, v{112+2*r}, v{113+2*r}")
            grp.append(f"ds_write_b128 v105, v[{4*li}:{4*li+3}] offset:{i*4*QPITCH}")
            out.append(grp)
        out.append([f"ds_read_b128 {Qa(b,s)}, v106 offset:{64*s}" for s in range(4)])
        return out
    def pp_mfma(b, s):
        c = "0" if s == 0 else Cq(b)
        return f"v_mfma_f32_16x16x32_bf16 {Cq(b)}, {Va(s)}, {Qa(b,s)}, {c}"
    for grp in qscale_ops(0): g(grp)
    g.ts(3)
    for grp in qscale_ops(1): g(grp)
    for grp in qscale_ops(2): g(grp)
    zero = [f"v_mov_b32 v{i}, 0" for i in range(48)]
    g(zero[:32])
    if opt.stag:
        g("s_lshr_b32 s40, s2, 3\ns_and_b32 s40, s40, 7")
        g("L_stag:\ns_cmp_eq_u32 s40, 0\ns_cbranch_scc1 L_stagd")
        g(f"s_sleep {opt.stag}\ns_sub_u32 s40, s40, 1\ns_branch L_stag\nL_stagd:")
    g.ts(4)
    g("s_barrier")
    g.ts(5)
    for s in range(4):
        g(f"ds_read_b128 {Va(s)}, v107 offset:{64*s}")
    k0r = [f"ds_read_b128 {Ka(kb,s)}, v{TMP0} offset:{kb*512 + s*64}" for kb in range(2) for s in range(4)]
    g(k0r[:4])
    g(zero[32:40])
    g("s_waitcnt lgkmcnt(4)")
    if opt.pts: g.ts(9)
    pm = [pp_mfma(b, s) for b in range(3) for s in range(4)]
    qk0 = [m.replace(Cq(0), "0") for m in slot_mfmas(5)[:8]]
    class Lst(list):
        def __call__(self, x): self.append(x)
    red = Lst()
    for b in range(3):
        c = C0 + 4 * b
        red += [f"v_max3_f32 v{c}, v{c}, v{c+1}, v{c+2}", f"v_max_f32 v{c}, v{c}, v{c+3}"]
    xlane3(red, [C0, C0 + 4, C0 + 8], [C0 + 1, C0 + 5, C0 + 9], "v_max_f32")
    for i in range(12):
        g(pm[i])
        if i < 4: g(k0r[4 + i])
        elif i < 8: g(zero[40 + 2 * (i - 4):42 + 2 * (i - 4)])
        elif i >= 10: g(red[2 * (i - 10):2 * (i - 10) + 2])
    if opt.pts: g.ts(10)
    g("s_waitcnt lgkmcnt(0)")
    rest = red[4:]
    for i in range(8):
        g(qk0[i])
        if i == 3: g("s_nop 2")
        if i >= 3: g(rest[(i - 3) * len(rest) // 5:(i - 2) * len(rest) // 5])
    if opt.pts: g.ts(11)
    g("s_barrier")
    if opt.pts: g.ts(12)
    for r in range(8): g(vread(r, 0))
    for i in range(8): g(f"v_sub_f32 v{S(0,i)}, v{S(0,i)}, v{C0}")
    smA = softmax_ops(6, "add")
    neg = []
    for b in (1, 2, 0):
        c = C0 + 4 * b
        for i in (1, 2, 3, 0):
            neg.append(f"v_sub_f32 v{c+i}, 0, v{c}")
    side = [f"v_mov_b32 v108, v{C0}", f"v_mov_b32 v109, v{C0+4}", f"v_mov_b32 v110, v{C0+8}",
            f"buffer_store_dwordx4 v[108:111], v{TMP2}, s[28:31], s59 offen offset:256 sc1"]
    for i in range(8):
        g(smA[8 + i])
        g(neg[i * 12 // 8:(i + 1) * 12 // 8])
    g(side)
    g.ts(6)
    g("s_branch L_k0")
    NT = opt.nt
    niter = 8 - NT // 2 if NT else 8
    slots = loop_body("add", rotated=True, niter=niter, vlast=int(opt.vlast, 0), klast=int(opt.klast, 0))
    for pi, ph in enumerate(opt.phases.split(",")):
        e, run, vl, kl, pad = (ph.split(":") + ["0"])[:5]
        e = min(int(e), niter)
        sl = loop_body("add", rotated=True, niter=e, vlast=int(vl, 16), klast=int(kl, 16), run=int(run))
        if int(pad):
            for k in sl:
                sl[k] = sum(([l, f"s_nop {int(pad)-1}"] if l.startswith("v_exp") else [l] for l in sl[k]), [])
        g(f"L_loop{pi}:")
        g(sl[4]); g(sl[-1])
        if pi == 0: g("L_k0:")
        for k in range(4): g(sl[k])
        g(f"s_cbranch_scc1 L_loop{pi}")
    assert e == niter
    g("L_tail:")
    g.ts(7)
    T0 = 16 - NT
    TS = 16 - opt.skew if opt.skew >= 0 else T0
    units = [(t, b) for t in range(TS) for b in range(3)] + [(t, b) for t in range(TS, 16) for b in range(2)] + [(t, 2) for t in range(TS, 16)]
    n0 = 6 * (niter - 1) + 4
    base = (2 * (niter - 1)) & 7
    first, last = {}, {}
    kslot0, vslot0 = base + 1, base + 2
    if NT:
        g(f"v_add_u32 v{KADDR}, {SLOT}, v{KADDR}")
        g(f"v_add_u32 v{VADDR}, {2*SLOT}, v{VADDR}")
    g(f"buffer_load_dword v{TMP0}, off, s[32:35], s62 sc1")
    fin = {b: max(n for n in range(48) if units[n][1] == b) for b in range(3)}
    for b in range(2):
        n = fin[b] + 1
        for x in range(1, 4):
            ops = pack_ops(x, b)
            if n < 47:
                gp = {1: (3, 4), 2: (6, 6), 3: (7, 7)}[x]
                last.setdefault((n, gp[0]), []).extend(ops[:2]); last.setdefault((n, gp[1]), []).extend(ops[2:])
                first.setdefault((n, gp[1] + 1), []).append(pay_store(x, b, opt))
            else:
                last.setdefault((n, 2 * x - 1), []).extend(ops + [pay_store(x, b, opt)])
    lred = Lst()
    for b in range(3): lred(f"v_add_f32 v{96+b}, v{L0+2*b}, v{L0+2*b+1}")
    xlane3(lred, [96, 97, 98], [100, 101, 102], "v_add_f32")
    lred("v_mov_b32 v99, 0")
    lred(f"buffer_store_dwordx4 v[96:99], v{TMP2}, s[28:31], s59 offen {opt.stpol}")
    lred(f"v_add_f32 v{TMP1}, v96, v97")
    lred("s_mov_b32 s50, " + ("0x5f800000" if not opt.force_fb else "0x00000000"))
    lred(f"v_add_f32 v{TMP1}, v{TMP1}, v98")
    lred(f"v_cmp_nlt_f32 vcc, v{TMP1}, s50")
    for i in range(5):
        last.setdefault((47, 8 + i), []).extend(lred[i * len(lred) // 5:(i + 1) * len(lred) // 5])
    last.setdefault((47, 13), []).extend(pack_ops(1, 2) + [pay_store(1, 2, opt)])
    last.setdefault((47, 15), []).extend(pack_ops(2, 2) + [pay_store(2, 2, opt)] + pack_ops(3, 2) + [pay_store(3, 2, opt)])
    last.setdefault((47, 7), []).append("s_nop 0")
    if opt.lpf:
        for pt in opt.lpf.split(","):
            n, gp = pt.split(":")
            first.setdefault((int(n), int(gp)), []).append("s_barrier")
    g(tail_slots(n0, units, kslot0, vslot0, 2 * niter - 1, first, last, pv_last=[2, 3, 4, 5, 6, 7, 0, 1]))
    g.ts(8)
    g("s_cbranch_vccz L_sent")
    g("s_waitcnt vmcnt(0)")
    g("s_branch L_slow")
    g("L_sent:")
    g("s_mov_b32 s47, 0x100000")
    g("s_waitcnt vmcnt(10)")
    g("L_hs:")
    g(f"v_readfirstlane_b32 s44, v{TMP0}")
    g("s_and_b32 s45, s44, 0x80808080")
    g("s_cmp_eq_u32 s45, 0x80808080")
    g("s_cbranch_scc0 L_hs_retry")
    g("L_hs_ok:")
    g("s_lshr_b32 s45, s44, 8")
    g("s_xor_b32 s45, s45, s44")
    g("s_and_b32 s45, s45, 0x00707070")
    if opt.force_slow:
        g("s_mov_b32 s45, 1")
    g(f"v_bfe_u32 v100, v{TMP3}, 4, 2")
    g("v_lshlrev_b32 v101, 3, v100")
    g("v_add_u32 v101, s19, v101")
    g("v_lshrrev_b32 v101, v101, s44")
    g("v_and_b32 v101, 1, v101")
    g("v_lshlrev_b32 v100, 2, v100")
    g("s_lshl_b32 s46, s17, 3")
    g("s_add_u32 s46, s46, s19")
    g("s_lshr_b32 s46, s44, s46")
    g("s_and_b32 s46, s46, 1")
    g("v_mov_b32 v102, s46")
    g("s_lshl_b32 s46, s17, 2")
    g("s_add_u32 s46, s46, s61")
    for x in range(1, 4):
        g(f"s_xor_b32 s{19+x}, s59, {x<<9}")
    g("s_add_u32 s40, s60, 3072\ns_add_u32 s41, s60, 6144")
    g("s_mov_b32 s47, 0x100000")
    g("s_cmp_lg_u32 s45, 0")
    g.ts(9)
    g("s_waitcnt vmcnt(0)")
    g.ts(10)
    g("s_cbranch_scc1 L_xcd_flag")
    g(f"buffer_store_dword v102, off, s[28:31], s46 {opt.flagpol}")
    if opt.wb and opt.wbpos == 0: g("s_barrier")
    g("L_poll:")
    g(f"buffer_load_dword v103, v100, s[28:31], s61 offen {opt.pollpol}")
    g("s_waitcnt vmcnt(0)")
    g("v_and_b32 v103, 1, v103")
    g("v_cmp_ne_u32 vcc, v103, v101")
    g("s_cbranch_vccz L_poll_ok")
    g("s_sub_u32 s47, s47, 1")
    g("s_cbranch_scc0 L_poll")
    g("L_poll_ok:")
    g.ts(11)
    LR = lambda x: 100 + 4 * x
    PR = lambda x, b: 24 + ((x - 1) * 3 + b) * 4
    def inbox_loads(lp):
        for x in range(1, 4):
            g(f"buffer_load_dwordx4 v[{LR(x)}:{LR(x)+3}], v{TMP2}, s[28:31], s{19+x} offen {lp}")
        for b in range(3):
            for x in range(1, 4):
                g(f"buffer_load_dwordx4 v[{PR(x,b)}:{PR(x,b)+3}], v{TMP3}, s[28:31], {['s60','s40','s41'][x-1]} offen offset:{b*1024} {lp}")
    inbox_loads(opt.ldpol)
    if opt.wb and opt.wbpos == 1: g("s_barrier")
    g("L_loaded:")
    g(f"v_bfe_u32 v132, v{TMP3}, 4, 4")
    g("v_lshlrev_b32 v132, 8, v132")
    if opt.out4:
        g(f"v_bfe_u32 v133, v{TMP3}, 8, 1\nv_lshlrev_b32 v133, 5, v133")
        g(f"v_bfe_u32 v134, v{TMP3}, 9, 1\nv_lshl_add_u32 v133, v134, 4, v133")
    else:
        g(f"v_lshrrev_b32 v133, 8, v{TMP3}")
        g("v_lshlrev_b32 v133, 3, v133")
    g("s_lshl_b32 s42, s17, 6")
    g("v_add3_u32 v132, v132, v133, s42")
    g("s_waitcnt vmcnt(9)")
    g.ts(12)
    g(f"v_or3_b32 v99, v99, v{LR(1)+3}, v{LR(2)+3}")
    g(f"v_or_b32 v99, v99, v{LR(3)+3}")
    g("v_cmp_ne_u32 vcc, 0, v99")
    g("s_cbranch_vccnz L_general")
    for x in range(1, 4):
        for b in range(3):
            g(f"v_add_f32 v{96+b}, v{96+b}, v{LR(x)+b}")
    for b in range(3): g(f"v_rcp_f32 v{96+b}, v{96+b}")
    def acc_reg(b, i): return O(i // 4, b, i % 4)
    nst = 1 if opt.out4 else 2
    for b in range(3):
        for x in range(1, 4):
            g(f"s_waitcnt vmcnt({9 - (b*3 + x) + b*nst})")
            if x == 3 and b == 2: g.ts(13)
            for r in range(4):
                src = PR(x, b) + r
                g(f"v_dot2c_f32_bf16 v{acc_reg(b,2*r)}, s48, v{src}")
                g(f"v_dot2c_f32_bf16 v{acc_reg(b,2*r+1)}, s49, v{src}")
        out_store(g, b, 96 + b, opt)
    g("L_done:")
    g.ts(14)
    if opt.ts:
        g("s_waitcnt vmcnt(0)")
        g.ts(15)
    g.ts_store(0)
    g("L_end:")
    g("s_endpgm")
    g("L_hs_retry:")
    g("s_sleep 2")
    g(f"buffer_load_dword v{TMP0}, off, s[32:35], s62 sc1")
    g("s_sub_u32 s47, s47, 1")
    g("s_waitcnt vmcnt(0)")
    g("s_cbranch_scc0 L_hs")
    g("s_branch L_hs_ok")
    g("L_xcd_flag:")
    g(f"buffer_store_dwordx4 v[96:99], v{TMP2}, s[28:31], s59 offen sc1")
    for b in range(3):
        for x in range(1, 4):
            g(pay_store(x, b, opt, "sc1"))
    g("s_waitcnt vmcnt(0)")
    g("buffer_store_dword v102, off, s[28:31], s46 sc1")
    g("L_poll2:")
    g("buffer_load_dword v103, v100, s[28:31], s61 offen sc1")
    g("s_waitcnt vmcnt(0)")
    g("v_and_b32 v103, 1, v103")
    g("v_cmp_ne_u32 vcc, v103, v101")
    g("s_cbranch_vccz L_poll2_ok")
    g("s_sub_u32 s47, s47, 1")
    g("s_cbranch_scc0 L_poll2")
    g("L_poll2_ok:")
    inbox_loads("sc1")
    g("s_branch L_loaded")
    g("L_general:")
    CR = lambda x: 60 + 4 * x
    for x in range(1, 4):
        g(f"buffer_load_dwordx4 v[{CR(x)}:{CR(x)+3}], v{TMP2}, s[28:31], s{19+x} offen offset:256 sc1")
    for b in range(3): g(f"v_mov_b32 v{CR(0)+b}, v{C0+4*b}")
    g("s_waitcnt vmcnt(0)")
    for b in range(3):
        g(f"v_min3_f32 v100, v{CR(0)+b}, v{CR(1)+b}, v{CR(2)+b}")
        g(f"v_min_f32 v100, v100, v{CR(3)+b}")
        for x in range(4): g(f"v_sub_f32 v{CR(x)+b}, v100, v{CR(x)+b}")
        for x in range(4): g(f"v_exp_f32 v{CR(x)+b}, v{CR(x)+b}")
        g("s_nop 0")
        g(f"v_mul_f32 v{96+b}, v{96+b}, v{CR(0)+b}")
        for x in range(1, 4): g(f"v_fmac_f32 v{96+b}, v{CR(x)+b}, v{LR(x)+b}")
    for b in range(3): g(f"v_rcp_f32 v{96+b}, v{96+b}")
    for b in range(3):
        for i in range(8): g(f"v_mul_f32 v{acc_reg(b,i)}, v{acc_reg(b,i)}, v{CR(0)+b}")
        for x in range(1, 4):
            for r in range(4):
                src = PR(x, b) + r
                g(f"v_lshlrev_b32 v116, 16, v{src}")
                g(f"v_and_b32 v117, s51, v{src}")
                g(f"v_fmac_f32 v{acc_reg(b,2*r)}, v116, v{CR(x)+b}")
                g(f"v_fmac_f32 v{acc_reg(b,2*r+1)}, v117, v{CR(x)+b}")
        out_store(g, b, 96 + b, opt)
    g("s_branch L_done")
    g("L_code_end:")
    slow_path(g, opt)
    g.o.append(f""".section .rodata,"a"
.p2align 6
.amdhsa_kernel {KN}
  .amdhsa_next_free_vgpr {NV+NA}
  .amdhsa_next_free_sgpr 102
  .amdhsa_accum_offset {NV}
  .amdhsa_group_segment_fixed_size 0
  .amdhsa_kernarg_size 48
  .amdhsa_user_sgpr_count 2
  .amdhsa_user_sgpr_kernarg_segment_ptr 1
  .amdhsa_system_sgpr_workgroup_id_x 1
.end_amdhsa_kernel""")
    return "\n".join(g.o) + "\n"


def out_store(g, b, rl, opt):
    o, p = O(0, b), O(1, b)
    so = ["0", "s38", "s39"][b]
    for r in range(4): g(f"v_mul_f32 v{o+r}, v{o+r}, v{rl}")
    for r in range(4): g(f"v_mul_f32 v{p+r}, v{p+r}, v{rl}")
    if opt.out4:
        g(f"v_cvt_pk_bf16_f32 v{o}, v{o}, v{o+1}")
        g(f"v_cvt_pk_bf16_f32 v{o+1}, v{o+2}, v{o+3}")
        g(f"v_cvt_pk_bf16_f32 v{o+2}, v{p}, v{p+1}")
        g(f"v_cvt_pk_bf16_f32 v{o+3}, v{p+2}, v{p+3}")
        g("s_nop 0")
        g(f"v_permlane16_swap_b32 v{o}, v{o+2}")
        g(f"v_permlane16_swap_b32 v{o+1}, v{o+3}")
        g("s_nop 0")
        g(f"buffer_store_dwordx4 v[{o}:{o+3}], v132, s[24:27], {so} offen {opt.outpol}")
        return
    for h in range(2):
        o = O(h, b)
        g(f"v_cvt_pk_bf16_f32 v{o}, v{o}, v{o+1}")
        g(f"v_cvt_pk_bf16_f32 v{o+1}, v{o+2}, v{o+3}")
        g(f"buffer_store_dwordx2 v[{o}:{o+1}], v132, s[24:27], {so} offen offset:{32*h} {opt.outpol}")


if __name__ == "__main__":
    ap = argparse.ArgumentParser()
    ap.add_argument("-o", default="standalone__gqa_softmax__near_ridge.s")
    ap.add_argument("--kvpol", default="nt")
    ap.add_argument("--qpol", default="nt")
    ap.add_argument("--stpol", default="")
    ap.add_argument("--ldpol", default="nt")
    ap.add_argument("--outpol", default="sc1")
    ap.add_argument("--ts", type=int, default=0)
    ap.add_argument("--qfirst", type=int, default=1)
    ap.add_argument("--stag", type=int, default=0)
    ap.add_argument("--lpf", default="")
    ap.add_argument("--sc1b", type=int, default=1)
    ap.add_argument("--wb", type=int, default=0)
    ap.add_argument("--wbpos", type=int, default=0)
    ap.add_argument("--pw_always", type=int, default=0)
    ap.add_argument("--phases", default="6:1:ffff:ff,8:1:0:0")
    ap.add_argument("--cpf_from", default="L_loop1")
    ap.add_argument("--cpf", type=int, default=2)
    ap.add_argument("--skew", type=int, default=-1)
    ap.add_argument("--vlast", default="0")
    ap.add_argument("--klast", default="0")
    ap.add_argument("--split", type=int, default=0)
    ap.add_argument("--pad2", type=int, default=0)
    ap.add_argument("--ramp", type=int, default=0)
    ap.add_argument("--rampgap", type=int, default=0)
    ap.add_argument("--pad", type=int, default=0)
    ap.add_argument("--out4", type=int, default=1)
    ap.add_argument("--pw_at", type=int, default=12)
    ap.add_argument("--nt", type=int, default=0)
    ap.add_argument("--sched", default="2,1,1")
    ap.add_argument("--rot", type=int, default=0)
    ap.add_argument("--hs_at", type=int, default=2)
    ap.add_argument("--probe", type=int, default=0)
    ap.add_argument("--vpol", default=None)
    ap.add_argument("--hs", default="loader")
    ap.add_argument("--setup", default="early")
    ap.add_argument("--tsout", type=int, default=0)
    ap.add_argument("--pts", type=int, default=0)
    ap.add_argument("--exp_x1", type=int, default=0)
    ap.add_argument("--exp_2x", type=int, default=0)
    ap.add_argument("--prewarm", default="")
    ap.add_argument("--linear", type=int, default=0)
    ap.add_argument("--trace", type=int, default=0)
    ap.add_argument("--pollpol", default="nt")
    ap.add_argument("--stalepol", default="")
    ap.add_argument("--dot", type=int, default=1)
    ap.add_argument("--flagpol", default="")
    ap.add_argument("--depth", type=int, default=3)
    ap.add_argument("--init_pairs", type=int, default=2)
    ap.add_argument("--force_slow", type=int, default=0)
    ap.add_argument("--force_fb", type=int, default=0)
    opt = ap.parse_args()
    open(opt.o, "w").write(gen(opt))
```

```python
PIECE = 1056
TILE = 8 * PIECE
SLOT = 2 * TILE

def O(db, b, r=0): return (db * 3 + b) * 4 + r
def Oq(db, b): x = O(db, b); return f"v[{x}:{x+3}]"
S0 = 96
def S(par, i): return S0 + par * 8 + i
def Sq(par, kb): x = S(par, kb * 4); return f"v[{x}:{x+3}]"
P0 = 112
def P(par, i): return P0 + par * 4 + i
def Pq(par): x = P(par, 0); return f"v[{x}:{x+3}]"
C0 = 120
def Cq(b): x = C0 + 4 * b; return f"v[{x}:{x+3}]"
L0 = 132
KADDR, VADDR = 138, 139
TMP0, TMP1, TMP2, TMP3 = 140, 141, 142, 143
NV = 144
def Qa(b, s): x = (b * 4 + s) * 4; return f"a[{x}:{x+3}]"
def Ka(kb, s): x = 48 + (kb * 4 + s) * 4; return f"a[{x}:{x+3}]"
def Va(db): x = 80 + db * 4; return f"a[{x}:{x+3}]"
def Vh(db, h): x = 80 + db * 4 + 2 * h; return f"a[{x}:{x+1}]"
NA = 112

def softmax_ops(n, mode, b=None):
    par, b = n & 1, (n % 3 if b is None else b)
    s = lambda i: f"v{S(par, i)}"
    X = lambda i: f"v_exp_f32 {s(i)}, {s(i)}"
    CV = lambda i: f"v_cvt_pk_bf16_f32 v{P(par,i)}, {s(2*i)}, {s(2*i+1)}"
    l0, l1 = L0 + 2 * b, L0 + 2 * b + 1
    AD = lambda i: f"v_add_f32 v{l0 + (i & 1)}, v{l0 + (i & 1)}, {s(i)}"
    PK = lambda i: f"v_pk_add_f32 v[{l0}:{l1}], v[{l0}:{l1}], v[{S(par,2*i)}:{S(par,2*i+1)}]"
    DT = lambda i: f"v_dot2c_f32_bf16 v{l0 + (i & 1)}, v{P(par,i)}, v{TMP3}"
    if mode == "fma":
        F = lambda i: f"v_fma_f32 {s(i)}, {s(i)}, s52, v{C0+4*b}"
        seq = [F(0), F(1), X(0), X(1), F(2), F(3), CV(0), AD(0), X(2), X(3), AD(1), F(4), F(5), CV(1), AD(2), X(4), X(5), AD(3),
               F(6), F(7), CV(2), AD(4), X(6), X(7), AD(5), CV(3), AD(6), AD(7)]
        d = {k: [] for k in range(8, 24)}
        cum = 0
        for x in seq:
            c = 8 if x.startswith("v_exp") else 4
            d[8 + (cum + c // 2) // 9].append(x)
            cum += c
        return d
    if mode == "add":
        return {8: [X(0)], 9: [X(1)], 10: [X(2)], 11: [CV(0), AD(0)], 12: [X(3)], 13: [X(4)], 14: [CV(1), AD(1)], 15: [AD(2), AD(3)],
                16: [X(5)], 17: [X(6)], 18: [CV(2), AD(4)], 19: [X(7)], 20: [AD(5), AD(6)], 21: [CV(3), AD(7)], 22: [], 23: []}
    if mode == "pk":
        return {8: [X(0)], 9: [X(1)], 10: [X(2)], 11: [CV(0), PK(0)], 12: [X(3)], 13: [X(4)], 14: [CV(1), PK(1)], 15: [],
                16: [X(5)], 17: [X(6)], 18: [CV(2), PK(2)], 19: [X(7)], 20: [], 21: [CV(3), PK(3)], 22: [], 23: []}
    if mode == "dot":
        return {8: [X(0)], 9: [X(1)], 10: [X(2)], 11: [CV(0)], 12: [X(3)], 13: [X(4)], 14: [CV(1), DT(0)], 15: [DT(1)],
                16: [X(5)], 17: [X(6)], 18: [CV(2)], 19: [X(7)], 20: [DT(2)], 21: [CV(3)], 22: [DT(3)], 23: []}
    if mode.startswith("m4"):
        sel = [136, 140, 142][b]
        M4 = lambda h: f"v_mfma_f32_4x4x4_16b_bf16 v[132:135], v[{sel}:{sel+1}], v[{P(par,2*h)}:{P(par,2*h+1)}], v[132:135]"
        if mode == "m4a":
            return {8: [X(0)], 9: [X(1)], 10: [X(2)], 11: [CV(0)], 12: [X(3)], 13: [X(4)], 14: [CV(1)], 15: [],
                    16: [X(5)], 17: [X(6)], 18: [CV(2)], 19: [X(7)], 20: [M4(0)], 21: [CV(3)], 22: [], 23: [M4(1)]}
        if mode == "m4b":
            return {8: [X(0)], 9: [X(1)], 10: [X(2)], 11: [X(3)], 12: [CV(0), CV(1)], 13: [X(4)], 14: [X(5)], 15: [M4(0)],
                    16: [X(6)], 17: [X(7)], 18: [], 19: [CV(2), CV(3)], 20: [], 21: [], 22: [M4(1)], 23: []}
    if mode == "none":
        return {8: [X(0)], 9: [X(1)], 10: [X(2)], 11: [CV(0)], 12: [X(3)], 13: [X(4)], 14: [CV(1)], 15: [],
                16: [X(5)], 17: [X(6)], 18: [CV(2)], 19: [X(7)], 20: [], 21: [CV(3)], 22: [], 23: []}
    raise ValueError(mode)

CINIT = True
def cinit(b): return Cq(b) if CINIT else "0"

def slot_mfmas(n, pv_order=None):
    bq, pq, bp, pp = (n + 1) % 3, (n + 1) & 1, n % 3, n & 1
    mf = []
    for kb in range(2):
        for s in range(4):
            c = cinit(bq) if s == 0 else Sq(pq, kb)
            mf.append(f"v_mfma_f32_16x16x32_bf16 {Sq(pq,kb)}, {Ka(kb,s)}, {Qa(bq,s)}, {c}")
    for db in (pv_order or range(8)):
        mf.append(f"v_mfma_f32_16x16x32_bf16 {Oq(db,bp)}, {Va(db)}, {Pq(pp)}, {Oq(db,bp)}")
    return mf

def emit_slot(out, n, mode, qk=True, partA=True, first=None, last=None, pre=None, pv_order=None, run=1):
    first, last, pre = first or {}, last or {}, pre or {}
    smB, smA = softmax_ops(n, mode), softmax_ops(n + 1, mode)
    mf = slot_mfmas(n, pv_order)
    pend = []
    for pos in range(16):
        out += pre.get(pos, [])
        if pos >= 8 or qk:
            if pos == 8:
                d = [i for i, x in enumerate(reversed(out)) if x.startswith("v_cvt")][0]
                if d < 2: out.append(f"s_nop {1 - d}")
            out.append(mf[pos])
        pend += first.get(pos, [])
        if pos < 8:
            pend += smB[16 + pos]
        elif partA:
            pend += smA[pos]
        pend += last.get(pos, [])
        if pos % run == run - 1:
            for x in pend:
                if out and out[-1].startswith("v_exp") and not x.startswith("v_exp") and out[-1].split()[1].rstrip(",") in x.replace(",", " ").split():
                    out.append("s_nop 0")
                out.append(x)
            pend = []

def kread(i, off):
    kb, s = i // 4, i % 4
    return f"ds_read_b128 {Ka(kb,s)}, v{KADDR} offset:{off + kb*512 + s*64}"
def vread(r, off):
    db, h = r >> 1, r & 1
    return f"ds_read_b64_tr_b16 {Vh(db,h)}, v{VADDR} offset:{off + h*512 + db*32}"

def loop_body(mode="add", kg=None, vg=None, barrier=True, rotated=False, flags=False, niter=8, vlast=0, klast=0, run=1, sub=False, adapt=None):
    kg = kg or [6, 6, 7, 7, 9, 10, 12, 15]
    vg = vg or [8 + r for r in range(16)]
    first = {k: {} for k in range(-1, 6)}
    pre = {k: {} for k in range(-1, 6)}
    last = {k: {} for k in range(-1, 6)}
    for tt, k2 in ((0, -1), (1, 2)):
        for r in range(16):
            kk, gp = k2 + vg[r] // 16, vg[r] % 16
            assert vg[r] >= 8 + (r >> 1)
            (last if (vlast >> r) & 1 else first)[kk].setdefault(gp, []).append(vread(r, tt * SLOT))
    for tt, k1 in ((0, 1), (1, 4)):
        for i in range(8):
            assert i <= kg[i] < 16
            (last if (klast >> i) & 1 else first)[k1].setdefault(kg[i], []).append(kread(i, tt * SLOT))
    for k2 in (-1, 2):
        pre[k2].setdefault(0, []).append(f"s_waitcnt lgkmcnt({5 if flags else 4})")
        pre[k2].setdefault(4, []).append("s_waitcnt lgkmcnt(0)")
        n_after = lambda pos: sum(1 for r in range(16) if vg[r] < pos)
        for db0 in (0, 4):
            pos = 16 + 8 + db0
            issued = n_after(pos)
            need = 2 * (db0 + 4)
            assert issued >= need, (issued, need)
            pre[k2 + 1].setdefault(8 + db0, []).append(f"s_waitcnt lgkmcnt({issued - need})")
        if flags:
            kp = 4 if k2 == -1 else k2 - 1
            first[kp].setdefault(15, []).append(f"ds_read_b32 v{TMP1}, v{TMP0}")
            op = "v_cmp_gt_u32" if k2 == -1 else "v_cmp_ge_u32"
            last[k2].setdefault(5, []).append(f"{op} vcc, s44, v{TMP1}")
            first[k2].setdefault(7, []).extend([f"s_cbranch_vccnz L_wait{k2+1}", f"L_wret{k2+1}:"])
        elif barrier:
            pre[k2].setdefault(8, []).append("s_barrier")
    last[-1].setdefault(6, []).append(f"v_add_u32 v{VADDR}, s45, v{VADDR}")
    last[-1].setdefault(7, []).append(f"v_add_u32 v{KADDR}, s45, v{KADDR}")
    kc, g0 = (3, 8) if rotated else (4, 0)
    if flags:
        first[kc].setdefault(g0 + 0, []).append("s_add_u32 s44, s44, 2")
        first[kc].setdefault(g0 + 1, []).append("s_and_b32 s46, s44, 7")
        first[kc].setdefault(g0 + 2, []).append("s_cmp_eq_u32 s46, 2")
        first[kc].setdefault(g0 + 3, []).append(f"s_cselect_b32 s45, {-(6*SLOT) & 0xffffffff}, s54")
        first[kc].setdefault(g0 + 4, []).append("s_cmp_lt_u32 s44, 18")
        last[0].setdefault(12, []).append(f"v_mov_b32 v{TMP1}, s44")
        first[0].setdefault(14, []).append(f"ds_write_b32 v{TMP0}, v{TMP1} offset:16")
    else:
        first[kc].setdefault(g0 + 0, []).append("s_add_u32 s44, s44, 1")
        first[kc].setdefault(g0 + 1, []).append("s_and_b32 s46, s44, 3")
        first[kc].setdefault(g0 + 2, []).append(f"s_cselect_b32 s45, s54, {-(6*SLOT) & 0xffffffff}")
        if adapt:
            thr, imin = adapt
            first[0].setdefault(9, []).append("s_memtime s[64:65]")
            first[0].setdefault(10, []).append("s_memrealtime s[66:67]")
            seq = ["s_sub_u32 s68, s64, s70", "s_sub_u32 s69, s66, s71", "s_mov_b32 s70, s64", "s_mov_b32 s71, s66",
                   "s_lshl_b32 s68, s68, 2", f"s_mul_i32 s69, s69, {thr}", "s_cmp_lt_u32 s68, s69", f"s_cselect_b32 s72, {imin}, {niter}"]
            for i, x in enumerate(seq):
                first[2].setdefault(i, []).append(x)
            first[kc].setdefault(g0 + 4, []).append("s_cmp_lt_u32 s44, s72")
        else:
            first[kc].setdefault(g0 + 4, []).append(f"s_cmp_lt_u32 s44, {niter}")
    if sub:
        for k in (0, 1, 3, 4):
            pre[k].setdefault(8, []).append("s_barrier")
    slots = {}
    for k in range(-1, 5):
        out = []
        emit_slot(out, k + 6, mode, first=first[k], last=last[k], pre=pre[k], run=run)
        slots[k] = out
    if rotated:
        return slots
    return sum((slots[k] for k in range(-1, 5)), [])


def tail_slots(n0, units, kslot0, vslot0, synced, extra_first=None, extra_last=None, pv_last=None, mode="add"):
    N = len(units)
    extra_first, extra_last = extra_first or {}, extra_last or {}
    plan = {}
    for n in range(n0, N):
        kre = n + 2 < N and units[n + 2][0] != units[n + 1][0]
        vre = n + 1 < N and units[n + 1][0] != units[n][0]
        vprev = n - 1 >= n0 and units[n][0] != units[n - 1][0]
        knext = n + 3 < N and units[n + 3][0] != units[n + 2][0]
        if kre:
            t = units[n + 2][0]
            off = (((t - 1) & 7) - kslot0) * SLOT
            assert 0 <= off <= 65535 - 704
            kg = list(range(8)) if vre else [6, 6, 7, 7, 9, 10, 12, 15]
            for i in range(8):
                plan.setdefault((n, kg[i]), []).append((kread(i, off), ("K", i), t - 1))
        if vre:
            t = units[n + 1][0]
            off = ((t & 7) - vslot0) * SLOT
            assert 0 <= off <= 65535 - 736
            vnext = n + 2 < N and units[n + 2][0] != units[n + 1][0]
            dense = knext and vnext
            for r in range(16):
                gp = 8 + (r >> 1) if dense else 8 + r
                plan.setdefault((n + gp // 16, gp % 16), []).append((vread(r, off), ("V", r >> 1), t))
    out = []
    queue = []
    for n in range(n0, N):
        t, b = units[n]
        par = n & 1
        mf, need = [], []
        if n + 1 < N:
            tq, bq = units[n + 1]
            pq = (n + 1) & 1
            for kb in range(2):
                for s in range(4):
                    c = cinit(bq) if s == 0 else Sq(pq, kb)
                    mf.append(f"v_mfma_f32_16x16x32_bf16 {Sq(pq,kb)}, {Ka(kb,s)}, {Qa(bq,s)}, {c}")
                    need.append(("K", kb * 4 + s))
        else:
            mf += [None] * 8; need += [None] * 8
        order = pv_last if (n == N - 1 and pv_last) else range(8)
        for db in order:
            mf.append(f"v_mfma_f32_16x16x32_bf16 {Oq(db,b)}, {Va(db)}, {Pq(par)}, {Oq(db,b)}")
            need.append(("V", db))
        smB = softmax_ops(n, mode, b)
        smA = softmax_ops(n + 1, mode, units[n + 1][1]) if n + 1 < N else None
        for pos in range(16):
            if pos % 4 == 0:
                grp = [x for x in need[pos:pos + 4] if x]
                idx = [i for i, k in enumerate(queue) if k in grp]
                if idx:
                    cnt = len(queue) - 1 - max(idx)
                    out.append(f"s_waitcnt lgkmcnt({min(cnt, 15)})")
                    queue = queue[max(idx) + 1:] if cnt <= 15 else queue[-15:]
            items = plan.get((n, pos), [])
            while items and max(x[2] for x in items) > synced:
                out.append("s_barrier"); synced += 1
            if mf[pos]: out.append(mf[pos])
            for ins, key, _ in items:
                out.append(ins); queue.append(key)
            out += extra_first.get((n, pos), [])
            if pos < 8: out += smB[16 + pos]
            elif smA: out += smA[pos]
            out += extra_last.get((n, pos), [])
    assert synced == 15, synced
    return out
```

```python
import sys, argparse, struct, math
from body import *

KN = "standalone__gqa_softmax__near_ridge_kernel"
NSLOT = 8
RING = NSLOT * SLOT
QBASE = RING
QPITCH = 288
QWAVE = 16 * QPITCH
RBASE = QBASE + 4 * QWAVE
RPITCH = 1088
LDS_BYTES = RBASE + 4 * RPITCH

WS_ML = 16 << 20
WS_FLAG = 24 << 20
WS_TS = 32 << 20
C_SCALE = struct.unpack("<I", struct.pack("<f", math.log2(math.e) / math.sqrt(128.0)))[0]
NTS = 16


class G:
    def __init__(self, opt):
        self.o = []
        self.opt = opt
    def __call__(self, s):
        if isinstance(s, list):
            for x in s: self(x)
            return
        for l in s.split("\n"):
            l = l.strip()
            if l:
                self.o.append(("" if l.endswith(":") else "    ") + l)
    def ts(self, idx):
        if self.opt.pts and idx >= 9:
            self.seen = getattr(self, "seen", set())
            if idx in self.seen: return
            self.seen.add(idx)
        if self.opt.ts:
            self(f"s_memrealtime s[{64+2*idx}:{65+2*idx}]" if self.opt.ts == 2 else f"s_memtime s[{64+2*idx}:{65+2*idx}]")
    def ts_store(self, widx):
        if not self.opt.ts: return
        self("s_waitcnt vmcnt(0) lgkmcnt(0)")
        if self.opt.probe:
            if widx == 0:
                i = self.opt.probe
                self(f"s_sub_u32 s40, s{64+2*i}, s64\ns_lshl_b32 s40, s40, 3")
                self("L_probe:\ns_sleep 8\ns_memrealtime s[42:43]\ns_waitcnt lgkmcnt(0)\ns_sub_u32 s41, s42, s64\ns_cmp_lt_u32 s41, s40\ns_cbranch_scc1 L_probe")
            return
        if self.opt.tsout:
            self("s_mov_b32 s28, s10\ns_mov_b32 s29, s11\ns_mov_b32 s30, 0x300000\ns_mov_b32 s31, 0x20000")
            self("s_lshl_b32 s42, s2, 3\ns_add_u32 s42, s42, s18\ns_lshl_b32 s42, s42, 6")
            for i in range(1, NTS):
                self(f"s_sub_u32 s{64+2*i}, s{64+2*i}, s64")
            self("v_mov_b32 v1, 0")
            for i in range(NTS):
                self(f"v_writelane_b32 v1, s{64+2*i}, {i}")
            self("v_and_b32 v1, 0x3fff, v1")
            self("v_lshrrev_b32 v2, 6, v1\nv_and_b32 v3, 63, v1\nv_cvt_f32_u32 v2, v2\nv_cvt_f32_u32 v3, v3\nv_cvt_pk_bf16_f32 v2, v2, v3")
            self("v_mbcnt_lo_u32_b32 v4, -1, 0\nv_lshlrev_b32 v4, 2, v4")
            self("s_mov_b64 exec, 0xffff")
            self("buffer_store_dword v2, v4, s[28:31], s42 offen")
            return
        self("s_mov_b32 s28, s14\ns_mov_b32 s29, s15\ns_mov_b32 s30, 0x10000000\ns_mov_b32 s31, 0x20000")
        self("s_lshl_b32 s42, s2, 3")
        self("s_add_u32 s42, s42, s18")
        self("s_lshl_b32 s42, s42, 6")
        self(f"s_add_u32 s42, s42, {WS_TS}")
        for i in range(NTS):
            self(f"v_mov_b32 v1, s{64+2*i}")
            self(f"buffer_store_dword v1, off, s[28:31], s42 offset:{4*i}")
            self("s_nop 1")


def xlane(g, a, t, op):
    g(f"v_mov_b32 v{t}, v{a}")
    g("s_nop 1")
    g(f"v_permlane32_swap_b32 v{a}, v{t}")
    g("s_nop 1")
    g(f"{op} v{a}, v{a}, v{t}")
    g(f"v_mov_b32 v{t}, v{a}")
    g("s_nop 1")
    g(f"v_permlane16_swap_b32 v{a}, v{t}")
    g("s_nop 1")
    g(f"{op} v{a}, v{a}, v{t}")


def xlane3(g, regs, tmps, op):
    for sw in ("v_permlane32_swap_b32", "v_permlane16_swap_b32"):
        for a, t in zip(regs, tmps): g(f"v_mov_b32 v{t}, v{a}")
        g("s_nop 0")
        for a, t in zip(regs, tmps): g(f"{sw} v{a}, v{t}")
        g("s_nop 0")
        for a, t in zip(regs, tmps): g(f"{op} v{a}, v{a}, v{t}")


def slow_path(g, opt):
    g("L_slow:")
    g("s_lshl_b32 s38, s16, 19")
    g("s_lshl_b32 s39, s17, 17")
    g("s_add_u32 s38, s38, s39")
    g("s_add_u32 s20, s6, s38\ns_addc_u32 s21, s7, 0\ns_mov_b32 s22, 0x20000\ns_mov_b32 s23, 0x20000")
    g("s_add_u32 s96, s8, s38\ns_addc_u32 s97, s9, 0\ns_mov_b32 s98, 0x20000\ns_mov_b32 s99, 0x20000")
    g("s_movk_i32 s38, 0x1000\ns_movk_i32 s39, 0x2000")
    g(f"v_mbcnt_lo_u32_b32 v{TMP2}, -1, 0")
    g(f"v_mbcnt_hi_u32_b32 v{TMP2}, -1, v{TMP2}")
    addr_setup(g, TMP2, 96)
    g("s_cmp_eq_u32 s19, 3\ns_cselect_b32 s42, 8, s19")
    g(f"s_mul_i32 s42, s42, {SLOT}")
    g(f"v_add_u32 v{KADDR}, s42, v{KADDR}")
    g(f"v_add_u32 v{VADDR}, s42, v{VADDR}")
    g(f"v_lshlrev_b32 v{TMP2}, 4, v{TMP2}")
    g("s_lshl_b32 s43, s17, 6")
    g(f"v_xor_b32 v{TMP3}, s43, v{TMP2}")
    for i in range(96): g(f"v_mov_b32 v{i}, 0")
    for i in range(6): g(f"v_mov_b32 v{L0+i}, 0")
    for b in range(3): g(f"v_mov_b32 v{C0+4*b}, 0x7f000000")
    g("s_mov_b32 s44, 0")
    g("L_slow_loop:")
    g("s_mov_b32 s45, s44")
    g("s_mov_b32 s46, s42")
    g("L_slow_ld:")
    g("s_mov_b32 m0, s46")
    g(f"s_add_u32 s47, s46, {TILE}")
    g(f"buffer_load_dwordx4 v{TMP2}, s[20:23], s45 offen lds")
    g("s_mov_b32 m0, s47")
    g(f"s_add_u32 s46, s46, {PIECE}")
    g(f"buffer_load_dwordx4 v{TMP3}, s[96:99], s45 offen lds")
    g("s_add_u32 s45, s45, 1024")
    g("s_and_b32 s47, s45, 0x1fff")
    g("s_cbranch_scc1 L_slow_ld")
    g("s_waitcnt vmcnt(0)")
    for i in range(8): g(kread(i, 0))
    for r in range(16): g(vread(r, 0))
    g("s_waitcnt lgkmcnt(0)")
    for b in range(3):
        c = C0 + 4 * b
        s = lambda i: f"v{S(0, i)}"
        for kb in range(2):
            for st in range(4):
                cc = "0" if st == 0 else Sq(0, kb)
                g(f"v_mfma_f32_16x16x32_bf16 {Sq(0,kb)}, {Ka(kb,st)}, {Qa(b,st)}, {cc}")
        g("s_nop 7")
        g(f"v_max3_f32 v{TMP0}, {s(0)}, {s(1)}, {s(2)}")
        g(f"v_max3_f32 v{TMP0}, v{TMP0}, {s(3)}, {s(4)}")
        g(f"v_max3_f32 v{TMP0}, v{TMP0}, {s(5)}, {s(6)}")
        g(f"v_max3_f32 v{TMP0}, v{TMP0}, {s(7)}, -v{c}")
        xlane(g, TMP0, TMP1, "v_max_f32")
        g(f"v_add_f32 v{TMP1}, v{c}, v{TMP0}")
        g(f"v_exp_f32 v{TMP1}, -v{TMP1}")
        g(f"v_sub_f32 v{c}, 0, v{TMP0}")
        for i in range(8): g(f"v_sub_f32 {s(i)}, {s(i)}, v{TMP0}")
        for i in range(8): g(f"v_exp_f32 {s(i)}, {s(i)}")
        g(f"v_mul_f32 v{L0+2*b}, v{L0+2*b}, v{TMP1}")
        for db in range(8):
            for r in range(4): g(f"v_mul_f32 v{O(db,b,r)}, v{O(db,b,r)}, v{TMP1}")
        for i in range(4): g(f"v_cvt_pk_bf16_f32 v{P(0,i)}, {s(2*i)}, {s(2*i+1)}")
        for i in range(8): g(f"v_add_f32 v{L0+2*b}, v{L0+2*b}, {s(i)}")
        for db in range(8):
            g(f"v_mfma_f32_16x16x32_bf16 {Oq(db,b)}, {Va(db)}, {Pq(0)}, {Oq(db,b)}")
    g("s_add_u32 s44, s44, 0x2000")
    g("s_cmp_lt_u32 s44, 0x20000")
    g("s_cbranch_scc1 L_slow_loop")
    g("s_nop 7")
    xlane3(g, [L0, L0 + 2, L0 + 4], [TMP0, TMP1, TMP2], "v_add_f32")
    g(f"v_mbcnt_lo_u32_b32 v{TMP3}, -1, 0")
    g(f"v_mbcnt_hi_u32_b32 v{TMP3}, -1, v{TMP3}")
    g(f"v_lshlrev_b32 v{TMP3}, 4, v{TMP3}")
    g(f"v_and_b32 v{TMP2}, 0xf0, v{TMP3}")
    g(f"v_mov_b32 v{TMP0}, 0")
    g(f"v_mov_b32 v100, v{C0}\nv_mov_b32 v101, v{C0+4}\nv_mov_b32 v102, v{C0+8}\nv_mov_b32 v103, 0")
    g(f"buffer_store_dwordx4 v[100:103], v{TMP2}, s[28:31], s59 offen offset:256 sc1")
    g(f"v_mov_b32 v96, v{L0}\nv_mov_b32 v97, v{L0+2}\nv_mov_b32 v98, v{L0+4}\nv_mov_b32 v99, 1")
    g(f"buffer_store_dwordx4 v[96:99], v{TMP2}, s[28:31], s59 offen sc1")
    for b in range(3):
        for x in range(1, 4):
            g(pack_ops(x, b))
            g(pay_store(x, b, opt))
    g("s_branch L_sent")


def pack_ops(x, b):
    o, p = O(2 * x, b), O(2 * x + 1, b)
    return [f"v_cvt_pk_bf16_f32 v{o}, v{o}, v{o+1}", f"v_cvt_pk_bf16_f32 v{o+1}, v{o+2}, v{o+3}",
            f"v_cvt_pk_bf16_f32 v{o+2}, v{p}, v{p+1}", f"v_cvt_pk_bf16_f32 v{o+3}, v{p+2}, v{p+3}"]

def pay_store(x, b, opt, pol=None):
    if pol is None and (opt.sc1b >> b) & 1: pol = "sc1"
    return f"buffer_store_dwordx4 {Oq(2*x, b)}, v{TMP3}, s[28:31], s{55+x} offen offset:{b*1024} {opt.stpol if pol is None else pol}"


def addr_setup(g, lane, t):
    g(f"v_and_b32 v{t}, 7, v{lane}")
    g(f"v_mul_u32_u24 v{t}, {PIECE}, v{t}")
    g(f"v_bfe_u32 v{t+1}, v{lane}, 3, 1")
    g(f"v_lshlrev_b32 v{t+1}, 8, v{t+1}")
    g(f"v_and_b32 v{t+2}, 48, v{lane}")
    g(f"v_add3_u32 v{KADDR}, v{t}, v{t+1}, v{t+2}")
    g(f"v_bfe_u32 v{t}, v{lane}, 2, 3")
    g(f"v_mul_u32_u24 v{t}, {PIECE}, v{t}")
    g(f"v_lshrrev_b32 v{t+1}, 5, v{lane}")
    g(f"v_lshlrev_b32 v{t+1}, 8, v{t+1}")
    g(f"v_and_b32 v{t+3}, 3, v{lane}")
    g(f"v_lshlrev_b32 v{t+3}, 3, v{t+3}")
    g(f"v_add3_u32 v{VADDR}, v{t}, v{t+1}, v{t+3}")
    g(f"v_add_u32 v{VADDR}, {TILE}, v{VADDR}")


def gen(opt):
    g = G(opt)
    kvpol, qpol = opt.kvpol, opt.qpol
    vpol = opt.vpol if opt.vpol is not None else kvpol
    g.o.append(f"; @launch grid=(256,1,1) block=(512,1,1) lds={LDS_BYTES}")
    g.o.append('.amdgcn_target "amdgcn-amd-amdhsa--gfx950"')
    g.o.append(".text")
    g.o.append(f".globl {KN}")
    g.o.append(".p2align 8")
    g.o.append(f".type {KN},@function")
    g(f"{KN}:")
    g("s_load_dwordx8 s[4:11], s[0:1], 0")
    g("s_load_dwordx4 s[12:15], s[0:1], 32")
    g.ts(0)
    g("s_cmp_ge_u32 s2, 256")
    g("s_cbranch_scc1 L_end")
    g("v_lshrrev_b32 v1, 6, v0")
    g("s_and_b32 s16, s2, 7")
    g("s_lshr_b32 s17, s2, 3")
    g("v_readfirstlane_b32 s18, v1")
    g("s_lshl_b32 s16, s16, 3")
    g("s_lshr_b32 s19, s17, 2")
    g("s_add_u32 s16, s16, s19")
    g("s_and_b32 s17, s17, 3")
    if opt.linear:
        g("s_lshr_b32 s16, s2, 2\ns_and_b32 s17, s2, 3")
    g(f"v_and_b32 v{TMP2}, 63, v0")
    g(f"v_lshlrev_b32 v{TMP3}, 4, v{TMP2}")
    g("s_and_b32 s19, s18, 3")
    g("s_mov_b32 s23, 0x20000")
    g("s_mov_b32 s27, 0x20000")
    g("s_mov_b32 s31, 0x20000")
    def q_issue():
        g("s_waitcnt lgkmcnt(0)")
        g("s_add_u32 s20, s4, s37")
        g("s_addc_u32 s21, s5, 0")
        for i in range(12):
            so = ["0", "s38", "s39"][i // 4]
            g(f"buffer_load_dwordx4 v[{4*i}:{4*i+3}], v{TMP3}, s[20:23], {so} offen offset:{(i%4)*1024} {qpol}")
        g("s_barrier")
    def q_pre():
        g("s_lshl_b32 s36, s16, 2")
        g("s_add_u32 s36, s36, s19")
        g("s_mul_i32 s37, s36, 12288")
        g("s_mov_b32 s22, 12288")
        g("s_movk_i32 s38, 0x1000")
        g("s_movk_i32 s39, 0x2000")
    if opt.qfirst:
        g("s_cmp_ge_u32 s18, 4")
        g("s_cbranch_scc1 L_loader")
        q_pre()
        q_issue()
        g("s_branch L_compute")
        g("L_loader:")
    else:
        g("s_cmp_lt_u32 s18, 4")
        g("s_cbranch_scc1 L_compute")

    g("s_lshl_b32 s36, s19, 11")
    g("s_lshl_b32 s37, s17, 6")
    g(f"v_xor_b32 v2, s37, v{TMP3}")
    g(f"v_add_u32 v1, s36, v{TMP3}")
    g("v_add_u32 v2, s36, v2")
    g("s_lshl_b32 s38, s16, 19")
    g("s_lshl_b32 s39, s17, 17")
    g("s_add_u32 s39, s38, s39")
    g(f"s_mul_i32 s42, s19, {2*PIECE}")
    g("s_mov_b32 s22, 0x20000")
    g("s_mov_b32 s26, 0x20000")
    g("s_movk_i32 s30, 0x1000")
    g(f"s_mul_i32 s44, s19, {RPITCH}")
    g(f"s_add_u32 m0, s44, {RBASE}")
    g(f"v_and_b32 v5, 48, v{TMP2}")
    g(f"v_xor_b32 v5, v5, v{TMP3}")
    g("s_lshl_b32 s45, s19, 10")
    if opt.rot:
        g(f"s_lshr_b32 s41, s2, {opt.rot - 1}\ns_and_b32 s41, s41, 15\ns_lshl_b32 s41, s41, 13")
    else:
        g("s_mov_b32 s41, 0")
    g("s_lshl_b32 s46, s16, 9")
    g("s_lshl_b32 s47, s17, 2")
    g("s_add_u32 s46, s46, s47")
    g(f"s_add_u32 s46, s46, {WS_FLAG}")
    g(f"v_and_b32 v3, 3, v{TMP2}")
    g("v_lshlrev_b32 v3, 7, v3")
    g(f"v_lshlrev_b32 v13, 2, v{TMP2}")
    g("s_mov_b32 s34, 0x10000000")
    g("s_mov_b32 s35, 0x20000")
    g("s_mov_b32 s50, 256")
    g("s_mov_b32 s51, 0x20000")
    if opt.cpf:
        g(f"s_cmp_ge_u32 s2, {8*opt.cpf}")
        g("s_cbranch_scc1 L_nocpf")
        g("s_getpc_b64 s[52:53]")
        g("L_pc:")
        if opt.cpf_from:
            g(f"s_add_u32 s52, s52, {opt.cpf_from}-L_pc")
            g("s_addc_u32 s53, s53, 0")
            g(f"s_mov_b32 s54, L_general-{opt.cpf_from}")
        else:
            g(f"s_sub_u32 s52, s52, L_pc-{KN}")
            g("s_subb_u32 s53, s53, 0")
            g(f"s_mov_b32 s54, L_code_end-{KN}")
        g("s_mov_b32 s55, 0x20000")
        g("s_lshr_b32 s56, s2, 3\ns_lshl_b32 s56, s56, 2\ns_add_u32 s56, s56, s19\ns_lshl_b32 s56, s56, 10")
        g(f"buffer_load_dwordx4 v[20:23], v{TMP3}, s[52:55], s56 offen")
        g("L_nocpf:")
    g("s_waitcnt lgkmcnt(0)")
    g("s_add_u32 s28, s6, s38")
    g("s_addc_u32 s29, s7, 0")
    g("buffer_load_dwordx4 v5, s[28:31], s45 offen lds")
    g(f"s_add_u32 m0, s42, {7*SLOT}")
    g("s_add_u32 s20, s6, s39")
    g("s_addc_u32 s21, s7, 0")
    g(f"buffer_load_dwordx4 v1, s[20:23], s41 offen {kvpol} lds")
    g(f"s_add_u32 m0, s42, {7*SLOT+32}")
    g("s_add_u32 s24, s8, s39")
    g("s_addc_u32 s25, s9, 0")
    g(f"buffer_load_dwordx4 v1, s[20:23], s41 offen offset:1024 {kvpol} lds")
    g("s_mov_b32 s32, s14")
    g("s_mov_b32 s33, s15")
    g("s_mov_b32 s48, s12")
    g("s_mov_b32 s49, s13")
    if opt.hs == "loader":
        g("s_cmp_lg_u32 s19, 0")
        g("s_cbranch_scc1 L_nohs1")
        g(f"buffer_load_dword v4, v3, s[32:35], s46 offen {opt.stalepol}")
        g("L_nohs1:")
    g("s_barrier")
    g.ts(1)
    def hs2():
        if opt.hs != "loader": return
        g("s_cmp_lg_u32 s19, 0")
        g("s_cbranch_scc1 L_nohs2")
        g("v_and_b32 v4, 1, v4")
        g("v_cmp_eq_u32 vcc, 0, v4")
        g("s_getreg_b32 s46, hwreg(HW_REG_XCC_ID)")
        g("s_and_b32 s46, s46, 7")
        g("s_lshl_b32 s46, s46, 4")
        g("s_and_b32 s47, vcc_lo, 15")
        g("s_or_b32 s46, s46, s47")
        g("s_or_b32 s46, s46, 0x80")
        if opt.hsbyte:
            g("v_mov_b32 v4, s46")
            g("s_lshl_b32 s47, s16, 2\ns_add_u32 s47, s47, s17")
            g("s_mov_b64 exec, 1")
            g("buffer_store_byte v4, off, s[48:51], s47 sc1")
            g("s_mov_b64 exec, -1")
        else:
            g("s_lshl_b32 s47, s17, 3")
            g("s_lshl_b32 s46, s46, s47")
            g("v_mov_b32 v4, s46")
            g("s_lshl_b32 s47, s16, 2")
            g("s_mov_b64 exec, 1")
            g("buffer_atomic_or v4, off, s[48:51], s47 sc1")
            g("s_mov_b64 exec, -1")
        g("L_nohs2:")
    def pair(u, mid=None):
        slot = (u & 7) * SLOT
        if u < 15:
            g(f"s_add_u32 m0, s42, {slot}")
            g("s_add_u32 s40, s41, 0x2000")
            if opt.rot: g("s_and_b32 s40, s40, 0x1ffff")
        order = opt.suborder
        ld = []
        if u < 15:
            ld.append((slot, f"buffer_load_dwordx4 v1, s[20:23], s40 offen {kvpol} lds"))
            ld.append((slot + 32, f"buffer_load_dwordx4 v1, s[20:23], s40 offen offset:1024 {kvpol} lds"))
        lv = [(slot + TILE, f"buffer_load_dwordx4 v2, s[24:27], s41 offen {vpol} lds"),
              (slot + TILE + 32, f"buffer_load_dwordx4 v2, s[24:27], s41 offen offset:1024 {vpol} lds")]
        ld = lv + ld if order else ld + lv
        for i, (m, ins) in enumerate(ld):
            if mid and i in mid: g("s_barrier")
            if i or order or u == 15:
                g(f"s_add_u32 m0, s42, {m}")
                g("s_nop 0")
            g(ins)
        g("s_mov_b32 s41, s40")
    sched = [int(x) for x in opt.sched.split(",")]
    cnt = [0]
    def tr():
        if not opt.trace: return
        g("s_memrealtime s[60:61]\ns_waitcnt lgkmcnt(0)")
        g(f"v_writelane_b32 v10, s60, {cnt[0]}")
        cnt[0] += 1
    if opt.trace:
        g("s_waitcnt lgkmcnt(0)")
        g("v_writelane_b32 v10, s64, 63")
    issued = [0]
    queue = []
    def issue(n, limit, mid=None):
        for _ in range(n):
            u = issued[0]
            if u >= 16 or u > limit: break
            pair(u, mid); issued[0] += 1
            queue.extend([u] * (4 if u < 15 else 2))
    def wait_for(t):
        n = sum(1 for x in queue if x > t)
        g(f"s_waitcnt vmcnt({n})")
    issue(sched[0], 6)
    tr(); g.ts(2)
    wait_for(-1)
    tr(); g.ts(3)
    g("s_barrier")
    tr()
    issue(sched[1], 6)
    if opt.hs_at < 0: hs2()
    for t in range(16):
        tr()
        assert issued[0] > t
        wait_for(t)
        tr()
        g("s_barrier")
        tr()
        mid = None
        if t < 2 * opt.sub:
            assert sched[min(t + 2, len(sched) - 1)] == 1 and issued[0] < 15
            mid = (2, 3) if t < 2 * opt.sub - 1 else (2,)
        issue(sched[min(t + 2, len(sched) - 1)], t + 7, mid)
        if t == opt.hs_at:
            hs2()
        if opt.prewarm is not None and t == opt.pw_at - 4:
            g("s_lshl_b32 s47, s16, 2")
            g("buffer_load_dword v14, off, s[48:51], s47 sc1")
            queue.append(issued[0] - 1)
        if opt.prewarm is not None and opt.pw_at <= t < opt.pw_at + 3:
            i = t - opt.pw_at
            if i == 0:
                g("v_readfirstlane_b32 s36, v14")
                g("s_lshr_b32 s37, s36, 8\ns_xor_b32 s37, s37, s36\ns_and_b32 s37, s37, 0x00f0f0f0")
                g("s_andn2_b32 s36, 0x80, s36\ns_or_b32 s37, s37, s36")
                if opt.pw_always: g("s_cmp_eq_u32 s37, 0x12345")
                g("s_cselect_b32 s34, 0, s34")
                g("s_lshl_b32 s36, s16, 2\ns_add_u32 s36, s36, s19\ns_lshl_b32 s36, s36, 2\ns_add_u32 s36, s36, s17")
                g(f"s_lshl_b32 s38, s36, 9\ns_add_u32 s38, s38, {WS_ML}")
                g(f"buffer_load_dword v12, v{TMP2}, s[32:35], s38 offen {opt.prewarm}".replace(f"v{TMP2},", "v13,"))
                queue.append(99)
            g(f"s_xor_b32 s37, s36, {i+1}\ns_mul_i32 s37, s37, 9216\ns_add_u32 s37, s37, {i*3072}")
            if opt.pwlite:
                assert opt.sc1b == 1
                if i == 0: g(f"v_and_b32 v16, 31, v{TMP2}\nv_lshlrev_b32 v16, 6, v16")
                g(f"buffer_load_dword v17, v16, s[32:35], s37 offen offset:1024 {opt.prewarm}")
                queue.append(99)
            else:
                for k in range(3):
                    if (opt.sc1b >> k) & 1: continue
                    g(f"buffer_load_dwordx4 v[{16+4*k}:{19+4*k}], v{TMP3}, s[32:35], s37 offen offset:{k*1024} {opt.prewarm}")
                    queue.append(99)
    if opt.trace:
        g("s_mov_b32 s28, s14\ns_mov_b32 s29, s15\ns_mov_b32 s30, 0x10000000\ns_mov_b32 s31, 0x20000")
        g("s_lshl_b32 s42, s2, 2\ns_add_u32 s42, s42, s19\ns_lshl_b32 s42, s42, 8")
        g(f"s_add_u32 s42, s42, {WS_TS + (1<<20)}")
        g(f"v_lshrrev_b32 v11, 2, v{TMP3}")
        g("buffer_store_dword v10, v11, s[28:31], s42 offen")
    if opt.lpf:
        g("s_sub_u32 s37, s37, 9216\ns_add_u32 s38, s37, 3072\ns_add_u32 s39, s37, 6144")
        for i, pt in enumerate(opt.lpf.split(",")):
            g("s_barrier")
            for k in ([i] if len(opt.lpf.split(",")) > 1 else [0, 1]):
                for x in range(3):
                    g(f"buffer_load_dwordx4 v[{16+4*x}:{19+4*x}], v{TMP3}, s[32:35], s{37+x} offen offset:{k*1024}")
    if opt.wb:
        g(f"s_lshr_b32 s36, s2, 3\ns_and_b32 s36, s36, {opt.wb - 1}\ns_or_b32 s36, s36, s19")
        g("s_cbranch_scc1 L_nowb")
        g("s_barrier")
        g("buffer_wbl2 sc1")
        g("L_nowb:")
    g.ts_store(1)
    g("s_endpgm")

    g("L_compute:")
    if not opt.qfirst: q_pre()
    def setup():
        addr_setup(g, TMP2, 100)
        g(f"s_mul_i32 s42, s19, {QWAVE}")
        g(f"s_add_u32 s42, s42, {QBASE}")
        g(f"v_lshrrev_b32 v103, 4, v{TMP2}")
        g(f"v_mul_u32_u24 v105, {QPITCH}, v103")
        g(f"v_and_b32 v107, 15, v{TMP2}")
        g("v_lshlrev_b32 v108, 4, v107")
        g("v_add3_u32 v105, v105, v108, s42")
        g(f"v_mul_u32_u24 v106, {QPITCH}, v107")
        g("v_add3_u32 v106, v106, v102, s42")
        g(f"v_bfe_u32 v107, v{TMP2}, 2, 2")
        g(f"v_mul_u32_u24 v107, {RPITCH}, v107")
        g(f"v_and_b32 v109, 3, v{TMP2}")
        g("v_xor_b32 v110, v109, v103")
        g("v_lshlrev_b32 v110, 4, v110")
        g("v_lshlrev_b32 v109, 8, v109")
        g("v_add3_u32 v107, v107, v109, v110")
        g(f"v_add_u32 v107, {RBASE}, v107")
        g(f"v_and_b32 v111, 3, v{TMP2}")
        g("v_lshlrev_b32 v111, 7, v111")
        g("s_lshl_b32 s46, s16, 9\ns_lshl_b32 s47, s17, 2\ns_add_u32 s46, s46, s47")
        g(f"s_add_u32 s47, s46, {WS_FLAG}")
        g("s_cmp_eq_u32 s19, 0\ns_cselect_b32 s63, 2, 99")
        g(f"v_mov_b32 v{TMP2}, v108")
        for i in range(48, 96): g(f"v_mov_b32 v{i}, 0")
        for i in range(6): g(f"v_mov_b32 v{L0+i}, 0")
        g(f"s_mov_b32 s52, 0x{C_SCALE:08x}")
        g(f"s_mov_b32 s53, 0x{C_SCALE:08x}")
        g("s_mov_b32 s51, 0xffff0000")
        g(f"v_add_u32 v{TMP0}, {7*SLOT}, v{KADDR}")
        g(f"s_mov_b32 s54, {2*SLOT}")
        g("s_mov_b32 s44, 0")
        if opt.thr: g("s_mov_b32 s70, 0\ns_mov_b32 s71, 0")
        g("s_lshl_b32 s40, s36, 2")
        for x in range(1, 4):
            g(f"s_xor_b32 s42, s17, {x}")
            g("s_add_u32 s42, s42, s40")
            g(f"s_mul_i32 s{55+x}, s42, 9216")
            if x > 1: g(f"s_add_u32 s{55+x}, s{55+x}, {(x-1)*3072}")
        g("s_add_u32 s42, s40, s17")
        g("s_lshl_b32 s59, s42, 9")
        g(f"s_add_u32 s59, s59, {WS_ML}")
        g("s_mul_i32 s60, s42, 9216")
        g("s_lshl_b32 s61, s36, 7")
        g(f"s_add_u32 s61, s61, {WS_FLAG}")
        g("s_lshl_b32 s62, s16, 2")
        g("s_mov_b32 s26, 12288")
        g("s_mov_b32 s30, 0x10000000")
        g("s_mov_b32 s34, 256")
        g("s_mov_b32 s35, 0x20000")
        g("s_mov_b32 s48, 0x3f80")
        g("s_mov_b32 s49, 0x3f800000")
    setup()
    g.ts(2)
    if not opt.qfirst: q_issue()
    g.ts(1)
    if opt.tsout:
        g("s_add_u32 s24, s14, s37\ns_addc_u32 s25, s15, 0\ns_add_u32 s24, s24, 0x2800000\ns_addc_u32 s25, s25, 0")
    else:
        g("s_add_u32 s24, s10, s37")
        g("s_addc_u32 s25, s11, 0")
    g("s_mov_b32 s28, s14")
    g("s_mov_b32 s29, s15")
    g("s_mov_b32 s32, s12")
    g("s_mov_b32 s33, s13")
    QX = 0
    if opt.hs == "loop":
        g(f"buffer_load_dword v{TMP1}, v111, s[28:31], s47 offen {opt.stalepol}")
        QX = 1
    def qscale_ops(b):
        out = []
        for i in range(4):
            li = b * 4 + i
            grp = [f"s_waitcnt vmcnt({11-li+QX})"]
            for r in range(4): grp += [f"v_lshlrev_b32 v{112+2*r}, 16, v{4*li+r}", f"v_and_b32 v{113+2*r}, s51, v{4*li+r}"]
            for r in range(4): grp.append(f"v_pk_mul_f32 v[{112+2*r}:{113+2*r}], v[{112+2*r}:{113+2*r}], s[52:53]")
            for r in range(4): grp.append(f"v_cvt_pk_bf16_f32 v{4*li+r}, v{112+2*r}, v{113+2*r}")
            grp.append(f"ds_write_b128 v105, v[{4*li}:{4*li+3}] offset:{i*4*QPITCH}")
            out.append(grp)
        out.append([f"ds_read_b128 {Qa(b,s)}, v106 offset:{64*s}" for s in range(4)])
        return out
    def pp_mfma(b, s):
        c = "0" if s == 0 else Cq(b)
        return f"v_mfma_f32_16x16x32_bf16 {Cq(b)}, {Va(s)}, {Qa(b,s)}, {c}"
    for grp in qscale_ops(0): g(grp)
    g.ts(3)
    for grp in qscale_ops(1): g(grp)
    for grp in qscale_ops(2): g(grp)
    zero = [f"v_mov_b32 v{i}, 0" for i in range(48)]
    g(zero[:32])
    if opt.stag:
        g("s_lshr_b32 s40, s2, 3\ns_and_b32 s40, s40, 7")
        g("L_stag:\ns_cmp_eq_u32 s40, 0\ns_cbranch_scc1 L_stagd")
        g(f"s_sleep {opt.stag}\ns_sub_u32 s40, s40, 1\ns_branch L_stag\nL_stagd:")
    g.ts(4)
    g("s_barrier")
    g.ts(5)
    for s in range(4):
        g(f"ds_read_b128 {Va(s)}, v107 offset:{64*s}")
    k0r = [f"ds_read_b128 {Ka(kb,s)}, v{TMP0} offset:{kb*512 + s*64}" for kb in range(2) for s in range(4)]
    g(k0r[:4])
    g(zero[32:40])
    g("s_waitcnt lgkmcnt(4)")
    if opt.pts: g.ts(9)
    pm = [pp_mfma(b, s) for b in range(3) for s in range(4)]
    qk0 = [m.replace(Cq(0), "0") for m in slot_mfmas(5)[:8]]
    class Lst(list):
        def __call__(self, x): self.append(x)
    red = Lst()
    for b in range(3):
        c = C0 + 4 * b
        red += [f"v_max3_f32 v{c}, v{c}, v{c+1}, v{c+2}", f"v_max_f32 v{c}, v{c}, v{c+3}"]
    xlane3(red, [C0, C0 + 4, C0 + 8], [C0 + 1, C0 + 5, C0 + 9], "v_max_f32")
    for i in range(12):
        g(pm[i])
        if i < 4: g(k0r[4 + i])
        elif i < 8: g(zero[40 + 2 * (i - 4):42 + 2 * (i - 4)])
        elif i >= 10: g(red[2 * (i - 10):2 * (i - 10) + 2])
    if opt.pts: g.ts(10)
    g("s_waitcnt lgkmcnt(0)")
    rest = red[4:]
    for i in range(8):
        g(qk0[i])
        if i == 3: g("s_nop 2")
        if i >= 3: g(rest[(i - 3) * len(rest) // 5:(i - 2) * len(rest) // 5])
    if opt.pts: g.ts(11)
    g("s_barrier")
    if opt.pts: g.ts(12)
    for r in range(8): g(vread(r, 0))
    for i in range(8): g(f"v_sub_f32 v{S(0,i)}, v{S(0,i)}, v{C0}")
    smA = softmax_ops(6, "add")
    neg = []
    for b in (1, 2, 0):
        c = C0 + 4 * b
        for i in (1, 2, 3, 0):
            neg.append(f"v_sub_f32 v{c+i}, 0, v{c}")
    side = [f"v_mov_b32 v108, v{C0}", f"v_mov_b32 v109, v{C0+4}", f"v_mov_b32 v110, v{C0+8}",
            f"buffer_store_dwordx4 v[108:111], v{TMP2}, s[28:31], s59 offen offset:256 sc1"]
    for i in range(8):
        g(smA[8 + i])
        g(neg[i * 12 // 8:(i + 1) * 12 // 8])
    g(side)
    g.ts(6)
    g("s_branch L_k0")
    NT = opt.nt
    niter = 8 - NT // 2 if NT else 8
    slots = loop_body("add", rotated=True, niter=niter, vlast=int(opt.vlast, 0), klast=int(opt.klast, 0))
    for pi, ph in enumerate(opt.phases.split(",")):
        e, run, vl, kl, pad = (ph.split(":") + ["0"])[:5]
        e = min(int(e), niter)
        sl = loop_body("add", rotated=True, niter=e, vlast=int(vl, 16), klast=int(kl, 16), run=int(run), sub=(e <= opt.sub), adapt=((opt.thr, opt.imin) if (opt.thr and pi == 0) else None))
        if int(pad):
            for k in sl:
                sl[k] = sum(([l, f"s_nop {int(pad)-1}"] if l.startswith("v_exp") else [l] for l in sl[k]), [])
        g(f"L_loop{pi}:")
        g(sl[4]); g(sl[-1])
        if pi == 0: g("L_k0:")
        for k in range(4): g(sl[k])
        g(f"s_cbranch_scc1 L_loop{pi}")
    assert e == niter
    g("L_tail:")
    g.ts(7)
    T0 = 16 - NT
    TS = 16 - opt.skew if opt.skew >= 0 else T0
    units = [(t, b) for t in range(TS) for b in range(3)] + [(t, b) for t in range(TS, 16) for b in range(2)] + [(t, 2) for t in range(TS, 16)]
    n0 = 6 * (niter - 1) + 4
    base = (2 * (niter - 1)) & 7
    first, last = {}, {}
    kslot0, vslot0 = base + 1, base + 2
    if NT:
        g(f"v_add_u32 v{KADDR}, {SLOT}, v{KADDR}")
        g(f"v_add_u32 v{VADDR}, {2*SLOT}, v{VADDR}")
    g(f"buffer_load_dword v{TMP0}, off, s[32:35], s62 sc1")
    fin = {b: max(n for n in range(48) if units[n][1] == b) for b in range(3)}
    for b in range(2):
        n = fin[b] + 1
        for x in range(1, 4):
            ops = pack_ops(x, b)
            if n < 47:
                gp = {1: (3, 4), 2: (6, 6), 3: (7, 7)}[x]
                last.setdefault((n, gp[0]), []).extend(ops[:2]); last.setdefault((n, gp[1]), []).extend(ops[2:])
                first.setdefault((n, gp[1] + 1), []).append(pay_store(x, b, opt))
            else:
                last.setdefault((n, 2 * x - 1), []).extend(ops + [pay_store(x, b, opt)])
    lred = Lst()
    for b in range(3): lred(f"v_add_f32 v{96+b}, v{L0+2*b}, v{L0+2*b+1}")
    xlane3(lred, [96, 97, 98], [100, 101, 102], "v_add_f32")
    lred("v_mov_b32 v99, 0")
    lred(f"buffer_store_dwordx4 v[96:99], v{TMP2}, s[28:31], s59 offen {opt.stpol}")
    lred(f"v_add_f32 v{TMP1}, v96, v97")
    lred("s_mov_b32 s50, " + ("0x5f800000" if not opt.force_fb else "0x00000000"))
    lred(f"v_add_f32 v{TMP1}, v{TMP1}, v98")
    lred(f"v_cmp_nlt_f32 vcc, v{TMP1}, s50")
    for i in range(5):
        last.setdefault((47, 8 + i), []).extend(lred[i * len(lred) // 5:(i + 1) * len(lred) // 5])
    last.setdefault((47, 13), []).extend(pack_ops(1, 2) + [pay_store(1, 2, opt)])
    last.setdefault((47, 15), []).extend(pack_ops(2, 2) + [pay_store(2, 2, opt)] + pack_ops(3, 2) + [pay_store(3, 2, opt)])
    last.setdefault((47, 7), []).append("s_nop 0")
    if opt.lpf:
        for pt in opt.lpf.split(","):
            n, gp = pt.split(":")
            first.setdefault((int(n), int(gp)), []).append("s_barrier")
    g(tail_slots(n0, units, kslot0, vslot0, 2 * niter - 1, first, last, pv_last=[2, 3, 4, 5, 6, 7, 0, 1]))
    g.ts(8)
    g("s_cbranch_vccz L_sent")
    g("s_waitcnt vmcnt(0)")
    g("s_branch L_slow")
    g("L_sent:")
    g("s_mov_b32 s47, 0x100000")
    g("s_waitcnt vmcnt(10)")
    g("L_hs:")
    g(f"v_readfirstlane_b32 s44, v{TMP0}")
    g("s_and_b32 s45, s44, 0x80808080")
    g("s_cmp_eq_u32 s45, 0x80808080")
    g("s_cbranch_scc0 L_hs_retry")
    g("L_hs_ok:")
    g("s_lshr_b32 s45, s44, 8")
    g("s_xor_b32 s45, s45, s44")
    g("s_and_b32 s45, s45, 0x00707070")
    if opt.force_slow:
        g("s_mov_b32 s45, 1")
    g(f"v_bfe_u32 v100, v{TMP3}, 4, 2")
    g("v_lshlrev_b32 v101, 3, v100")
    g("v_add_u32 v101, s19, v101")
    g("v_lshrrev_b32 v101, v101, s44")
    g("v_and_b32 v101, 1, v101")
    g("v_lshlrev_b32 v100, 2, v100")
    g("s_lshl_b32 s46, s17, 3")
    g("s_add_u32 s46, s46, s19")
    g("s_lshr_b32 s46, s44, s46")
    g("s_and_b32 s46, s46, 1")
    g("v_mov_b32 v102, s46")
    g("s_lshl_b32 s46, s17, 2")
    g("s_add_u32 s46, s46, s61")
    for x in range(1, 4):
        g(f"s_xor_b32 s{19+x}, s59, {x<<9}")
    g("s_add_u32 s40, s60, 3072\ns_add_u32 s41, s60, 6144")
    g("s_mov_b32 s47, 0x100000")
    g("s_cmp_lg_u32 s45, 0")
    g.ts(9)
    g("s_waitcnt vmcnt(0)")
    g.ts(10)
    g("s_cbranch_scc1 L_xcd_flag")
    g(f"buffer_store_dword v102, off, s[28:31], s46 {opt.flagpol}")
    if opt.wb and opt.wbpos == 0: g("s_barrier")
    g("L_poll:")
    g(f"buffer_load_dword v103, v100, s[28:31], s61 offen {opt.pollpol}")
    g("s_waitcnt vmcnt(0)")
    g("v_and_b32 v103, 1, v103")
    g("v_cmp_ne_u32 vcc, v103, v101")
    g("s_cbranch_vccz L_poll_ok")
    g("s_sub_u32 s47, s47, 1")
    g("s_cbranch_scc0 L_poll")
    g("L_poll_ok:")
    g.ts(11)
    LR = lambda x: 100 + 4 * x
    PR = lambda x, b: 24 + ((x - 1) * 3 + b) * 4
    def inbox_loads(lp):
        for x in range(1, 4):
            g(f"buffer_load_dwordx4 v[{LR(x)}:{LR(x)+3}], v{TMP2}, s[28:31], s{19+x} offen {lp}")
        for b in range(3):
            for x in range(1, 4):
                g(f"buffer_load_dwordx4 v[{PR(x,b)}:{PR(x,b)+3}], v{TMP3}, s[28:31], {['s60','s40','s41'][x-1]} offen offset:{b*1024} {lp}")
    inbox_loads(opt.ldpol)
    if opt.wb and opt.wbpos == 1: g("s_barrier")
    g("L_loaded:")
    g(f"v_bfe_u32 v132, v{TMP3}, 4, 4")
    g("v_lshlrev_b32 v132, 8, v132")
    if opt.out4:
        g(f"v_bfe_u32 v133, v{TMP3}, 8, 1\nv_lshlrev_b32 v133, 5, v133")
        g(f"v_bfe_u32 v134, v{TMP3}, 9, 1\nv_lshl_add_u32 v133, v134, 4, v133")
    else:
        g(f"v_lshrrev_b32 v133, 8, v{TMP3}")
        g("v_lshlrev_b32 v133, 3, v133")
    g("s_lshl_b32 s42, s17, 6")
    g("v_add3_u32 v132, v132, v133, s42")
    g("s_waitcnt vmcnt(9)")
    g.ts(12)
    g(f"v_or3_b32 v99, v99, v{LR(1)+3}, v{LR(2)+3}")
    g(f"v_or_b32 v99, v99, v{LR(3)+3}")
    g("v_cmp_ne_u32 vcc, 0, v99")
    g("s_cbranch_vccnz L_general")
    for x in range(1, 4):
        for b in range(3):
            g(f"v_add_f32 v{96+b}, v{96+b}, v{LR(x)+b}")
    for b in range(3): g(f"v_rcp_f32 v{96+b}, v{96+b}")
    def acc_reg(b, i): return O(i // 4, b, i % 4)
    nst = 1 if opt.out4 else 2
    for b in range(3):
        for x in range(1, 4):
            g(f"s_waitcnt vmcnt({9 - (b*3 + x) + b*nst})")
            if x == 3 and b == 2: g.ts(13)
            for r in range(4):
                src = PR(x, b) + r
                g(f"v_dot2c_f32_bf16 v{acc_reg(b,2*r)}, s48, v{src}")
                g(f"v_dot2c_f32_bf16 v{acc_reg(b,2*r+1)}, s49, v{src}")
        out_store(g, b, 96 + b, opt)
    g("L_done:")
    g.ts(14)
    if opt.ts:
        g("s_waitcnt vmcnt(0)")
        g.ts(15)
    g.ts_store(0)
    g("L_end:")
    g("s_endpgm")
    g("L_hs_retry:")
    g("s_sleep 2")
    g(f"buffer_load_dword v{TMP0}, off, s[32:35], s62 sc1")
    g("s_sub_u32 s47, s47, 1")
    g("s_waitcnt vmcnt(0)")
    g("s_cbranch_scc0 L_hs")
    g("s_branch L_hs_ok")
    g("L_xcd_flag:")
    g(f"buffer_store_dwordx4 v[96:99], v{TMP2}, s[28:31], s59 offen sc1")
    for b in range(3):
        for x in range(1, 4):
            g(pay_store(x, b, opt, "sc1"))
    g("s_waitcnt vmcnt(0)")
    g("buffer_store_dword v102, off, s[28:31], s46 sc1")
    g("L_poll2:")
    g("buffer_load_dword v103, v100, s[28:31], s61 offen sc1")
    g("s_waitcnt vmcnt(0)")
    g("v_and_b32 v103, 1, v103")
    g("v_cmp_ne_u32 vcc, v103, v101")
    g("s_cbranch_vccz L_poll2_ok")
    g("s_sub_u32 s47, s47, 1")
    g("s_cbranch_scc0 L_poll2")
    g("L_poll2_ok:")
    inbox_loads("sc1")
    g("s_branch L_loaded")
    g("L_general:")
    CR = lambda x: 60 + 4 * x
    for x in range(1, 4):
        g(f"buffer_load_dwordx4 v[{CR(x)}:{CR(x)+3}], v{TMP2}, s[28:31], s{19+x} offen offset:256 sc1")
    for b in range(3): g(f"v_mov_b32 v{CR(0)+b}, v{C0+4*b}")
    g("s_waitcnt vmcnt(0)")
    for b in range(3):
        g(f"v_min3_f32 v100, v{CR(0)+b}, v{CR(1)+b}, v{CR(2)+b}")
        g(f"v_min_f32 v100, v100, v{CR(3)+b}")
        for x in range(4): g(f"v_sub_f32 v{CR(x)+b}, v100, v{CR(x)+b}")
        for x in range(4): g(f"v_exp_f32 v{CR(x)+b}, v{CR(x)+b}")
        g("s_nop 0")
        g(f"v_mul_f32 v{96+b}, v{96+b}, v{CR(0)+b}")
        for x in range(1, 4): g(f"v_fmac_f32 v{96+b}, v{CR(x)+b}, v{LR(x)+b}")
    for b in range(3): g(f"v_rcp_f32 v{96+b}, v{96+b}")
    for b in range(3):
        for i in range(8): g(f"v_mul_f32 v{acc_reg(b,i)}, v{acc_reg(b,i)}, v{CR(0)+b}")
        for x in range(1, 4):
            for r in range(4):
                src = PR(x, b) + r
                g(f"v_lshlrev_b32 v116, 16, v{src}")
                g(f"v_and_b32 v117, s51, v{src}")
                g(f"v_fmac_f32 v{acc_reg(b,2*r)}, v116, v{CR(x)+b}")
                g(f"v_fmac_f32 v{acc_reg(b,2*r+1)}, v117, v{CR(x)+b}")
        out_store(g, b, 96 + b, opt)
    g("s_branch L_done")
    g("L_code_end:")
    slow_path(g, opt)
    g.o.append(f""".section .rodata,"a"
.p2align 6
.amdhsa_kernel {KN}
  .amdhsa_next_free_vgpr {NV+NA}
  .amdhsa_next_free_sgpr 102
  .amdhsa_accum_offset {NV}
  .amdhsa_group_segment_fixed_size 0
  .amdhsa_kernarg_size 48
  .amdhsa_user_sgpr_count 2
  .amdhsa_user_sgpr_kernarg_segment_ptr 1
  .amdhsa_system_sgpr_workgroup_id_x 1
.end_amdhsa_kernel""")
    return "\n".join(g.o) + "\n"


def out_store(g, b, rl, opt):
    o, p = O(0, b), O(1, b)
    so = ["0", "s38", "s39"][b]
    for r in range(4): g(f"v_mul_f32 v{o+r}, v{o+r}, v{rl}")
    for r in range(4): g(f"v_mul_f32 v{p+r}, v{p+r}, v{rl}")
    if opt.out4:
        g(f"v_cvt_pk_bf16_f32 v{o}, v{o}, v{o+1}")
        g(f"v_cvt_pk_bf16_f32 v{o+1}, v{o+2}, v{o+3}")
        g(f"v_cvt_pk_bf16_f32 v{o+2}, v{p}, v{p+1}")
        g(f"v_cvt_pk_bf16_f32 v{o+3}, v{p+2}, v{p+3}")
        g("s_nop 0")
        g(f"v_permlane16_swap_b32 v{o}, v{o+2}")
        g(f"v_permlane16_swap_b32 v{o+1}, v{o+3}")
        g("s_nop 0")
        g(f"buffer_store_dwordx4 v[{o}:{o+3}], v132, s[24:27], {so} offen {opt.outpol}")
        return
    for h in range(2):
        o = O(h, b)
        g(f"v_cvt_pk_bf16_f32 v{o}, v{o}, v{o+1}")
        g(f"v_cvt_pk_bf16_f32 v{o+1}, v{o+2}, v{o+3}")
        g(f"buffer_store_dwordx2 v[{o}:{o+1}], v132, s[24:27], {so} offen offset:{32*h} {opt.outpol}")


if __name__ == "__main__":
    ap = argparse.ArgumentParser()
    ap.add_argument("-o", default="standalone__gqa_softmax__near_ridge.s")
    ap.add_argument("--kvpol", default="nt")
    ap.add_argument("--qpol", default="nt")
    ap.add_argument("--stpol", default="")
    ap.add_argument("--ldpol", default="nt")
    ap.add_argument("--outpol", default="sc1")
    ap.add_argument("--ts", type=int, default=0)
    ap.add_argument("--hsbyte", type=int, default=0)
    ap.add_argument("--thr", type=int, default=0)
    ap.add_argument("--imin", type=int, default=3)
    ap.add_argument("--pwlite", type=int, default=0)
    ap.add_argument("--sub", type=int, default=0)
    ap.add_argument("--suborder", type=int, default=0)
    ap.add_argument("--qfirst", type=int, default=1)
    ap.add_argument("--stag", type=int, default=0)
    ap.add_argument("--lpf", default="")
    ap.add_argument("--sc1b", type=int, default=1)
    ap.add_argument("--wb", type=int, default=0)
    ap.add_argument("--wbpos", type=int, default=0)
    ap.add_argument("--pw_always", type=int, default=0)
    ap.add_argument("--phases", default="6:1:ffff:ff,8:1:0:0")
    ap.add_argument("--cpf_from", default="L_loop1")
    ap.add_argument("--cpf", type=int, default=2)
    ap.add_argument("--skew", type=int, default=-1)
    ap.add_argument("--vlast", default="0")
    ap.add_argument("--klast", default="0")
    ap.add_argument("--split", type=int, default=0)
    ap.add_argument("--pad2", type=int, default=0)
    ap.add_argument("--ramp", type=int, default=0)
    ap.add_argument("--rampgap", type=int, default=0)
    ap.add_argument("--pad", type=int, default=0)
    ap.add_argument("--out4", type=int, default=1)
    ap.add_argument("--pw_at", type=int, default=12)
    ap.add_argument("--nt", type=int, default=0)
    ap.add_argument("--sched", default="2,1,1")
    ap.add_argument("--rot", type=int, default=0)
    ap.add_argument("--hs_at", type=int, default=-1)
    ap.add_argument("--probe", type=int, default=0)
    ap.add_argument("--vpol", default=None)
    ap.add_argument("--hs", default="loader")
    ap.add_argument("--setup", default="early")
    ap.add_argument("--tsout", type=int, default=0)
    ap.add_argument("--pts", type=int, default=0)
    ap.add_argument("--exp_x1", type=int, default=0)
    ap.add_argument("--exp_2x", type=int, default=0)
    ap.add_argument("--prewarm", default="")
    ap.add_argument("--linear", type=int, default=0)
    ap.add_argument("--trace", type=int, default=0)
    ap.add_argument("--pollpol", default="nt")
    ap.add_argument("--stalepol", default="")
    ap.add_argument("--dot", type=int, default=1)
    ap.add_argument("--flagpol", default="")
    ap.add_argument("--depth", type=int, default=3)
    ap.add_argument("--init_pairs", type=int, default=2)
    ap.add_argument("--force_slow", type=int, default=0)
    ap.add_argument("--force_fb", type=int, default=0)
    opt = ap.parse_args()
    open(opt.o, "w").write(gen(opt))
```

```python
import sys, argparse, struct, math
from body import *

KN = "standalone__gqa_softmax__near_ridge_kernel"
NSLOT = 8
RING = NSLOT * SLOT
QBASE = RING
QPITCH = 288
QWAVE = 16 * QPITCH
RBASE = QBASE + 4 * QWAVE
RPITCH = 1088
LDS_BYTES = RBASE + 4 * RPITCH

WS_ML = 16 << 20
WS_FLAG = 24 << 20
WS_TS = 32 << 20
C_SCALE = struct.unpack("<I", struct.pack("<f", math.log2(math.e) / math.sqrt(128.0)))[0]
NTS = 16


HEADER = """
GQA attention (B8 Hq32 Hkv8 Sq48 Sk2048 D128, bf16), hand-scheduled via gen/gen.py + gen/body.py.
kernarg: q, k, v, out, debug, ws.  256 workgroups = 64 (batch, kv head) pairs x 4 key chunks of 512 keys.
Waves 0-3 compute (one q head = 48 rows each, S^T = K Q^T and O^T = V^T P^T with 16x16x32 MFMA),
waves 4-7 stream K/V tiles into an 8-slot LDS ring with LDS-DMA.
Softmax reference: row max over the first 16 keys of the pair (same in all 4 chunks); the row sums are
checked at the end and a wave whose reference was unsafe recomputes its chunk with the true online max.
The 4 chunk partials are exchanged through ws (flags tagged against stale contents, hand-shake in debug;
device-scope accesses whenever the four workgroups are not known to share an XCD) and combined in place.
"""


class G:
    def __init__(self, opt):
        self.o = []
        self.opt = opt
    def __call__(self, s):
        if isinstance(s, list):
            for x in s: self(x)
            return
        for l in s.split("\n"):
            l = l.strip()
            if l:
                self.o.append(("" if l.endswith(":") else "    ") + l)
    def ts(self, idx):
        if self.opt.pts and idx >= 9:
            self.seen = getattr(self, "seen", set())
            if idx in self.seen: return
            self.seen.add(idx)
        if self.opt.ts:
            self(f"s_memrealtime s[{64+2*idx}:{65+2*idx}]" if self.opt.ts == 2 else f"s_memtime s[{64+2*idx}:{65+2*idx}]")
    def ts_store(self, widx):
        if not self.opt.ts: return
        self("s_waitcnt vmcnt(0) lgkmcnt(0)")
        if self.opt.probe:
            if widx == 0:
                i = self.opt.probe
                self(f"s_sub_u32 s40, s{64+2*i}, s64\ns_lshl_b32 s40, s40, 3")
                self("L_probe:\ns_sleep 8\ns_memrealtime s[42:43]\ns_waitcnt lgkmcnt(0)\ns_sub_u32 s41, s42, s64\ns_cmp_lt_u32 s41, s40\ns_cbranch_scc1 L_probe")
            return
        if self.opt.tsout:
            self("s_mov_b32 s28, s10\ns_mov_b32 s29, s11\ns_mov_b32 s30, 0x300000\ns_mov_b32 s31, 0x20000")
            self("s_lshl_b32 s42, s2, 3\ns_add_u32 s42, s42, s18\ns_lshl_b32 s42, s42, 6")
            for i in range(1, NTS):
                self(f"s_sub_u32 s{64+2*i}, s{64+2*i}, s64")
            self("v_mov_b32 v1, 0")
            for i in range(NTS):
                self(f"v_writelane_b32 v1, s{64+2*i}, {i}")
            self("v_and_b32 v1, 0x3fff, v1")
            self("v_lshrrev_b32 v2, 6, v1\nv_and_b32 v3, 63, v1\nv_cvt_f32_u32 v2, v2\nv_cvt_f32_u32 v3, v3\nv_cvt_pk_bf16_f32 v2, v2, v3")
            self("v_mbcnt_lo_u32_b32 v4, -1, 0\nv_lshlrev_b32 v4, 2, v4")
            self("s_mov_b64 exec, 0xffff")
            self("buffer_store_dword v2, v4, s[28:31], s42 offen")
            return
        self("s_mov_b32 s28, s14\ns_mov_b32 s29, s15\ns_mov_b32 s30, 0x10000000\ns_mov_b32 s31, 0x20000")
        self("s_lshl_b32 s42, s2, 3")
        self("s_add_u32 s42, s42, s18")
        self("s_lshl_b32 s42, s42, 6")
        self(f"s_add_u32 s42, s42, {WS_TS}")
        for i in range(NTS):
            self(f"v_mov_b32 v1, s{64+2*i}")
            self(f"buffer_store_dword v1, off, s[28:31], s42 offset:{4*i}")
            self("s_nop 1")


def xlane(g, a, t, op):
    g(f"v_mov_b32 v{t}, v{a}")
    g("s_nop 1")
    g(f"v_permlane32_swap_b32 v{a}, v{t}")
    g("s_nop 1")
    g(f"{op} v{a}, v{a}, v{t}")
    g(f"v_mov_b32 v{t}, v{a}")
    g("s_nop 1")
    g(f"v_permlane16_swap_b32 v{a}, v{t}")
    g("s_nop 1")
    g(f"{op} v{a}, v{a}, v{t}")


def xlane3(g, regs, tmps, op):
    for sw in ("v_permlane32_swap_b32", "v_permlane16_swap_b32"):
        for a, t in zip(regs, tmps): g(f"v_mov_b32 v{t}, v{a}")
        g("s_nop 0")
        for a, t in zip(regs, tmps): g(f"{sw} v{a}, v{t}")
        g("s_nop 0")
        for a, t in zip(regs, tmps): g(f"{op} v{a}, v{a}, v{t}")


def slow_path(g, opt):
    g("L_slow:")
    g("s_lshl_b32 s38, s16, 19")
    g("s_lshl_b32 s39, s17, 17")
    g("s_add_u32 s38, s38, s39")
    g("s_add_u32 s20, s6, s38\ns_addc_u32 s21, s7, 0\ns_mov_b32 s22, 0x20000\ns_mov_b32 s23, 0x20000")
    g("s_add_u32 s96, s8, s38\ns_addc_u32 s97, s9, 0\ns_mov_b32 s98, 0x20000\ns_mov_b32 s99, 0x20000")
    g("s_movk_i32 s38, 0x1000\ns_movk_i32 s39, 0x2000")
    g(f"v_mbcnt_lo_u32_b32 v{TMP2}, -1, 0")
    g(f"v_mbcnt_hi_u32_b32 v{TMP2}, -1, v{TMP2}")
    addr_setup(g, TMP2, 96)
    g("s_cmp_eq_u32 s19, 3\ns_cselect_b32 s42, 8, s19")
    g(f"s_mul_i32 s42, s42, {SLOT}")
    g(f"v_add_u32 v{KADDR}, s42, v{KADDR}")
    g(f"v_add_u32 v{VADDR}, s42, v{VADDR}")
    g(f"v_lshlrev_b32 v{TMP2}, 4, v{TMP2}")
    g("s_lshl_b32 s43, s17, 6")
    g(f"v_xor_b32 v{TMP3}, s43, v{TMP2}")
    for i in range(96): g(f"v_mov_b32 v{i}, 0")
    for i in range(6): g(f"v_mov_b32 v{L0+i}, 0")
    for b in range(3): g(f"v_mov_b32 v{C0+4*b}, 0x7f000000")
    g("s_mov_b32 s44, 0")
    g("L_slow_loop:")
    g("s_mov_b32 s45, s44")
    g("s_mov_b32 s46, s42")
    g("L_slow_ld:")
    g("s_mov_b32 m0, s46")
    g(f"s_add_u32 s47, s46, {TILE}")
    g(f"buffer_load_dwordx4 v{TMP2}, s[20:23], s45 offen lds")
    g("s_mov_b32 m0, s47")
    g(f"s_add_u32 s46, s46, {PIECE}")
    g(f"buffer_load_dwordx4 v{TMP3}, s[96:99], s45 offen lds")
    g("s_add_u32 s45, s45, 1024")
    g("s_and_b32 s47, s45, 0x1fff")
    g("s_cbranch_scc1 L_slow_ld")
    g("s_waitcnt vmcnt(0)")
    for i in range(8): g(kread(i, 0))
    for r in range(16): g(vread(r, 0))
    g("s_waitcnt lgkmcnt(0)")
    for b in range(3):
        c = C0 + 4 * b
        s = lambda i: f"v{S(0, i)}"
        for kb in range(2):
            for st in range(4):
                cc = "0" if st == 0 else Sq(0, kb)
                g(f"v_mfma_f32_16x16x32_bf16 {Sq(0,kb)}, {Ka(kb,st)}, {Qa(b,st)}, {cc}")
        g("s_nop 7")
        g(f"v_max3_f32 v{TMP0}, {s(0)}, {s(1)}, {s(2)}")
        g(f"v_max3_f32 v{TMP0}, v{TMP0}, {s(3)}, {s(4)}")
        g(f"v_max3_f32 v{TMP0}, v{TMP0}, {s(5)}, {s(6)}")
        g(f"v_max3_f32 v{TMP0}, v{TMP0}, {s(7)}, -v{c}")
        xlane(g, TMP0, TMP1, "v_max_f32")
        g(f"v_add_f32 v{TMP1}, v{c}, v{TMP0}")
        g(f"v_exp_f32 v{TMP1}, -v{TMP1}")
        g(f"v_sub_f32 v{c}, 0, v{TMP0}")
        for i in range(8): g(f"v_sub_f32 {s(i)}, {s(i)}, v{TMP0}")
        for i in range(8): g(f"v_exp_f32 {s(i)}, {s(i)}")
        g(f"v_mul_f32 v{L0+2*b}, v{L0+2*b}, v{TMP1}")
        for db in range(8):
            for r in range(4): g(f"v_mul_f32 v{O(db,b,r)}, v{O(db,b,r)}, v{TMP1}")
        for i in range(4): g(f"v_cvt_pk_bf16_f32 v{P(0,i)}, {s(2*i)}, {s(2*i+1)}")
        for i in range(8): g(f"v_add_f32 v{L0+2*b}, v{L0+2*b}, {s(i)}")
        for db in range(8):
            g(f"v_mfma_f32_16x16x32_bf16 {Oq(db,b)}, {Va(db)}, {Pq(0)}, {Oq(db,b)}")
    g("s_add_u32 s44, s44, 0x2000")
    g("s_cmp_lt_u32 s44, 0x20000")
    g("s_cbranch_scc1 L_slow_loop")
    g("s_nop 7")
    xlane3(g, [L0, L0 + 2, L0 + 4], [TMP0, TMP1, TMP2], "v_add_f32")
    g(f"v_mbcnt_lo_u32_b32 v{TMP3}, -1, 0")
    g(f"v_mbcnt_hi_u32_b32 v{TMP3}, -1, v{TMP3}")
    g(f"v_lshlrev_b32 v{TMP3}, 4, v{TMP3}")
    g(f"v_and_b32 v{TMP2}, 0xf0, v{TMP3}")
    g(f"v_mov_b32 v{TMP0}, 0")
    g(f"v_mov_b32 v100, v{C0}\nv_mov_b32 v101, v{C0+4}\nv_mov_b32 v102, v{C0+8}\nv_mov_b32 v103, 0")
    g(f"buffer_store_dwordx4 v[100:103], v{TMP2}, s[28:31], s59 offen offset:256 sc1")
    g(f"v_mov_b32 v96, v{L0}\nv_mov_b32 v97, v{L0+2}\nv_mov_b32 v98, v{L0+4}\nv_mov_b32 v99, 1")
    g(f"buffer_store_dwordx4 v[96:99], v{TMP2}, s[28:31], s59 offen sc1")
    for b in range(3):
        for x in range(1, 4):
            g(pack_ops(x, b))
            g(pay_store(x, b, opt))
    g("s_branch L_sent")


def pack_ops(x, b):
    o, p = O(2 * x, b), O(2 * x + 1, b)
    return [f"v_cvt_pk_bf16_f32 v{o}, v{o}, v{o+1}", f"v_cvt_pk_bf16_f32 v{o+1}, v{o+2}, v{o+3}",
            f"v_cvt_pk_bf16_f32 v{o+2}, v{p}, v{p+1}", f"v_cvt_pk_bf16_f32 v{o+3}, v{p+2}, v{p+3}"]

def pay_store(x, b, opt, pol=None):
    if pol is None and (opt.sc1b >> b) & 1: pol = "sc1"
    return f"buffer_store_dwordx4 {Oq(2*x, b)}, v{TMP3}, s[28:31], s{55+x} offen offset:{b*1024} {opt.stpol if pol is None else pol}"


def addr_setup(g, lane, t):
    g(f"v_and_b32 v{t}, 7, v{lane}")
    g(f"v_mul_u32_u24 v{t}, {PIECE}, v{t}")
    g(f"v_bfe_u32 v{t+1}, v{lane}, 3, 1")
    g(f"v_lshlrev_b32 v{t+1}, 8, v{t+1}")
    g(f"v_and_b32 v{t+2}, 48, v{lane}")
    g(f"v_add3_u32 v{KADDR}, v{t}, v{t+1}, v{t+2}")
    g(f"v_bfe_u32 v{t}, v{lane}, 2, 3")
    g(f"v_mul_u32_u24 v{t}, {PIECE}, v{t}")
    g(f"v_lshrrev_b32 v{t+1}, 5, v{lane}")
    g(f"v_lshlrev_b32 v{t+1}, 8, v{t+1}")
    g(f"v_and_b32 v{t+3}, 3, v{lane}")
    g(f"v_lshlrev_b32 v{t+3}, 3, v{t+3}")
    g(f"v_add3_u32 v{VADDR}, v{t}, v{t+1}, v{t+3}")
    g(f"v_add_u32 v{VADDR}, {TILE}, v{VADDR}")


def gen(opt):
    g = G(opt)
    kvpol, qpol = opt.kvpol, opt.qpol
    vpol = opt.vpol if opt.vpol is not None else kvpol
    for l in HEADER.strip().split("\n"): g.o.append("; " + l)
    g.o.append(f"; @launch grid=(256,1,1) block=(512,1,1) lds={LDS_BYTES}")
    g.o.append('.amdgcn_target "amdgcn-amd-amdhsa--gfx950"')
    g.o.append(".text")
    g.o.append(f".globl {KN}")
    g.o.append(".p2align 8")
    g.o.append(f".type {KN},@function")
    g(f"{KN}:")
    g("s_load_dwordx8 s[4:11], s[0:1], 0")
    g("s_load_dwordx4 s[12:15], s[0:1], 32")
    g.ts(0)
    g("s_cmp_ge_u32 s2, 256")
    g("s_cbranch_scc1 L_end")
    g("v_lshrrev_b32 v1, 6, v0")
    g("s_and_b32 s16, s2, 7")
    g("s_lshr_b32 s17, s2, 3")
    g("v_readfirstlane_b32 s18, v1")
    g("s_lshl_b32 s16, s16, 3")
    g("s_lshr_b32 s19, s17, 2")
    g("s_add_u32 s16, s16, s19")
    g("s_and_b32 s17, s17, 3")
    if opt.linear:
        g("s_lshr_b32 s16, s2, 2\ns_and_b32 s17, s2, 3")
    g(f"v_and_b32 v{TMP2}, 63, v0")
    g(f"v_lshlrev_b32 v{TMP3}, 4, v{TMP2}")
    g("s_and_b32 s19, s18, 3")
    g("s_mov_b32 s23, 0x20000")
    g("s_mov_b32 s27, 0x20000")
    g("s_mov_b32 s31, 0x20000")
    def q_issue():
        g("s_waitcnt lgkmcnt(0)")
        g("s_add_u32 s20, s4, s37")
        g("s_addc_u32 s21, s5, 0")
        for i in range(12):
            so = ["0", "s38", "s39"][i // 4]
            g(f"buffer_load_dwordx4 v[{4*i}:{4*i+3}], v{TMP3}, s[20:23], {so} offen offset:{(i%4)*1024} {qpol}")
        g("s_barrier")
    def q_pre():
        g("s_lshl_b32 s36, s16, 2")
        g("s_add_u32 s36, s36, s19")
        g("s_mul_i32 s37, s36, 12288")
        g("s_mov_b32 s22, 12288")
        g("s_movk_i32 s38, 0x1000")
        g("s_movk_i32 s39, 0x2000")
    if opt.qfirst:
        g("s_cmp_ge_u32 s18, 4")
        g("s_cbranch_scc1 L_loader")
        q_pre()
        q_issue()
        g("s_branch L_compute")
        g("L_loader:")
    else:
        g("s_cmp_lt_u32 s18, 4")
        g("s_cbranch_scc1 L_compute")

    g("s_lshl_b32 s36, s19, 11")
    g("s_lshl_b32 s37, s17, 6")
    g(f"v_xor_b32 v2, s37, v{TMP3}")
    g(f"v_add_u32 v1, s36, v{TMP3}")
    g("v_add_u32 v2, s36, v2")
    g("s_lshl_b32 s38, s16, 19")
    g("s_lshl_b32 s39, s17, 17")
    g("s_add_u32 s39, s38, s39")
    g(f"s_mul_i32 s42, s19, {2*PIECE}")
    g("s_mov_b32 s22, 0x20000")
    g("s_mov_b32 s26, 0x20000")
    g("s_movk_i32 s30, 0x1000")
    g(f"s_mul_i32 s44, s19, {RPITCH}")
    g(f"s_add_u32 m0, s44, {RBASE}")
    g(f"v_and_b32 v5, 48, v{TMP2}")
    g(f"v_xor_b32 v5, v5, v{TMP3}")
    g("s_lshl_b32 s45, s19, 10")
    if opt.rot:
        g(f"s_lshr_b32 s41, s2, {opt.rot - 1}\ns_and_b32 s41, s41, 15\ns_lshl_b32 s41, s41, 13")
    else:
        g("s_mov_b32 s41, 0")
    g("s_lshl_b32 s46, s16, 9")
    g("s_lshl_b32 s47, s17, 2")
    g("s_add_u32 s46, s46, s47")
    g(f"s_add_u32 s46, s46, {WS_FLAG}")
    g(f"v_and_b32 v3, 3, v{TMP2}")
    g("v_lshlrev_b32 v3, 7, v3")
    g(f"v_lshlrev_b32 v13, 2, v{TMP2}")
    g("s_mov_b32 s34, 0x10000000")
    g("s_mov_b32 s35, 0x20000")
    g("s_mov_b32 s50, 256")
    g("s_mov_b32 s51, 0x20000")
    if opt.cpf:
        g(f"s_cmp_ge_u32 s2, {8*opt.cpf}")
        g("s_cbranch_scc1 L_nocpf")
        g("s_getpc_b64 s[52:53]")
        g("L_pc:")
        if opt.cpf_from:
            g(f"s_add_u32 s52, s52, {opt.cpf_from}-L_pc")
            g("s_addc_u32 s53, s53, 0")
            g(f"s_mov_b32 s54, L_general-{opt.cpf_from}")
        else:
            g(f"s_sub_u32 s52, s52, L_pc-{KN}")
            g("s_subb_u32 s53, s53, 0")
            g(f"s_mov_b32 s54, L_code_end-{KN}")
        g("s_mov_b32 s55, 0x20000")
        g("s_lshr_b32 s56, s2, 3\ns_lshl_b32 s56, s56, 2\ns_add_u32 s56, s56, s19\ns_lshl_b32 s56, s56, 10")
        g(f"buffer_load_dwordx4 v[20:23], v{TMP3}, s[52:55], s56 offen")
        if opt.cpf2:
            a, b = opt.cpf2.split(":")
            g(f"s_sub_u32 s52, s52, {opt.cpf_from}-{a}")
            g("s_subb_u32 s53, s53, 0")
            g(f"s_mov_b32 s54, {b}-{a}")
            g(f"buffer_load_dwordx4 v[24:27], v{TMP3}, s[52:55], s56 offen")
        g("L_nocpf:")
    g("s_waitcnt lgkmcnt(0)")
    g("s_add_u32 s28, s6, s38")
    g("s_addc_u32 s29, s7, 0")
    g("buffer_load_dwordx4 v5, s[28:31], s45 offen lds")
    g(f"s_add_u32 m0, s42, {7*SLOT}")
    g("s_add_u32 s20, s6, s39")
    g("s_addc_u32 s21, s7, 0")
    g(f"buffer_load_dwordx4 v1, s[20:23], s41 offen {kvpol} lds")
    g(f"s_add_u32 m0, s42, {7*SLOT+32}")
    g("s_add_u32 s24, s8, s39")
    g("s_addc_u32 s25, s9, 0")
    g(f"buffer_load_dwordx4 v1, s[20:23], s41 offen offset:1024 {kvpol} lds")
    g("s_mov_b32 s32, s14")
    g("s_mov_b32 s33, s15")
    g("s_mov_b32 s48, s12")
    g("s_mov_b32 s49, s13")
    if opt.hs == "loader":
        g("s_cmp_lg_u32 s19, 0")
        g("s_cbranch_scc1 L_nohs1")
        g(f"buffer_load_dword v4, v3, s[32:35], s46 offen {opt.stalepol}")
        g("L_nohs1:")
    g("s_barrier")
    g.ts(1)
    def hs2():
        if opt.hs != "loader": return
        g("s_cmp_lg_u32 s19, 0")
        g("s_cbranch_scc1 L_nohs2")
        g("v_and_b32 v4, 1, v4")
        g("v_cmp_eq_u32 vcc, 0, v4")
        g("s_getreg_b32 s46, hwreg(HW_REG_XCC_ID)")
        g("s_and_b32 s46, s46, 7")
        g("s_lshl_b32 s46, s46, 4")
        g("s_and_b32 s47, vcc_lo, 15")
        g("s_or_b32 s46, s46, s47")
        g("s_or_b32 s46, s46, 0x80")
        if opt.hsbyte:
            g("v_mov_b32 v4, s46")
            g("s_lshl_b32 s47, s16, 2\ns_add_u32 s47, s47, s17")
            g("s_mov_b64 exec, 1")
            g("buffer_store_byte v4, off, s[48:51], s47 sc1")
            g("s_mov_b64 exec, -1")
        else:
            g("s_lshl_b32 s47, s17, 3")
            g("s_lshl_b32 s46, s46, s47")
            g("v_mov_b32 v4, s46")
            g("s_lshl_b32 s47, s16, 2")
            g("s_mov_b64 exec, 1")
            g("buffer_atomic_or v4, off, s[48:51], s47 sc1")
            g("s_mov_b64 exec, -1")
        g("L_nohs2:")
    def pair(u, mid=None):
        slot = (u & 7) * SLOT
        if u < 15:
            g(f"s_add_u32 m0, s42, {slot}")
            g("s_add_u32 s40, s41, 0x2000")
            if opt.rot: g("s_and_b32 s40, s40, 0x1ffff")
        order = opt.suborder
        ld = []
        if u < 15:
            ld.append((slot, f"buffer_load_dwordx4 v1, s[20:23], s40 offen {kvpol} lds"))
            ld.append((slot + 32, f"buffer_load_dwordx4 v1, s[20:23], s40 offen offset:1024 {kvpol} lds"))
        lv = [(slot + TILE, f"buffer_load_dwordx4 v2, s[24:27], s41 offen {vpol} lds"),
              (slot + TILE + 32, f"buffer_load_dwordx4 v2, s[24:27], s41 offen offset:1024 {vpol} lds")]
        ld = lv + ld if order else ld + lv
        for i, (m, ins) in enumerate(ld):
            if mid and i in mid: g("s_barrier")
            if i or order or u == 15:
                g(f"s_add_u32 m0, s42, {m}")
                g("s_nop 0")
            g(ins)
        g("s_mov_b32 s41, s40")
    sched = [int(x) for x in opt.sched.split(",")]
    cnt = [0]
    def tr():
        if not opt.trace: return
        g("s_memrealtime s[60:61]\ns_waitcnt lgkmcnt(0)")
        g(f"v_writelane_b32 v10, s60, {cnt[0]}")
        cnt[0] += 1
    if opt.trace:
        g("s_waitcnt lgkmcnt(0)")
        g("v_writelane_b32 v10, s64, 63")
    issued = [0]
    queue = []
    def issue(n, limit, mid=None):
        for _ in range(n):
            u = issued[0]
            if u >= 16 or u > limit: break
            pair(u, mid); issued[0] += 1
            queue.extend([u] * (4 if u < 15 else 2))
    def wait_for(t):
        n = sum(1 for x in queue if x > t)
        g(f"s_waitcnt vmcnt({n})")
    issue(sched[0], 6)
    tr(); g.ts(2)
    wait_for(-1)
    tr(); g.ts(3)
    g("s_barrier")
    tr()
    issue(sched[1], 6)
    if opt.hs_at < 0: hs2()
    for t in range(16):
        tr()
        assert issued[0] > t
        wait_for(t)
        tr()
        g("s_barrier")
        tr()
        mid = None
        if t < 2 * opt.sub:
            assert sched[min(t + 2, len(sched) - 1)] == 1 and issued[0] < 15
            mid = (2, 3) if t < 2 * opt.sub - 1 else (2,)
        issue(sched[min(t + 2, len(sched) - 1)], t + 7, mid)
        if t == opt.hs_at:
            hs2()
        if opt.prewarm is not None and t == opt.pw_at - 4:
            g("s_lshl_b32 s47, s16, 2")
            g("buffer_load_dword v14, off, s[48:51], s47 sc1")
            queue.append(issued[0] - 1)
        if opt.prewarm is not None and opt.pw_at <= t < opt.pw_at + 3:
            i = t - opt.pw_at
            if i == 0:
                g("v_readfirstlane_b32 s36, v14")
                g("s_lshr_b32 s37, s36, 8\ns_xor_b32 s37, s37, s36\ns_and_b32 s37, s37, 0x00f0f0f0")
                g("s_andn2_b32 s36, 0x80, s36\ns_or_b32 s37, s37, s36")
                if opt.pw_always: g("s_cmp_eq_u32 s37, 0x12345")
                g("s_cselect_b32 s34, 0, s34")
                g("s_lshl_b32 s36, s16, 2\ns_add_u32 s36, s36, s19\ns_lshl_b32 s36, s36, 2\ns_add_u32 s36, s36, s17")
                g(f"s_lshl_b32 s38, s36, 9\ns_add_u32 s38, s38, {WS_ML}")
                g(f"buffer_load_dword v12, v{TMP2}, s[32:35], s38 offen {opt.prewarm}".replace(f"v{TMP2},", "v13,"))
                queue.append(99)
            g(f"s_xor_b32 s37, s36, {i+1}\ns_mul_i32 s37, s37, 9216\ns_add_u32 s37, s37, {i*3072}")
            if opt.pwlite:
                assert opt.sc1b == 1
                if i == 0: g(f"v_and_b32 v16, 31, v{TMP2}\nv_lshlrev_b32 v16, 6, v16")
                g(f"buffer_load_dword v17, v16, s[32:35], s37 offen offset:1024 {opt.prewarm}")
                queue.append(99)
            else:
                for k in range(3):
                    if (opt.sc1b >> k) & 1: continue
                    g(f"buffer_load_dwordx4 v[{16+4*k}:{19+4*k}], v{TMP3}, s[32:35], s37 offen offset:{k*1024} {opt.prewarm}")
                    queue.append(99)
    if opt.trace:
        g("s_mov_b32 s28, s14\ns_mov_b32 s29, s15\ns_mov_b32 s30, 0x10000000\ns_mov_b32 s31, 0x20000")
        g("s_lshl_b32 s42, s2, 2\ns_add_u32 s42, s42, s19\ns_lshl_b32 s42, s42, 8")
        g(f"s_add_u32 s42, s42, {WS_TS + (1<<20)}")
        g(f"v_lshrrev_b32 v11, 2, v{TMP3}")
        g("buffer_store_dword v10, v11, s[28:31], s42 offen")
    if opt.lpf:
        g("s_sub_u32 s37, s37, 9216\ns_add_u32 s38, s37, 3072\ns_add_u32 s39, s37, 6144")
        for i, pt in enumerate(opt.lpf.split(",")):
            g("s_barrier")
            for k in ([i] if len(opt.lpf.split(",")) > 1 else [0, 1]):
                for x in range(3):
                    g(f"buffer_load_dwordx4 v[{16+4*x}:{19+4*x}], v{TMP3}, s[32:35], s{37+x} offen offset:{k*1024}")
    if opt.wb:
        g(f"s_lshr_b32 s36, s2, 3\ns_and_b32 s36, s36, {opt.wb - 1}\ns_or_b32 s36, s36, s19")
        g("s_cbranch_scc1 L_nowb")
        g("s_barrier")
        g("buffer_wbl2 sc1")
        g("L_nowb:")
    g.ts_store(1)
    g("s_endpgm")

    g("L_compute:")
    if not opt.qfirst: q_pre()
    def setup():
        addr_setup(g, TMP2, 100)
        g(f"s_mul_i32 s42, s19, {QWAVE}")
        g(f"s_add_u32 s42, s42, {QBASE}")
        g(f"v_lshrrev_b32 v103, 4, v{TMP2}")
        g(f"v_mul_u32_u24 v105, {QPITCH}, v103")
        g(f"v_and_b32 v107, 15, v{TMP2}")
        g("v_lshlrev_b32 v108, 4, v107")
        g("v_add3_u32 v105, v105, v108, s42")
        g(f"v_mul_u32_u24 v106, {QPITCH}, v107")
        g("v_add3_u32 v106, v106, v102, s42")
        g(f"v_bfe_u32 v107, v{TMP2}, 2, 2")
        g(f"v_mul_u32_u24 v107, {RPITCH}, v107")
        g(f"v_and_b32 v109, 3, v{TMP2}")
        g("v_xor_b32 v110, v109, v103")
        g("v_lshlrev_b32 v110, 4, v110")
        g("v_lshlrev_b32 v109, 8, v109")
        g("v_add3_u32 v107, v107, v109, v110")
        g(f"v_add_u32 v107, {RBASE}, v107")
        g(f"v_and_b32 v111, 3, v{TMP2}")
        g("v_lshlrev_b32 v111, 7, v111")
        g("s_lshl_b32 s46, s16, 9\ns_lshl_b32 s47, s17, 2\ns_add_u32 s46, s46, s47")
        g(f"s_add_u32 s47, s46, {WS_FLAG}")
        g("s_cmp_eq_u32 s19, 0\ns_cselect_b32 s63, 2, 99")
        g(f"v_mov_b32 v{TMP2}, v108")
        for i in range(48, 96): g(f"v_mov_b32 v{i}, 0")
        for i in range(6): g(f"v_mov_b32 v{L0+i}, 0")
        g(f"s_mov_b32 s52, 0x{C_SCALE:08x}")
        g(f"s_mov_b32 s53, 0x{C_SCALE:08x}")
        g("s_mov_b32 s51, 0xffff0000")
        g(f"v_add_u32 v{TMP0}, {7*SLOT}, v{KADDR}")
        g(f"s_mov_b32 s54, {2*SLOT}")
        g("s_mov_b32 s44, 0")
        if opt.thr: g("s_mov_b32 s70, 0\ns_mov_b32 s71, 0")
        g("s_lshl_b32 s40, s36, 2")
        for x in range(1, 4):
            g(f"s_xor_b32 s42, s17, {x}")
            g("s_add_u32 s42, s42, s40")
            g(f"s_mul_i32 s{55+x}, s42, 9216")
            if x > 1: g(f"s_add_u32 s{55+x}, s{55+x}, {(x-1)*3072}")
        g("s_add_u32 s42, s40, s17")
        g("s_lshl_b32 s59, s42, 9")
        g(f"s_add_u32 s59, s59, {WS_ML}")
        g("s_mul_i32 s60, s42, 9216")
        g("s_lshl_b32 s61, s36, 7")
        g(f"s_add_u32 s61, s61, {WS_FLAG}")
        g("s_lshl_b32 s62, s16, 2")
        g("s_mov_b32 s26, 12288")
        g("s_mov_b32 s30, 0x10000000")
        g("s_mov_b32 s34, 256")
        g("s_mov_b32 s35, 0x20000")
        g("s_mov_b32 s48, 0x3f80")
        g("s_mov_b32 s49, 0x3f800000")
    setup()
    g.ts(2)
    if not opt.qfirst: q_issue()
    g.ts(1)
    if opt.tsout:
        g("s_add_u32 s24, s14, s37\ns_addc_u32 s25, s15, 0\ns_add_u32 s24, s24, 0x2800000\ns_addc_u32 s25, s25, 0")
    else:
        g("s_add_u32 s24, s10, s37")
        g("s_addc_u32 s25, s11, 0")
    g("s_mov_b32 s28, s14")
    g("s_mov_b32 s29, s15")
    g("s_mov_b32 s32, s12")
    g("s_mov_b32 s33, s13")
    QX = 0
    if opt.hs == "loop":
        g(f"buffer_load_dword v{TMP1}, v111, s[28:31], s47 offen {opt.stalepol}")
        QX = 1
    def qscale_ops(b):
        out = []
        for i in range(4):
            li = b * 4 + i
            grp = [f"s_waitcnt vmcnt({11-li+QX})"]
            for r in range(4): grp += [f"v_lshlrev_b32 v{112+2*r}, 16, v{4*li+r}", f"v_and_b32 v{113+2*r}, s51, v{4*li+r}"]
            for r in range(4): grp.append(f"v_pk_mul_f32 v[{112+2*r}:{113+2*r}], v[{112+2*r}:{113+2*r}], s[52:53]")
            for r in range(4): grp.append(f"v_cvt_pk_bf16_f32 v{4*li+r}, v{112+2*r}, v{113+2*r}")
            grp.append(f"ds_write_b128 v105, v[{4*li}:{4*li+3}] offset:{i*4*QPITCH}")
            out.append(grp)
        out.append([f"ds_read_b128 {Qa(b,s)}, v106 offset:{64*s}" for s in range(4)])
        return out
    def pp_mfma(b, s):
        c = "0" if s == 0 else Cq(b)
        return f"v_mfma_f32_16x16x32_bf16 {Cq(b)}, {Va(s)}, {Qa(b,s)}, {c}"
    for grp in qscale_ops(0): g(grp)
    g.ts(3)
    for grp in qscale_ops(1): g(grp)
    for grp in qscale_ops(2): g(grp)
    zero = [f"v_mov_b32 v{i}, 0" for i in range(48)]
    g(zero[:32])
    if opt.stag:
        g("s_lshr_b32 s40, s2, 3\ns_and_b32 s40, s40, 7")
        g("L_stag:\ns_cmp_eq_u32 s40, 0\ns_cbranch_scc1 L_stagd")
        g(f"s_sleep {opt.stag}\ns_sub_u32 s40, s40, 1\ns_branch L_stag\nL_stagd:")
    g.ts(4)
    g("L_ba:")
    g("s_barrier")
    g.ts(5)
    for s in range(4):
        g(f"ds_read_b128 {Va(s)}, v107 offset:{64*s}")
    k0r = [f"ds_read_b128 {Ka(kb,s)}, v{TMP0} offset:{kb*512 + s*64}" for kb in range(2) for s in range(4)]
    g(k0r[:4])
    g(zero[32:40])
    g("s_waitcnt lgkmcnt(4)")
    if opt.pts: g.ts(9)
    pm = [pp_mfma(b, s) for b in range(3) for s in range(4)]
    qk0 = [m.replace(Cq(0), "0") for m in slot_mfmas(5)[:8]]
    class Lst(list):
        def __call__(self, x): self.append(x)
    red = Lst()
    for b in range(3):
        c = C0 + 4 * b
        red += [f"v_max3_f32 v{c}, v{c}, v{c+1}, v{c+2}", f"v_max_f32 v{c}, v{c}, v{c+3}"]
    xlane3(red, [C0, C0 + 4, C0 + 8], [C0 + 1, C0 + 5, C0 + 9], "v_max_f32")
    for i in range(12):
        g(pm[i])
        if i < 4: g(k0r[4 + i])
        elif i < 8: g(zero[40 + 2 * (i - 4):42 + 2 * (i - 4)])
        elif i >= 10: g(red[2 * (i - 10):2 * (i - 10) + 2])
    if opt.pts: g.ts(10)
    g("s_waitcnt lgkmcnt(0)")
    rest = red[4:]
    for i in range(8):
        g(qk0[i])
        if i == 3: g("s_nop 2")
        if i >= 3: g(rest[(i - 3) * len(rest) // 5:(i - 2) * len(rest) // 5])
    if opt.pts: g.ts(11)
    g("s_barrier")
    if opt.pts: g.ts(12)
    for r in range(8): g(vread(r, 0))
    for i in range(8): g(f"v_sub_f32 v{S(0,i)}, v{S(0,i)}, v{C0}")
    smA = softmax_ops(6, "add")
    neg = []
    for b in (1, 2, 0):
        c = C0 + 4 * b
        for i in (1, 2, 3, 0):
            neg.append(f"v_sub_f32 v{c+i}, 0, v{c}")
    side = [f"v_mov_b32 v108, v{C0}", f"v_mov_b32 v109, v{C0+4}", f"v_mov_b32 v110, v{C0+8}",
            f"buffer_store_dwordx4 v[108:111], v{TMP2}, s[28:31], s59 offen offset:256 sc1"]
    for i in range(8):
        g(smA[8 + i])
        g(neg[i * 12 // 8:(i + 1) * 12 // 8])
    g(side)
    g.ts(6)
    g("s_branch L_k0")
    NT = opt.nt
    niter = 8 - NT // 2 if NT else 8
    slots = loop_body("add", rotated=True, niter=niter, vlast=int(opt.vlast, 0), klast=int(opt.klast, 0))
    for pi, ph in enumerate(opt.phases.split(",")):
        e, run, vl, kl, pad = (ph.split(":") + ["0"])[:5]
        e = min(int(e), niter)
        sl = loop_body("add", rotated=True, niter=e, vlast=int(vl, 16), klast=int(kl, 16), run=int(run), sub=(e <= opt.sub), adapt=((opt.thr, opt.imin) if (opt.thr and pi == 0) else None))
        if int(pad):
            for k in sl:
                sl[k] = sum(([l, f"s_nop {int(pad)-1}"] if l.startswith("v_exp") else [l] for l in sl[k]), [])
        g(f"L_loop{pi}:")
        g(sl[4]); g(sl[-1])
        if pi == 0: g("L_k0:")
        for k in range(4): g(sl[k])
        g(f"s_cbranch_scc1 L_loop{pi}")
    assert e == niter
    g("L_tail:")
    g.ts(7)
    T0 = 16 - NT
    TS = 16 - opt.skew if opt.skew >= 0 else T0
    units = [(t, b) for t in range(TS) for b in range(3)] + [(t, b) for t in range(TS, 16) for b in range(2)] + [(t, 2) for t in range(TS, 16)]
    n0 = 6 * (niter - 1) + 4
    base = (2 * (niter - 1)) & 7
    first, last = {}, {}
    kslot0, vslot0 = base + 1, base + 2
    if NT:
        g(f"v_add_u32 v{KADDR}, {SLOT}, v{KADDR}")
        g(f"v_add_u32 v{VADDR}, {2*SLOT}, v{VADDR}")
    g(f"buffer_load_dword v{TMP0}, off, s[32:35], s62 sc1")
    fin = {b: max(n for n in range(48) if units[n][1] == b) for b in range(3)}
    for b in range(2):
        n = fin[b] + 1
        for x in range(1, 4):
            ops = pack_ops(x, b)
            if n < 47:
                gp = {1: (3, 4), 2: (6, 6), 3: (7, 7)}[x]
                last.setdefault((n, gp[0]), []).extend(ops[:2]); last.setdefault((n, gp[1]), []).extend(ops[2:])
                first.setdefault((n, gp[1] + 1), []).append(pay_store(x, b, opt))
            else:
                last.setdefault((n, 2 * x - 1), []).extend(ops + [pay_store(x, b, opt)])
    lred = Lst()
    for b in range(3): lred(f"v_add_f32 v{96+b}, v{L0+2*b}, v{L0+2*b+1}")
    xlane3(lred, [96, 97, 98], [100, 101, 102], "v_add_f32")
    lred("v_mov_b32 v99, 0")
    lred(f"buffer_store_dwordx4 v[96:99], v{TMP2}, s[28:31], s59 offen {opt.stpol}")
    lred(f"v_add_f32 v{TMP1}, v96, v97")
    lred("s_mov_b32 s50, " + ("0x5f800000" if not opt.force_fb else "0x00000000"))
    lred(f"v_add_f32 v{TMP1}, v{TMP1}, v98")
    lred(f"v_cmp_nlt_f32 vcc, v{TMP1}, s50")
    for i in range(5):
        last.setdefault((47, 8 + i), []).extend(lred[i * len(lred) // 5:(i + 1) * len(lred) // 5])
    last.setdefault((47, 13), []).extend(pack_ops(1, 2) + [pay_store(1, 2, opt)])
    last.setdefault((47, 15), []).extend(pack_ops(2, 2) + [pay_store(2, 2, opt)] + pack_ops(3, 2) + [pay_store(3, 2, opt)])
    last.setdefault((47, 7), []).append("s_nop 0")
    if opt.lpf:
        for pt in opt.lpf.split(","):
            n, gp = pt.split(":")
            first.setdefault((int(n), int(gp)), []).append("s_barrier")
    g(tail_slots(n0, units, kslot0, vslot0, 2 * niter - 1, first, last, pv_last=[2, 3, 4, 5, 6, 7, 0, 1]))
    g.ts(8)
    g("s_cbranch_vccz L_sent")
    g("s_waitcnt vmcnt(0)")
    g("s_branch L_slow")
    g("L_sent:")
    g("s_mov_b32 s47, 0x100000")
    g("s_waitcnt vmcnt(10)")
    g("L_hs:")
    g(f"v_readfirstlane_b32 s44, v{TMP0}")
    g("s_and_b32 s45, s44, 0x80808080")
    g("s_cmp_eq_u32 s45, 0x80808080")
    g("s_cbranch_scc0 L_hs_retry")
    g("L_hs_ok:")
    g("s_lshr_b32 s45, s44, 8")
    g("s_xor_b32 s45, s45, s44")
    g("s_and_b32 s45, s45, 0x00707070")
    if opt.force_slow:
        g("s_mov_b32 s45, 1")
    g(f"v_bfe_u32 v100, v{TMP3}, 4, 2")
    g("v_lshlrev_b32 v101, 3, v100")
    g("v_add_u32 v101, s19, v101")
    g("v_lshrrev_b32 v101, v101, s44")
    g("v_and_b32 v101, 1, v101")
    g("v_lshlrev_b32 v100, 2, v100")
    g("s_lshl_b32 s46, s17, 3")
    g("s_add_u32 s46, s46, s19")
    g("s_lshr_b32 s46, s44, s46")
    g("s_and_b32 s46, s46, 1")
    g("v_mov_b32 v102, s46")
    g("s_lshl_b32 s46, s17, 2")
    g("s_add_u32 s46, s46, s61")
    for x in range(1, 4):
        g(f"s_xor_b32 s{19+x}, s59, {x<<9}")
    g("s_add_u32 s40, s60, 3072\ns_add_u32 s41, s60, 6144")
    g("s_mov_b32 s47, 0x100000")
    g("s_cmp_lg_u32 s45, 0")
    g.ts(9)
    g("s_waitcnt vmcnt(0)")
    g.ts(10)
    g("s_cbranch_scc1 L_xcd_flag")
    g(f"buffer_store_dword v102, off, s[28:31], s46 {opt.flagpol}")
    if opt.wb and opt.wbpos == 0: g("s_barrier")
    g("L_poll:")
    g(f"buffer_load_dword v103, v100, s[28:31], s61 offen {opt.pollpol}")
    g("s_waitcnt vmcnt(0)")
    g("v_and_b32 v103, 1, v103")
    g("v_cmp_ne_u32 vcc, v103, v101")
    g("s_cbranch_vccz L_poll_ok")
    g("s_sub_u32 s47, s47, 1")
    g("s_cbranch_scc0 L_poll")
    g("L_poll_ok:")
    g.ts(11)
    LR = lambda x: 100 + 4 * x
    PR = lambda x, b: 24 + ((x - 1) * 3 + b) * 4
    def inbox_loads(lp):
        for x in range(1, 4):
            g(f"buffer_load_dwordx4 v[{LR(x)}:{LR(x)+3}], v{TMP2}, s[28:31], s{19+x} offen {lp}")
        for b in range(3):
            for x in range(1, 4):
                g(f"buffer_load_dwordx4 v[{PR(x,b)}:{PR(x,b)+3}], v{TMP3}, s[28:31], {['s60','s40','s41'][x-1]} offen offset:{b*1024} {lp}")
    inbox_loads(opt.ldpol)
    if opt.wb and opt.wbpos == 1: g("s_barrier")
    g("L_loaded:")
    g(f"v_bfe_u32 v132, v{TMP3}, 4, 4")
    g("v_lshlrev_b32 v132, 8, v132")
    if opt.out4:
        g(f"v_bfe_u32 v133, v{TMP3}, 8, 1\nv_lshlrev_b32 v133, 5, v133")
        g(f"v_bfe_u32 v134, v{TMP3}, 9, 1\nv_lshl_add_u32 v133, v134, 4, v133")
    else:
        g(f"v_lshrrev_b32 v133, 8, v{TMP3}")
        g("v_lshlrev_b32 v133, 3, v133")
    g("s_lshl_b32 s42, s17, 6")
    g("v_add3_u32 v132, v132, v133, s42")
    g("s_waitcnt vmcnt(9)")
    g.ts(12)
    g(f"v_or3_b32 v99, v99, v{LR(1)+3}, v{LR(2)+3}")
    g(f"v_or_b32 v99, v99, v{LR(3)+3}")
    g("v_cmp_ne_u32 vcc, 0, v99")
    g("s_cbranch_vccnz L_general")
    for x in range(1, 4):
        for b in range(3):
            g(f"v_add_f32 v{96+b}, v{96+b}, v{LR(x)+b}")
    for b in range(3): g(f"v_rcp_f32 v{96+b}, v{96+b}")
    def acc_reg(b, i): return O(i // 4, b, i % 4)
    nst = 1 if opt.out4 else 2
    for b in range(3):
        for x in range(1, 4):
            g(f"s_waitcnt vmcnt({9 - (b*3 + x) + b*nst})")
            if x == 3 and b == 2: g.ts(13)
            for r in range(4):
                src = PR(x, b) + r
                g(f"v_dot2c_f32_bf16 v{acc_reg(b,2*r)}, s48, v{src}")
                g(f"v_dot2c_f32_bf16 v{acc_reg(b,2*r+1)}, s49, v{src}")
        out_store(g, b, 96 + b, opt)
    g("L_done:")
    g.ts(14)
    if opt.ts:
        g("s_waitcnt vmcnt(0)")
        g.ts(15)
    g.ts_store(0)
    g("L_end:")
    g("s_endpgm")
    g("L_hs_retry:")
    g("s_sleep 2")
    g(f"buffer_load_dword v{TMP0}, off, s[32:35], s62 sc1")
    g("s_sub_u32 s47, s47, 1")
    g("s_waitcnt vmcnt(0)")
    g("s_cbranch_scc0 L_hs")
    g("s_branch L_hs_ok")
    g("L_xcd_flag:")
    g(f"buffer_store_dwordx4 v[96:99], v{TMP2}, s[28:31], s59 offen sc1")
    for b in range(3):
        for x in range(1, 4):
            g(pay_store(x, b, opt, "sc1"))
    g("s_waitcnt vmcnt(0)")
    g("buffer_store_dword v102, off, s[28:31], s46 sc1")
    g("L_poll2:")
    g("buffer_load_dword v103, v100, s[28:31], s61 offen sc1")
    g("s_waitcnt vmcnt(0)")
    g("v_and_b32 v103, 1, v103")
    g("v_cmp_ne_u32 vcc, v103, v101")
    g("s_cbranch_vccz L_poll2_ok")
    g("s_sub_u32 s47, s47, 1")
    g("s_cbranch_scc0 L_poll2")
    g("L_poll2_ok:")
    inbox_loads("sc1")
    g("s_branch L_loaded")
    g("L_general:")
    CR = lambda x: 60 + 4 * x
    for x in range(1, 4):
        g(f"buffer_load_dwordx4 v[{CR(x)}:{CR(x)+3}], v{TMP2}, s[28:31], s{19+x} offen offset:256 sc1")
    for b in range(3): g(f"v_mov_b32 v{CR(0)+b}, v{C0+4*b}")
    g("s_waitcnt vmcnt(0)")
    for b in range(3):
        g(f"v_min3_f32 v100, v{CR(0)+b}, v{CR(1)+b}, v{CR(2)+b}")
        g(f"v_min_f32 v100, v100, v{CR(3)+b}")
        for x in range(4): g(f"v_sub_f32 v{CR(x)+b}, v100, v{CR(x)+b}")
        for x in range(4): g(f"v_exp_f32 v{CR(x)+b}, v{CR(x)+b}")
        g("s_nop 0")
        g(f"v_mul_f32 v{96+b}, v{96+b}, v{CR(0)+b}")
        for x in range(1, 4): g(f"v_fmac_f32 v{96+b}, v{CR(x)+b}, v{LR(x)+b}")
    for b in range(3): g(f"v_rcp_f32 v{96+b}, v{96+b}")
    for b in range(3):
        for i in range(8): g(f"v_mul_f32 v{acc_reg(b,i)}, v{acc_reg(b,i)}, v{CR(0)+b}")
        for x in range(1, 4):
            for r in range(4):
                src = PR(x, b) + r
                g(f"v_lshlrev_b32 v116, 16, v{src}")
                g(f"v_and_b32 v117, s51, v{src}")
                g(f"v_fmac_f32 v{acc_reg(b,2*r)}, v116, v{CR(x)+b}")
                g(f"v_fmac_f32 v{acc_reg(b,2*r+1)}, v117, v{CR(x)+b}")
        out_store(g, b, 96 + b, opt)
    g("s_branch L_done")
    g("L_code_end:")
    slow_path(g, opt)
    g.o.append(f""".section .rodata,"a"
.p2align 6
.amdhsa_kernel {KN}
  .amdhsa_next_free_vgpr {NV+NA}
  .amdhsa_next_free_sgpr 102
  .amdhsa_accum_offset {NV}
  .amdhsa_group_segment_fixed_size 0
  .amdhsa_kernarg_size 48
  .amdhsa_user_sgpr_count 2
  .amdhsa_user_sgpr_kernarg_segment_ptr 1
  .amdhsa_system_sgpr_workgroup_id_x 1
.end_amdhsa_kernel""")
    return "\n".join(g.o) + "\n"


def out_store(g, b, rl, opt):
    o, p = O(0, b), O(1, b)
    so = ["0", "s38", "s39"][b]
    for r in range(4): g(f"v_mul_f32 v{o+r}, v{o+r}, v{rl}")
    for r in range(4): g(f"v_mul_f32 v{p+r}, v{p+r}, v{rl}")
    if opt.out4:
        g(f"v_cvt_pk_bf16_f32 v{o}, v{o}, v{o+1}")
        g(f"v_cvt_pk_bf16_f32 v{o+1}, v{o+2}, v{o+3}")
        g(f"v_cvt_pk_bf16_f32 v{o+2}, v{p}, v{p+1}")
        g(f"v_cvt_pk_bf16_f32 v{o+3}, v{p+2}, v{p+3}")
        g("s_nop 0")
        g(f"v_permlane16_swap_b32 v{o}, v{o+2}")
        g(f"v_permlane16_swap_b32 v{o+1}, v{o+3}")
        g("s_nop 0")
        g(f"buffer_store_dwordx4 v[{o}:{o+3}], v132, s[24:27], {so} offen {opt.outpol}")
        return
    for h in range(2):
        o = O(h, b)
        g(f"v_cvt_pk_bf16_f32 v{o}, v{o}, v{o+1}")
        g(f"v_cvt_pk_bf16_f32 v{o+1}, v{o+2}, v{o+3}")
        g(f"buffer_store_dwordx2 v[{o}:{o+1}], v132, s[24:27], {so} offen offset:{32*h} {opt.outpol}")


if __name__ == "__main__":
    ap = argparse.ArgumentParser()
    ap.add_argument("-o", default="standalone__gqa_softmax__near_ridge.s")
    ap.add_argument("--kvpol", default="nt")
    ap.add_argument("--qpol", default="nt")
    ap.add_argument("--stpol", default="")
    ap.add_argument("--ldpol", default="nt")
    ap.add_argument("--outpol", default="sc1")
    ap.add_argument("--ts", type=int, default=0)
    ap.add_argument("--cpf2", default="")
    ap.add_argument("--hsbyte", type=int, default=0)
    ap.add_argument("--thr", type=int, default=0)
    ap.add_argument("--imin", type=int, default=3)
    ap.add_argument("--pwlite", type=int, default=0)
    ap.add_argument("--sub", type=int, default=0)
    ap.add_argument("--suborder", type=int, default=0)
    ap.add_argument("--qfirst", type=int, default=1)
    ap.add_argument("--stag", type=int, default=0)
    ap.add_argument("--lpf", default="")
    ap.add_argument("--sc1b", type=int, default=1)
    ap.add_argument("--wb", type=int, default=0)
    ap.add_argument("--wbpos", type=int, default=0)
    ap.add_argument("--pw_always", type=int, default=0)
    ap.add_argument("--phases", default="5:121121:ffff:ff,8:1:0:0")
    ap.add_argument("--cpf_from", default="L_loop1")
    ap.add_argument("--cpf", type=int, default=2)
    ap.add_argument("--skew", type=int, default=-1)
    ap.add_argument("--vlast", default="0")
    ap.add_argument("--klast", default="0")
    ap.add_argument("--split", type=int, default=0)
    ap.add_argument("--pad2", type=int, default=0)
    ap.add_argument("--ramp", type=int, default=0)
    ap.add_argument("--rampgap", type=int, default=0)
    ap.add_argument("--pad", type=int, default=0)
    ap.add_argument("--out4", type=int, default=1)
    ap.add_argument("--pw_at", type=int, default=12)
    ap.add_argument("--nt", type=int, default=0)
    ap.add_argument("--sched", default="2,1,1")
    ap.add_argument("--rot", type=int, default=0)
    ap.add_argument("--hs_at", type=int, default=-1)
    ap.add_argument("--probe", type=int, default=0)
    ap.add_argument("--vpol", default=None)
    ap.add_argument("--hs", default="loader")
    ap.add_argument("--setup", default="early")
    ap.add_argument("--tsout", type=int, default=0)
    ap.add_argument("--pts", type=int, default=0)
    ap.add_argument("--exp_x1", type=int, default=0)
    ap.add_argument("--exp_2x", type=int, default=0)
    ap.add_argument("--prewarm", default="")
    ap.add_argument("--linear", type=int, default=0)
    ap.add_argument("--trace", type=int, default=0)
    ap.add_argument("--pollpol", default="nt")
    ap.add_argument("--stalepol", default="")
    ap.add_argument("--dot", type=int, default=1)
    ap.add_argument("--flagpol", default="")
    ap.add_argument("--depth", type=int, default=3)
    ap.add_argument("--init_pairs", type=int, default=2)
    ap.add_argument("--force_slow", type=int, default=0)
    ap.add_argument("--force_fb", type=int, default=0)
    opt = ap.parse_args()
    open(opt.o, "w").write(gen(opt))
```

```python
import sys, argparse, struct, math
from body import *

KN = "standalone__gqa_softmax__near_ridge_kernel"
NSLOT = 8
RING = NSLOT * SLOT
QBASE = RING
QPITCH = 288
QWAVE = 16 * QPITCH
RBASE = QBASE + 4 * QWAVE
RPITCH = 1088
LDS_BYTES = RBASE + 4 * RPITCH

WS_ML = 16 << 20
WS_FLAG = 24 << 20
WS_TS = 32 << 20
C_SCALE = struct.unpack("<I", struct.pack("<f", math.log2(math.e) / math.sqrt(128.0)))[0]
NTS = 16


HEADER = """
GQA attention (B8 Hq32 Hkv8 Sq48 Sk2048 D128, bf16), hand-scheduled via gen/gen.py + gen/body.py.
kernarg: q, k, v, out, debug, ws.  256 workgroups = 64 (batch, kv head) pairs x 4 key chunks of 512 keys.
Waves 0-3 compute (one q head = 48 rows each, S^T = K Q^T and O^T = V^T P^T with 16x16x32 MFMA),
waves 4-7 stream K/V tiles into an 8-slot LDS ring with LDS-DMA.
Softmax reference: row max over the first 16 keys of the pair (same in all 4 chunks); the row sums are
checked at the end and a wave whose reference was unsafe recomputes its chunk with the true online max.
The 4 chunk partials are exchanged through ws (flags tagged against stale contents, hand-shake in debug;
device-scope accesses whenever the four workgroups are not known to share an XCD) and combined in place.
"""


class G:
    def __init__(self, opt):
        self.o = []
        self.opt = opt
    def __call__(self, s):
        if isinstance(s, list):
            for x in s: self(x)
            return
        for l in s.split("\n"):
            l = l.strip()
            if l:
                self.o.append(("" if l.endswith(":") else "    ") + l)
    def ts(self, idx):
        if self.opt.pts and idx >= 9:
            self.seen = getattr(self, "seen", set())
            if idx in self.seen: return
            self.seen.add(idx)
        if self.opt.ts:
            self(f"s_memrealtime s[{64+2*idx}:{65+2*idx}]" if self.opt.ts == 2 else f"s_memtime s[{64+2*idx}:{65+2*idx}]")
    def ts_store(self, widx):
        if not self.opt.ts: return
        self("s_waitcnt vmcnt(0) lgkmcnt(0)")
        if self.opt.probe:
            if widx == 0:
                i = self.opt.probe
                self(f"s_sub_u32 s40, s{64+2*i}, s64\ns_lshl_b32 s40, s40, 3")
                self("L_probe:\ns_sleep 8\ns_memrealtime s[42:43]\ns_waitcnt lgkmcnt(0)\ns_sub_u32 s41, s42, s64\ns_cmp_lt_u32 s41, s40\ns_cbranch_scc1 L_probe")
            return
        if self.opt.tsout:
            self("s_mov_b32 s28, s10\ns_mov_b32 s29, s11\ns_mov_b32 s30, 0x300000\ns_mov_b32 s31, 0x20000")
            self("s_lshl_b32 s42, s2, 3\ns_add_u32 s42, s42, s18\ns_lshl_b32 s42, s42, 6")
            for i in range(1, NTS):
                self(f"s_sub_u32 s{64+2*i}, s{64+2*i}, s64")
            self("v_mov_b32 v1, 0")
            for i in range(NTS):
                self(f"v_writelane_b32 v1, s{64+2*i}, {i}")
            self("v_and_b32 v1, 0x3fff, v1")
            self("v_lshrrev_b32 v2, 6, v1\nv_and_b32 v3, 63, v1\nv_cvt_f32_u32 v2, v2\nv_cvt_f32_u32 v3, v3\nv_cvt_pk_bf16_f32 v2, v2, v3")
            self("v_mbcnt_lo_u32_b32 v4, -1, 0\nv_lshlrev_b32 v4, 2, v4")
            self("s_mov_b64 exec, 0xffff")
            self("buffer_store_dword v2, v4, s[28:31], s42 offen")
            return
        self("s_mov_b32 s28, s14\ns_mov_b32 s29, s15\ns_mov_b32 s30, 0x10000000\ns_mov_b32 s31, 0x20000")
        self("s_lshl_b32 s42, s2, 3")
        self("s_add_u32 s42, s42, s18")
        self("s_lshl_b32 s42, s42, 6")
        self(f"s_add_u32 s42, s42, {WS_TS}")
        for i in range(NTS):
            self(f"v_mov_b32 v1, s{64+2*i}")
            self(f"buffer_store_dword v1, off, s[28:31], s42 offset:{4*i}")
            self("s_nop 1")


def xlane(g, a, t, op):
    g(f"v_mov_b32 v{t}, v{a}")
    g("s_nop 1")
    g(f"v_permlane32_swap_b32 v{a}, v{t}")
    g("s_nop 1")
    g(f"{op} v{a}, v{a}, v{t}")
    g(f"v_mov_b32 v{t}, v{a}")
    g("s_nop 1")
    g(f"v_permlane16_swap_b32 v{a}, v{t}")
    g("s_nop 1")
    g(f"{op} v{a}, v{a}, v{t}")


def xlane3(g, regs, tmps, op):
    for sw in ("v_permlane32_swap_b32", "v_permlane16_swap_b32"):
        for a, t in zip(regs, tmps): g(f"v_mov_b32 v{t}, v{a}")
        g("s_nop 0")
        for a, t in zip(regs, tmps): g(f"{sw} v{a}, v{t}")
        g("s_nop 0")
        for a, t in zip(regs, tmps): g(f"{op} v{a}, v{a}, v{t}")


def slow_path(g, opt):
    g("L_slow:")
    g("s_lshl_b32 s38, s16, 19")
    g("s_lshl_b32 s39, s17, 17")
    g("s_add_u32 s38, s38, s39")
    g("s_add_u32 s20, s6, s38\ns_addc_u32 s21, s7, 0\ns_mov_b32 s22, 0x20000\ns_mov_b32 s23, 0x20000")
    g("s_add_u32 s96, s8, s38\ns_addc_u32 s97, s9, 0\ns_mov_b32 s98, 0x20000\ns_mov_b32 s99, 0x20000")
    g("s_movk_i32 s38, 0x1000\ns_movk_i32 s39, 0x2000")
    g(f"v_mbcnt_lo_u32_b32 v{TMP2}, -1, 0")
    g(f"v_mbcnt_hi_u32_b32 v{TMP2}, -1, v{TMP2}")
    addr_setup(g, TMP2, 96)
    g("s_cmp_eq_u32 s19, 3\ns_cselect_b32 s42, 8, s19")
    g(f"s_mul_i32 s42, s42, {SLOT}")
    g(f"v_add_u32 v{KADDR}, s42, v{KADDR}")
    g(f"v_add_u32 v{VADDR}, s42, v{VADDR}")
    g(f"v_lshlrev_b32 v{TMP2}, 4, v{TMP2}")
    g("s_lshl_b32 s43, s17, 6")
    g(f"v_xor_b32 v{TMP3}, s43, v{TMP2}")
    for i in range(96): g(f"v_mov_b32 v{i}, 0")
    for i in range(6): g(f"v_mov_b32 v{L0+i}, 0")
    for b in range(3): g(f"v_mov_b32 v{C0+4*b}, 0x7f000000")
    g("s_mov_b32 s44, 0")
    g("L_slow_loop:")
    g("s_mov_b32 s45, s44")
    g("s_mov_b32 s46, s42")
    g("L_slow_ld:")
    g("s_mov_b32 m0, s46")
    g(f"s_add_u32 s47, s46, {TILE}")
    g(f"buffer_load_dwordx4 v{TMP2}, s[20:23], s45 offen lds")
    g("s_mov_b32 m0, s47")
    g(f"s_add_u32 s46, s46, {PIECE}")
    g(f"buffer_load_dwordx4 v{TMP3}, s[96:99], s45 offen lds")
    g("s_add_u32 s45, s45, 1024")
    g("s_and_b32 s47, s45, 0x1fff")
    g("s_cbranch_scc1 L_slow_ld")
    g("s_waitcnt vmcnt(0)")
    for i in range(8): g(kread(i, 0))
    for r in range(16): g(vread(r, 0))
    g("s_waitcnt lgkmcnt(0)")
    for b in range(3):
        c = C0 + 4 * b
        s = lambda i: f"v{S(0, i)}"
        for kb in range(2):
            for st in range(4):
                cc = "0" if st == 0 else Sq(0, kb)
                g(f"v_mfma_f32_16x16x32_bf16 {Sq(0,kb)}, {Ka(kb,st)}, {Qa(b,st)}, {cc}")
        g("s_nop 7")
        g(f"v_max3_f32 v{TMP0}, {s(0)}, {s(1)}, {s(2)}")
        g(f"v_max3_f32 v{TMP0}, v{TMP0}, {s(3)}, {s(4)}")
        g(f"v_max3_f32 v{TMP0}, v{TMP0}, {s(5)}, {s(6)}")
        g(f"v_max3_f32 v{TMP0}, v{TMP0}, {s(7)}, -v{c}")
        xlane(g, TMP0, TMP1, "v_max_f32")
        g(f"v_add_f32 v{TMP1}, v{c}, v{TMP0}")
        g(f"v_exp_f32 v{TMP1}, -v{TMP1}")
        g(f"v_sub_f32 v{c}, 0, v{TMP0}")
        for i in range(8): g(f"v_sub_f32 {s(i)}, {s(i)}, v{TMP0}")
        for i in range(8): g(f"v_exp_f32 {s(i)}, {s(i)}")
        g(f"v_mul_f32 v{L0+2*b}, v{L0+2*b}, v{TMP1}")
        for db in range(8):
            for r in range(4): g(f"v_mul_f32 v{O(db,b,r)}, v{O(db,b,r)}, v{TMP1}")
        for i in range(4): g(f"v_cvt_pk_bf16_f32 v{P(0,i)}, {s(2*i)}, {s(2*i+1)}")
        for i in range(8): g(f"v_add_f32 v{L0+2*b}, v{L0+2*b}, {s(i)}")
        for db in range(8):
            g(f"v_mfma_f32_16x16x32_bf16 {Oq(db,b)}, {Va(db)}, {Pq(0)}, {Oq(db,b)}")
    g("s_add_u32 s44, s44, 0x2000")
    g("s_cmp_lt_u32 s44, 0x20000")
    g("s_cbranch_scc1 L_slow_loop")
    g("s_nop 7")
    xlane3(g, [L0, L0 + 2, L0 + 4], [TMP0, TMP1, TMP2], "v_add_f32")
    g(f"v_mbcnt_lo_u32_b32 v{TMP3}, -1, 0")
    g(f"v_mbcnt_hi_u32_b32 v{TMP3}, -1, v{TMP3}")
    g(f"v_lshlrev_b32 v{TMP3}, 4, v{TMP3}")
    g(f"v_and_b32 v{TMP2}, 0xf0, v{TMP3}")
    g(f"v_mov_b32 v{TMP0}, 0")
    g(f"v_mov_b32 v100, v{C0}\nv_mov_b32 v101, v{C0+4}\nv_mov_b32 v102, v{C0+8}\nv_mov_b32 v103, 0")
    g(f"buffer_store_dwordx4 v[100:103], v{TMP2}, s[28:31], s59 offen offset:256 sc1")
    g(f"v_mov_b32 v96, v{L0}\nv_mov_b32 v97, v{L0+2}\nv_mov_b32 v98, v{L0+4}\nv_mov_b32 v99, 1")
    g(f"buffer_store_dwordx4 v[96:99], v{TMP2}, s[28:31], s59 offen sc1")
    for b in range(3):
        for x in range(1, 4):
            g(pack_ops(x, b))
            g(pay_store(x, b, opt))
    g("s_branch L_sent")


def pack_ops(x, b):
    o, p = O(2 * x, b), O(2 * x + 1, b)
    return [f"v_cvt_pk_bf16_f32 v{o}, v{o}, v{o+1}", f"v_cvt_pk_bf16_f32 v{o+1}, v{o+2}, v{o+3}",
            f"v_cvt_pk_bf16_f32 v{o+2}, v{p}, v{p+1}", f"v_cvt_pk_bf16_f32 v{o+3}, v{p+2}, v{p+3}"]

def pay_store(x, b, opt, pol=None):
    if pol is None and (opt.sc1b >> b) & 1: pol = "sc1"
    return f"buffer_store_dwordx4 {Oq(2*x, b)}, v{TMP3}, s[28:31], s{55+x} offen offset:{b*1024} {opt.stpol if pol is None else pol}"


def addr_setup(g, lane, t):
    g(f"v_and_b32 v{t}, 7, v{lane}")
    g(f"v_mul_u32_u24 v{t}, {PIECE}, v{t}")
    g(f"v_bfe_u32 v{t+1}, v{lane}, 3, 1")
    g(f"v_lshlrev_b32 v{t+1}, 8, v{t+1}")
    g(f"v_and_b32 v{t+2}, 48, v{lane}")
    g(f"v_add3_u32 v{KADDR}, v{t}, v{t+1}, v{t+2}")
    g(f"v_bfe_u32 v{t}, v{lane}, 2, 3")
    g(f"v_mul_u32_u24 v{t}, {PIECE}, v{t}")
    g(f"v_lshrrev_b32 v{t+1}, 5, v{lane}")
    g(f"v_lshlrev_b32 v{t+1}, 8, v{t+1}")
    g(f"v_and_b32 v{t+3}, 3, v{lane}")
    g(f"v_lshlrev_b32 v{t+3}, 3, v{t+3}")
    g(f"v_add3_u32 v{VADDR}, v{t}, v{t+1}, v{t+3}")
    g(f"v_add_u32 v{VADDR}, {TILE}, v{VADDR}")


def gen(opt):
    g = G(opt)
    kvpol, qpol = opt.kvpol, opt.qpol
    vpol = opt.vpol if opt.vpol is not None else kvpol
    for l in HEADER.strip().split("\n"): g.o.append("; " + l)
    g.o.append(f"; @launch grid=(256,1,1) block=(512,1,1) lds={LDS_BYTES}")
    g.o.append('.amdgcn_target "amdgcn-amd-amdhsa--gfx950"')
    g.o.append(".text")
    g.o.append(f".globl {KN}")
    g.o.append(".p2align 8")
    g.o.append(f".type {KN},@function")
    g(f"{KN}:")
    g("s_load_dwordx8 s[4:11], s[0:1], 0")
    g("s_load_dwordx4 s[12:15], s[0:1], 32")
    g.ts(0)
    g("s_cmp_ge_u32 s2, 256")
    g("s_cbranch_scc1 L_end")
    g("v_lshrrev_b32 v1, 6, v0")
    g("s_and_b32 s16, s2, 7")
    g("s_lshr_b32 s17, s2, 3")
    g("v_readfirstlane_b32 s18, v1")
    g("s_lshl_b32 s16, s16, 3")
    g("s_lshr_b32 s19, s17, 2")
    g("s_add_u32 s16, s16, s19")
    g("s_and_b32 s17, s17, 3")
    if opt.linear:
        g("s_lshr_b32 s16, s2, 2\ns_and_b32 s17, s2, 3")
    g(f"v_and_b32 v{TMP2}, 63, v0")
    g(f"v_lshlrev_b32 v{TMP3}, 4, v{TMP2}")
    g("s_and_b32 s19, s18, 3")
    g("s_mov_b32 s23, 0x20000")
    g("s_mov_b32 s27, 0x20000")
    g("s_mov_b32 s31, 0x20000")
    def q_issue():
        g("s_waitcnt lgkmcnt(0)")
        g("s_add_u32 s20, s4, s37")
        g("s_addc_u32 s21, s5, 0")
        for i in range(12):
            so = ["0", "s38", "s39"][i // 4]
            g(f"buffer_load_dwordx4 v[{4*i}:{4*i+3}], v{TMP3}, s[20:23], {so} offen offset:{(i%4)*1024} {qpol}")
        g("s_barrier")
    def q_pre():
        g("s_lshl_b32 s36, s16, 2")
        g("s_add_u32 s36, s36, s19")
        g("s_mul_i32 s37, s36, 12288")
        g("s_mov_b32 s22, 12288")
        g("s_movk_i32 s38, 0x1000")
        g("s_movk_i32 s39, 0x2000")
    if opt.qfirst:
        g("s_cmp_ge_u32 s18, 4")
        g("s_cbranch_scc1 L_loader")
        q_pre()
        q_issue()
        g("s_branch L_compute")
        g("L_loader:")
    else:
        g("s_cmp_lt_u32 s18, 4")
        g("s_cbranch_scc1 L_compute")

    g("s_lshl_b32 s36, s19, 11")
    g("s_lshl_b32 s37, s17, 6")
    g(f"v_xor_b32 v2, s37, v{TMP3}")
    g(f"v_add_u32 v1, s36, v{TMP3}")
    g("v_add_u32 v2, s36, v2")
    g("s_lshl_b32 s38, s16, 19")
    g("s_lshl_b32 s39, s17, 17")
    g("s_add_u32 s39, s38, s39")
    g(f"s_mul_i32 s42, s19, {2*PIECE}")
    g("s_mov_b32 s22, 0x20000")
    g("s_mov_b32 s26, 0x20000")
    g("s_movk_i32 s30, 0x1000")
    g(f"s_mul_i32 s44, s19, {RPITCH}")
    g(f"s_add_u32 m0, s44, {RBASE}")
    g(f"v_and_b32 v5, 48, v{TMP2}")
    g(f"v_xor_b32 v5, v5, v{TMP3}")
    g("s_lshl_b32 s45, s19, 10")
    if opt.rot:
        g(f"s_lshr_b32 s41, s2, {opt.rot - 1}\ns_and_b32 s41, s41, 15\ns_lshl_b32 s41, s41, 13")
    else:
        g("s_mov_b32 s41, 0")
    g("s_lshl_b32 s46, s16, 9")
    g("s_lshl_b32 s47, s17, 2")
    g("s_add_u32 s46, s46, s47")
    g(f"s_add_u32 s46, s46, {WS_FLAG}")
    g(f"v_and_b32 v3, 3, v{TMP2}")
    g("v_lshlrev_b32 v3, 7, v3")
    g(f"v_lshlrev_b32 v13, 2, v{TMP2}")
    g("s_mov_b32 s34, 0x10000000")
    g("s_mov_b32 s35, 0x20000")
    g("s_mov_b32 s50, 256")
    g("s_mov_b32 s51, 0x20000")
    if opt.cpf:
        g(f"s_cmp_ge_u32 s2, {8*opt.cpf}")
        g("s_cbranch_scc1 L_nocpf")
        g("s_getpc_b64 s[52:53]")
        g("L_pc:")
        if opt.cpf_from:
            g(f"s_add_u32 s52, s52, {opt.cpf_from}-L_pc")
            g("s_addc_u32 s53, s53, 0")
            g(f"s_mov_b32 s54, {opt.cpf_to}-{opt.cpf_from}")
        else:
            g(f"s_sub_u32 s52, s52, L_pc-{KN}")
            g("s_subb_u32 s53, s53, 0")
            g(f"s_mov_b32 s54, L_code_end-{KN}")
        g("s_mov_b32 s55, 0x20000")
        g("s_lshr_b32 s56, s2, 3\ns_lshl_b32 s56, s56, 2\ns_add_u32 s56, s56, s19\ns_lshl_b32 s56, s56, 10")
        g(f"buffer_load_dwordx4 v[20:23], v{TMP3}, s[52:55], s56 offen")
        if opt.cpf2:
            a, b = opt.cpf2.split(":")
            g(f"s_sub_u32 s52, s52, {opt.cpf_from}-{a}")
            g("s_subb_u32 s53, s53, 0")
            g(f"s_mov_b32 s54, {b}-{a}")
            g(f"buffer_load_dwordx4 v[24:27], v{TMP3}, s[52:55], s56 offen")
        g("L_nocpf:")
    g("s_waitcnt lgkmcnt(0)")
    g("s_add_u32 s28, s6, s38")
    g("s_addc_u32 s29, s7, 0")
    g("buffer_load_dwordx4 v5, s[28:31], s45 offen lds")
    g(f"s_add_u32 m0, s42, {7*SLOT}")
    g("s_add_u32 s20, s6, s39")
    g("s_addc_u32 s21, s7, 0")
    g(f"buffer_load_dwordx4 v1, s[20:23], s41 offen {kvpol} lds")
    g(f"s_add_u32 m0, s42, {7*SLOT+32}")
    g("s_add_u32 s24, s8, s39")
    g("s_addc_u32 s25, s9, 0")
    g(f"buffer_load_dwordx4 v1, s[20:23], s41 offen offset:1024 {kvpol} lds")
    g("s_mov_b32 s32, s14")
    g("s_mov_b32 s33, s15")
    g("s_mov_b32 s48, s12")
    g("s_mov_b32 s49, s13")
    if opt.hs == "loader":
        g("s_cmp_lg_u32 s19, 0")
        g("s_cbranch_scc1 L_nohs1")
        g(f"buffer_load_dword v4, v3, s[32:35], s46 offen {opt.stalepol}")
        g("L_nohs1:")
    g("s_barrier")
    g.ts(1)
    def hs2():
        if opt.hs != "loader": return
        g("s_cmp_lg_u32 s19, 0")
        g("s_cbranch_scc1 L_nohs2")
        g("v_and_b32 v4, 1, v4")
        g("v_cmp_eq_u32 vcc, 0, v4")
        g("s_getreg_b32 s46, hwreg(HW_REG_XCC_ID)")
        g("s_and_b32 s46, s46, 7")
        g("s_lshl_b32 s46, s46, 4")
        g("s_and_b32 s47, vcc_lo, 15")
        g("s_or_b32 s46, s46, s47")
        g("s_or_b32 s46, s46, 0x80")
        if opt.hsbyte:
            g("v_mov_b32 v4, s46")
            g("s_lshl_b32 s47, s16, 2\ns_add_u32 s47, s47, s17")
            g("s_mov_b64 exec, 1")
            g("buffer_store_byte v4, off, s[48:51], s47 sc1")
            g("s_mov_b64 exec, -1")
        else:
            g("s_lshl_b32 s47, s17, 3")
            g("s_lshl_b32 s46, s46, s47")
            g("v_mov_b32 v4, s46")
            g("s_lshl_b32 s47, s16, 2")
            g("s_mov_b64 exec, 1")
            g("buffer_atomic_or v4, off, s[48:51], s47 sc1")
            g("s_mov_b64 exec, -1")
        g("L_nohs2:")
    def pair(u, mid=None):
        slot = (u & 7) * SLOT
        if u < 15:
            g(f"s_add_u32 m0, s42, {slot}")
            g("s_add_u32 s40, s41, 0x2000")
            if opt.rot: g("s_and_b32 s40, s40, 0x1ffff")
        order = opt.suborder
        ld = []
        if u < 15:
            ld.append((slot, f"buffer_load_dwordx4 v1, s[20:23], s40 offen {kvpol} lds"))
            ld.append((slot + 32, f"buffer_load_dwordx4 v1, s[20:23], s40 offen offset:1024 {kvpol} lds"))
        lv = [(slot + TILE, f"buffer_load_dwordx4 v2, s[24:27], s41 offen {vpol} lds"),
              (slot + TILE + 32, f"buffer_load_dwordx4 v2, s[24:27], s41 offen offset:1024 {vpol} lds")]
        ld = lv + ld if order else ld + lv
        for i, (m, ins) in enumerate(ld):
            if mid and i in mid: g("s_barrier")
            if i or order or u == 15:
                g(f"s_add_u32 m0, s42, {m}")
                g("s_nop 0")
            g(ins)
        g("s_mov_b32 s41, s40")
    sched = [int(x) for x in opt.sched.split(",")]
    cnt = [0]
    def tr():
        if not opt.trace: return
        g("s_memrealtime s[60:61]\ns_waitcnt lgkmcnt(0)")
        g(f"v_writelane_b32 v10, s60, {cnt[0]}")
        cnt[0] += 1
    if opt.trace:
        g("s_waitcnt lgkmcnt(0)")
        g("v_writelane_b32 v10, s64, 63")
    issued = [0]
    queue = []
    def issue(n, limit, mid=None):
        for _ in range(n):
            u = issued[0]
            if u >= 16 or u > limit: break
            pair(u, mid); issued[0] += 1
            queue.extend([u] * (4 if u < 15 else 2))
    def wait_for(t):
        n = sum(1 for x in queue if x > t)
        g(f"s_waitcnt vmcnt({n})")
    pwe = [int(x) for x in opt.pwe.split(",")] if opt.pwe else []
    def early_pw(t):
        for i, tt in enumerate(pwe):
            if tt != t: continue
            tag = issued[0] if issued[0] < 16 else 99
            if i == 0:
                g("s_lshl_b32 s57, s16, 2\ns_add_u32 s57, s57, s19\ns_lshl_b32 s57, s57, 2\ns_add_u32 s57, s57, s17")
                g(f"s_lshl_b32 s58, s57, 9\ns_add_u32 s58, s58, {WS_ML}")
                g(f"v_and_b32 v16, 31, v{TMP2}\nv_lshlrev_b32 v16, 6, v16")
                g("buffer_load_dword v12, v13, s[32:35], s58 offen")
                queue.append(tag)
            g(f"s_xor_b32 s58, s57, {i+1}\ns_mul_i32 s58, s58, 9216\ns_add_u32 s58, s58, {i*3072}")
            if opt.pwlite:
                g("buffer_load_dword v17, v16, s[32:35], s58 offen offset:1024")
                queue.append(tag)
            else:
                for k in (1, 2):
                    g(f"buffer_load_dwordx4 v[{28+4*k}:{31+4*k}], v{TMP3}, s[32:35], s58 offen offset:{k*1024}")
                    queue.append(tag)
    issue(sched[0], 6)
    early_pw(-2)
    tr(); g.ts(2)
    wait_for(-1)
    tr(); g.ts(3)
    g("s_barrier")
    tr()
    issue(sched[1], 6)
    early_pw(-1)
    if opt.hs_at < 0: hs2()
    for t in range(16):
        tr()
        assert issued[0] > t
        wait_for(t)
        tr()
        g("s_barrier")
        tr()
        mid = None
        if t < 2 * opt.sub:
            assert sched[min(t + 2, len(sched) - 1)] == 1 and issued[0] < 15
            mid = (2, 3) if t < 2 * opt.sub - 1 else (2,)
        issue(sched[min(t + 2, len(sched) - 1)], t + 7, mid)
        early_pw(t)
        if t == opt.hs_at:
            hs2()
        if opt.prewarm is not None and t == opt.pw_at - 4:
            g("s_lshl_b32 s47, s16, 2")
            g("buffer_load_dword v14, off, s[48:51], s47 sc1")
            queue.append(issued[0] - 1)
        if opt.prewarm is not None and opt.pw_at <= t < opt.pw_at + 3:
            i = t - opt.pw_at
            if i == 0:
                g("v_readfirstlane_b32 s36, v14")
                g("s_lshr_b32 s37, s36, 8\ns_xor_b32 s37, s37, s36\ns_and_b32 s37, s37, 0x00f0f0f0")
                g("s_andn2_b32 s36, 0x80, s36\ns_or_b32 s37, s37, s36")
                if opt.pw_always: g("s_cmp_eq_u32 s37, 0x12345")
                g("s_cselect_b32 s34, 0, s34")
                g("s_lshl_b32 s36, s16, 2\ns_add_u32 s36, s36, s19\ns_lshl_b32 s36, s36, 2\ns_add_u32 s36, s36, s17")
                g(f"s_lshl_b32 s38, s36, 9\ns_add_u32 s38, s38, {WS_ML}")
                g(f"buffer_load_dword v12, v{TMP2}, s[32:35], s38 offen {opt.prewarm}".replace(f"v{TMP2},", "v13,"))
                queue.append(99)
            g(f"s_xor_b32 s37, s36, {i+1}\ns_mul_i32 s37, s37, 9216\ns_add_u32 s37, s37, {i*3072}")
            if opt.pwlite:
                assert opt.sc1b == 1
                if i == 0: g(f"v_and_b32 v16, 31, v{TMP2}\nv_lshlrev_b32 v16, 6, v16")
                g(f"buffer_load_dword v17, v16, s[32:35], s37 offen offset:1024 {opt.prewarm}")
                queue.append(99)
            else:
                for k in range(3):
                    if (opt.sc1b >> k) & 1: continue
                    g(f"buffer_load_dwordx4 v[{16+4*k}:{19+4*k}], v{TMP3}, s[32:35], s37 offen offset:{k*1024} {opt.prewarm}")
                    queue.append(99)
    if opt.trace:
        g("s_mov_b32 s28, s14\ns_mov_b32 s29, s15\ns_mov_b32 s30, 0x10000000\ns_mov_b32 s31, 0x20000")
        g("s_lshl_b32 s42, s2, 2\ns_add_u32 s42, s42, s19\ns_lshl_b32 s42, s42, 8")
        g(f"s_add_u32 s42, s42, {WS_TS + (1<<20)}")
        g(f"v_lshrrev_b32 v11, 2, v{TMP3}")
        g("buffer_store_dword v10, v11, s[28:31], s42 offen")
    if opt.lpf:
        g("s_sub_u32 s37, s37, 9216\ns_add_u32 s38, s37, 3072\ns_add_u32 s39, s37, 6144")
        for i, pt in enumerate(opt.lpf.split(",")):
            g("s_barrier")
            for k in ([i] if len(opt.lpf.split(",")) > 1 else [0, 1]):
                for x in range(3):
                    g(f"buffer_load_dwordx4 v[{16+4*x}:{19+4*x}], v{TMP3}, s[32:35], s{37+x} offen offset:{k*1024}")
    if opt.wb:
        g(f"s_lshr_b32 s36, s2, 3\ns_and_b32 s36, s36, {opt.wb - 1}\ns_or_b32 s36, s36, s19")
        g("s_cbranch_scc1 L_nowb")
        g("s_barrier")
        g("buffer_wbl2 sc1")
        g("L_nowb:")
    g.ts_store(1)
    g("s_endpgm")

    g("L_compute:")
    if not opt.qfirst: q_pre()
    def setup():
        addr_setup(g, TMP2, 100)
        g(f"s_mul_i32 s42, s19, {QWAVE}")
        g(f"s_add_u32 s42, s42, {QBASE}")
        g(f"v_lshrrev_b32 v103, 4, v{TMP2}")
        g(f"v_mul_u32_u24 v105, {QPITCH}, v103")
        g(f"v_and_b32 v107, 15, v{TMP2}")
        g("v_lshlrev_b32 v108, 4, v107")
        g("v_add3_u32 v105, v105, v108, s42")
        g(f"v_mul_u32_u24 v106, {QPITCH}, v107")
        g("v_add3_u32 v106, v106, v102, s42")
        g(f"v_bfe_u32 v107, v{TMP2}, 2, 2")
        g(f"v_mul_u32_u24 v107, {RPITCH}, v107")
        g(f"v_and_b32 v109, 3, v{TMP2}")
        g("v_xor_b32 v110, v109, v103")
        g("v_lshlrev_b32 v110, 4, v110")
        g("v_lshlrev_b32 v109, 8, v109")
        g("v_add3_u32 v107, v107, v109, v110")
        g(f"v_add_u32 v107, {RBASE}, v107")
        g(f"v_and_b32 v111, 3, v{TMP2}")
        g("v_lshlrev_b32 v111, 7, v111")
        g("s_lshl_b32 s46, s16, 9\ns_lshl_b32 s47, s17, 2\ns_add_u32 s46, s46, s47")
        g(f"s_add_u32 s47, s46, {WS_FLAG}")
        g("s_cmp_eq_u32 s19, 0\ns_cselect_b32 s63, 2, 99")
        g(f"v_mov_b32 v{TMP2}, v108")
        for i in range(48, 96): g(f"v_mov_b32 v{i}, 0")
        for i in range(6): g(f"v_mov_b32 v{L0+i}, 0")
        g(f"s_mov_b32 s52, 0x{C_SCALE:08x}")
        g(f"s_mov_b32 s53, 0x{C_SCALE:08x}")
        g("s_mov_b32 s51, 0xffff0000")
        g(f"v_add_u32 v{TMP0}, {7*SLOT}, v{KADDR}")
        g(f"s_mov_b32 s54, {2*SLOT}")
        g("s_mov_b32 s44, 0")
        if opt.thr: g("s_mov_b32 s70, 0\ns_mov_b32 s71, 0")
        g("s_lshl_b32 s40, s36, 2")
        for x in range(1, 4):
            g(f"s_xor_b32 s42, s17, {x}")
            g("s_add_u32 s42, s42, s40")
            g(f"s_mul_i32 s{55+x}, s42, 9216")
            if x > 1: g(f"s_add_u32 s{55+x}, s{55+x}, {(x-1)*3072}")
        g("s_add_u32 s42, s40, s17")
        g("s_lshl_b32 s59, s42, 9")
        g(f"s_add_u32 s59, s59, {WS_ML}")
        g("s_mul_i32 s60, s42, 9216")
        g("s_lshl_b32 s61, s36, 7")
        g(f"s_add_u32 s61, s61, {WS_FLAG}")
        g("s_lshl_b32 s62, s16, 2")
        g("s_mov_b32 s26, 12288")
        g("s_mov_b32 s30, 0x10000000")
        g("s_mov_b32 s34, 256")
        g("s_mov_b32 s35, 0x20000")
        g("s_mov_b32 s48, 0x3f80")
        g("s_mov_b32 s49, 0x3f800000")
    setup()
    g.ts(2)
    if not opt.qfirst: q_issue()
    g.ts(1)
    if opt.tsout:
        g("s_add_u32 s24, s14, s37\ns_addc_u32 s25, s15, 0\ns_add_u32 s24, s24, 0x2800000\ns_addc_u32 s25, s25, 0")
    else:
        g("s_add_u32 s24, s10, s37")
        g("s_addc_u32 s25, s11, 0")
    g("s_mov_b32 s28, s14")
    g("s_mov_b32 s29, s15")
    g("s_mov_b32 s32, s12")
    g("s_mov_b32 s33, s13")
    QX = 0
    if opt.hs == "loop":
        g(f"buffer_load_dword v{TMP1}, v111, s[28:31], s47 offen {opt.stalepol}")
        QX = 1
    def qscale_ops(b):
        out = []
        for i in range(4):
            li = b * 4 + i
            grp = [f"s_waitcnt vmcnt({11-li+QX})"]
            for r in range(4): grp += [f"v_lshlrev_b32 v{112+2*r}, 16, v{4*li+r}", f"v_and_b32 v{113+2*r}, s51, v{4*li+r}"]
            for r in range(4): grp.append(f"v_pk_mul_f32 v[{112+2*r}:{113+2*r}], v[{112+2*r}:{113+2*r}], s[52:53]")
            for r in range(4): grp.append(f"v_cvt_pk_bf16_f32 v{4*li+r}, v{112+2*r}, v{113+2*r}")
            grp.append(f"ds_write_b128 v105, v[{4*li}:{4*li+3}] offset:{i*4*QPITCH}")
            out.append(grp)
        out.append([f"ds_read_b128 {Qa(b,s)}, v106 offset:{64*s}" for s in range(4)])
        return out
    def pp_mfma(b, s):
        c = "0" if s == 0 else Cq(b)
        return f"v_mfma_f32_16x16x32_bf16 {Cq(b)}, {Va(s)}, {Qa(b,s)}, {c}"
    for grp in qscale_ops(0): g(grp)
    g.ts(3)
    for grp in qscale_ops(1): g(grp)
    for grp in qscale_ops(2): g(grp)
    zero = [f"v_mov_b32 v{i}, 0" for i in range(48)]
    g(zero[:32])
    if opt.stag:
        g("s_lshr_b32 s40, s2, 3\ns_and_b32 s40, s40, 7")
        g("L_stag:\ns_cmp_eq_u32 s40, 0\ns_cbranch_scc1 L_stagd")
        g(f"s_sleep {opt.stag}\ns_sub_u32 s40, s40, 1\ns_branch L_stag\nL_stagd:")
    g.ts(4)
    g("L_ba:")
    g("s_barrier")
    g.ts(5)
    for s in range(4):
        g(f"ds_read_b128 {Va(s)}, v107 offset:{64*s}")
    k0r = [f"ds_read_b128 {Ka(kb,s)}, v{TMP0} offset:{kb*512 + s*64}" for kb in range(2) for s in range(4)]
    g(k0r[:4])
    g(zero[32:40])
    g("s_waitcnt lgkmcnt(4)")
    if opt.pts: g.ts(9)
    pm = [pp_mfma(b, s) for b in range(3) for s in range(4)]
    qk0 = [m.replace(Cq(0), "0") for m in slot_mfmas(5)[:8]]
    class Lst(list):
        def __call__(self, x): self.append(x)
    red = Lst()
    for b in range(3):
        c = C0 + 4 * b
        red += [f"v_max3_f32 v{c}, v{c}, v{c+1}, v{c+2}", f"v_max_f32 v{c}, v{c}, v{c+3}"]
    xlane3(red, [C0, C0 + 4, C0 + 8], [C0 + 1, C0 + 5, C0 + 9], "v_max_f32")
    for i in range(12):
        g(pm[i])
        if i < 4: g(k0r[4 + i])
        elif i < 8: g(zero[40 + 2 * (i - 4):42 + 2 * (i - 4)])
        elif i >= 10: g(red[2 * (i - 10):2 * (i - 10) + 2])
    if opt.pts: g.ts(10)
    g("s_waitcnt lgkmcnt(0)")
    rest = red[4:]
    for i in range(8):
        g(qk0[i])
        if i == 3: g("s_nop 2")
        if i >= 3: g(rest[(i - 3) * len(rest) // 5:(i - 2) * len(rest) // 5])
    if opt.pts: g.ts(11)
    g("s_barrier")
    if opt.pts: g.ts(12)
    for r in range(8): g(vread(r, 0))
    for i in range(8): g(f"v_sub_f32 v{S(0,i)}, v{S(0,i)}, v{C0}")
    smA = softmax_ops(6, "add")
    neg = []
    for b in (1, 2, 0):
        c = C0 + 4 * b
        for i in (1, 2, 3, 0):
            neg.append(f"v_sub_f32 v{c+i}, 0, v{c}")
    side = [f"v_mov_b32 v108, v{C0}", f"v_mov_b32 v109, v{C0+4}", f"v_mov_b32 v110, v{C0+8}",
            f"buffer_store_dwordx4 v[108:111], v{TMP2}, s[28:31], s59 offen offset:256 sc1"]
    for i in range(8):
        g(smA[8 + i])
        g(neg[i * 12 // 8:(i + 1) * 12 // 8])
    g(side)
    g.ts(6)
    if opt.grp:
        bit, tgt = opt.grp.split(":")
        g(f"s_bitcmp1_b32 s2, {bit}")
        g(f"s_cbranch_scc1 L_k0_{tgt}")
    g("s_branch L_k0")
    NT = opt.nt
    niter = 8 - NT // 2 if NT else 8
    slots = loop_body("add", rotated=True, niter=niter, vlast=int(opt.vlast, 0), klast=int(opt.klast, 0))
    for pi, ph in enumerate(opt.phases.split(",")):
        e, run, vl, kl, pad = (ph.split(":") + ["0"])[:5]
        e = min(int(e), niter)
        sl = loop_body("add", rotated=True, niter=e, vlast=int(vl, 16), klast=int(kl, 16), run=int(run), sub=(e <= opt.sub), adapt=((opt.thr, opt.imin) if (opt.thr and pi == 0) else None))
        if int(pad):
            for k in sl:
                sl[k] = sum(([l, f"s_nop {int(pad)-1}"] if l.startswith("v_exp") else [l] for l in sl[k]), [])
        g(f"L_loop{pi}:")
        g(sl[4]); g(sl[-1])
        g("L_k0:" if pi == 0 else f"L_k0_{pi}:")
        for k in range(4): g(sl[k])
        g(f"s_cbranch_scc1 L_loop{pi}")
    assert e == niter
    g("L_tail:")
    g.ts(7)
    T0 = 16 - NT
    TS = 16 - opt.skew if opt.skew >= 0 else T0
    units = [(t, b) for t in range(TS) for b in range(3)] + [(t, b) for t in range(TS, 16) for b in range(2)] + [(t, 2) for t in range(TS, 16)]
    n0 = 6 * (niter - 1) + 4
    base = (2 * (niter - 1)) & 7
    first, last = {}, {}
    kslot0, vslot0 = base + 1, base + 2
    if NT:
        g(f"v_add_u32 v{KADDR}, {SLOT}, v{KADDR}")
        g(f"v_add_u32 v{VADDR}, {2*SLOT}, v{VADDR}")
    g(f"buffer_load_dword v{TMP0}, off, s[32:35], s62 sc1")
    fin = {b: max(n for n in range(48) if units[n][1] == b) for b in range(3)}
    for b in range(2):
        n = fin[b] + 1
        for x in range(1, 4):
            ops = pack_ops(x, b)
            if n < 47:
                gp = {1: (3, 4), 2: (6, 6), 3: (7, 7)}[x]
                last.setdefault((n, gp[0]), []).extend(ops[:2]); last.setdefault((n, gp[1]), []).extend(ops[2:])
                first.setdefault((n, gp[1] + 1), []).append(pay_store(x, b, opt))
            else:
                last.setdefault((n, 2 * x - 1), []).extend(ops + [pay_store(x, b, opt)])
    lred = Lst()
    for b in range(3): lred(f"v_add_f32 v{96+b}, v{L0+2*b}, v{L0+2*b+1}")
    xlane3(lred, [96, 97, 98], [100, 101, 102], "v_add_f32")
    lred("v_mov_b32 v99, 0")
    lred(f"buffer_store_dwordx4 v[96:99], v{TMP2}, s[28:31], s59 offen {opt.stpol}")
    lred(f"v_add_f32 v{TMP1}, v96, v97")
    lred("s_mov_b32 s50, " + ("0x5f800000" if not opt.force_fb else "0x00000000"))
    lred(f"v_add_f32 v{TMP1}, v{TMP1}, v98")
    lred(f"v_cmp_nlt_f32 vcc, v{TMP1}, s50")
    for i in range(5):
        last.setdefault((47, 8 + i), []).extend(lred[i * len(lred) // 5:(i + 1) * len(lred) // 5])
    last.setdefault((47, 13), []).extend(pack_ops(1, 2) + [pay_store(1, 2, opt)])
    last.setdefault((47, 15), []).extend(pack_ops(2, 2) + [pay_store(2, 2, opt)] + pack_ops(3, 2) + [pay_store(3, 2, opt)])
    last.setdefault((47, 7), []).append("s_nop 0")
    if opt.lpf:
        for pt in opt.lpf.split(","):
            n, gp = pt.split(":")
            first.setdefault((int(n), int(gp)), []).append("s_barrier")
    g(tail_slots(n0, units, kslot0, vslot0, 2 * niter - 1, first, last, pv_last=[2, 3, 4, 5, 6, 7, 0, 1]))
    g.ts(8)
    g("s_cbranch_vccz L_sent")
    g("s_waitcnt vmcnt(0)")
    g("s_branch L_slow")
    g("L_sent:")
    g("s_mov_b32 s47, 0x100000")
    g("s_waitcnt vmcnt(10)")
    g("L_hs:")
    g(f"v_readfirstlane_b32 s44, v{TMP0}")
    g("s_and_b32 s45, s44, 0x80808080")
    g("s_cmp_eq_u32 s45, 0x80808080")
    g("s_cbranch_scc0 L_hs_retry")
    g("L_hs_ok:")
    g("s_lshr_b32 s45, s44, 8")
    g("s_xor_b32 s45, s45, s44")
    g("s_and_b32 s45, s45, 0x00707070")
    if opt.force_slow:
        g("s_mov_b32 s45, 1")
    g(f"v_bfe_u32 v100, v{TMP3}, 4, 2")
    g("v_lshlrev_b32 v101, 3, v100")
    g("v_add_u32 v101, s19, v101")
    g("v_lshrrev_b32 v101, v101, s44")
    g("v_and_b32 v101, 1, v101")
    g("v_lshlrev_b32 v100, 2, v100")
    g("s_lshl_b32 s46, s17, 3")
    g("s_add_u32 s46, s46, s19")
    g("s_lshr_b32 s46, s44, s46")
    g("s_and_b32 s46, s46, 1")
    g("v_mov_b32 v102, s46")
    g("s_lshl_b32 s46, s17, 2")
    g("s_add_u32 s46, s46, s61")
    for x in range(1, 4):
        g(f"s_xor_b32 s{19+x}, s59, {x<<9}")
    g("s_add_u32 s40, s60, 3072\ns_add_u32 s41, s60, 6144")
    g("s_mov_b32 s47, 0x100000")
    g("s_cmp_lg_u32 s45, 0")
    g.ts(9)
    g("s_waitcnt vmcnt(0)")
    g.ts(10)
    g("s_cbranch_scc1 L_xcd_flag")
    g(f"buffer_store_dword v102, off, s[28:31], s46 {opt.flagpol}")
    if opt.wb and opt.wbpos == 0: g("s_barrier")
    g("L_poll:")
    g(f"buffer_load_dword v103, v100, s[28:31], s61 offen {opt.pollpol}")
    g("s_waitcnt vmcnt(0)")
    g("v_and_b32 v103, 1, v103")
    g("v_cmp_ne_u32 vcc, v103, v101")
    g("s_cbranch_vccz L_poll_ok")
    g("s_sub_u32 s47, s47, 1")
    g("s_cbranch_scc0 L_poll")
    g("L_poll_ok:")
    g.ts(11)
    LR = lambda x: 100 + 4 * x
    PR = lambda x, b: 24 + ((x - 1) * 3 + b) * 4
    def inbox_loads(lp):
        for x in range(1, 4):
            g(f"buffer_load_dwordx4 v[{LR(x)}:{LR(x)+3}], v{TMP2}, s[28:31], s{19+x} offen {lp}")
        for b in range(3):
            for x in range(1, 4):
                g(f"buffer_load_dwordx4 v[{PR(x,b)}:{PR(x,b)+3}], v{TMP3}, s[28:31], {['s60','s40','s41'][x-1]} offen offset:{b*1024} {lp}")
    inbox_loads(opt.ldpol)
    if opt.wb and opt.wbpos == 1: g("s_barrier")
    g("L_loaded:")
    g(f"v_bfe_u32 v132, v{TMP3}, 4, 4")
    g("v_lshlrev_b32 v132, 8, v132")
    if opt.out4:
        g(f"v_bfe_u32 v133, v{TMP3}, 8, 1\nv_lshlrev_b32 v133, 5, v133")
        g(f"v_bfe_u32 v134, v{TMP3}, 9, 1\nv_lshl_add_u32 v133, v134, 4, v133")
    else:
        g(f"v_lshrrev_b32 v133, 8, v{TMP3}")
        g("v_lshlrev_b32 v133, 3, v133")
    g("s_lshl_b32 s42, s17, 6")
    g("v_add3_u32 v132, v132, v133, s42")
    g("s_waitcnt vmcnt(9)")
    g.ts(12)
    g(f"v_or3_b32 v99, v99, v{LR(1)+3}, v{LR(2)+3}")
    g(f"v_or_b32 v99, v99, v{LR(3)+3}")
    g("v_cmp_ne_u32 vcc, 0, v99")
    g("s_cbranch_vccnz L_general")
    for x in range(1, 4):
        for b in range(3):
            g(f"v_add_f32 v{96+b}, v{96+b}, v{LR(x)+b}")
    for b in range(3): g(f"v_rcp_f32 v{96+b}, v{96+b}")
    def acc_reg(b, i): return O(i // 4, b, i % 4)
    nst = 1 if opt.out4 else 2
    for b in range(3):
        for x in range(1, 4):
            g(f"s_waitcnt vmcnt({9 - (b*3 + x) + b*nst})")
            if x == 3 and b == 2: g.ts(13)
            for r in range(4):
                src = PR(x, b) + r
                g(f"v_dot2c_f32_bf16 v{acc_reg(b,2*r)}, s48, v{src}")
                g(f"v_dot2c_f32_bf16 v{acc_reg(b,2*r+1)}, s49, v{src}")
        out_store(g, b, 96 + b, opt)
    g("L_done:")
    g.ts(14)
    if opt.ts:
        g("s_waitcnt vmcnt(0)")
        g.ts(15)
    g.ts_store(0)
    g("L_end:")
    g("s_endpgm")
    g("L_hs_retry:")
    g("s_sleep 2")
    g(f"buffer_load_dword v{TMP0}, off, s[32:35], s62 sc1")
    g("s_sub_u32 s47, s47, 1")
    g("s_waitcnt vmcnt(0)")
    g("s_cbranch_scc0 L_hs")
    g("s_branch L_hs_ok")
    g("L_xcd_flag:")
    g(f"buffer_store_dwordx4 v[96:99], v{TMP2}, s[28:31], s59 offen sc1")
    for b in range(3):
        for x in range(1, 4):
            g(pay_store(x, b, opt, "sc1"))
    g("s_waitcnt vmcnt(0)")
    g("buffer_store_dword v102, off, s[28:31], s46 sc1")
    g("L_poll2:")
    g("buffer_load_dword v103, v100, s[28:31], s61 offen sc1")
    g("s_waitcnt vmcnt(0)")
    g("v_and_b32 v103, 1, v103")
    g("v_cmp_ne_u32 vcc, v103, v101")
    g("s_cbranch_vccz L_poll2_ok")
    g("s_sub_u32 s47, s47, 1")
    g("s_cbranch_scc0 L_poll2")
    g("L_poll2_ok:")
    inbox_loads("sc1")
    g("s_branch L_loaded")
    g("L_general:")
    CR = lambda x: 60 + 4 * x
    for x in range(1, 4):
        g(f"buffer_load_dwordx4 v[{CR(x)}:{CR(x)+3}], v{TMP2}, s[28:31], s{19+x} offen offset:256 sc1")
    for b in range(3): g(f"v_mov_b32 v{CR(0)+b}, v{C0+4*b}")
    g("s_waitcnt vmcnt(0)")
    for b in range(3):
        g(f"v_min3_f32 v100, v{CR(0)+b}, v{CR(1)+b}, v{CR(2)+b}")
        g(f"v_min_f32 v100, v100, v{CR(3)+b}")
        for x in range(4): g(f"v_sub_f32 v{CR(x)+b}, v100, v{CR(x)+b}")
        for x in range(4): g(f"v_exp_f32 v{CR(x)+b}, v{CR(x)+b}")
        g("s_nop 0")
        g(f"v_mul_f32 v{96+b}, v{96+b}, v{CR(0)+b}")
        for x in range(1, 4): g(f"v_fmac_f32 v{96+b}, v{CR(x)+b}, v{LR(x)+b}")
    for b in range(3): g(f"v_rcp_f32 v{96+b}, v{96+b}")
    for b in range(3):
        for i in range(8): g(f"v_mul_f32 v{acc_reg(b,i)}, v{acc_reg(b,i)}, v{CR(0)+b}")
        for x in range(1, 4):
            for r in range(4):
                src = PR(x, b) + r
                g(f"v_lshlrev_b32 v116, 16, v{src}")
                g(f"v_and_b32 v117, s51, v{src}")
                g(f"v_fmac_f32 v{acc_reg(b,2*r)}, v116, v{CR(x)+b}")
                g(f"v_fmac_f32 v{acc_reg(b,2*r+1)}, v117, v{CR(x)+b}")
        out_store(g, b, 96 + b, opt)
    g("s_branch L_done")
    g("L_code_end:")
    slow_path(g, opt)
    g.o.append(f""".section .rodata,"a"
.p2align 6
.amdhsa_kernel {KN}
  .amdhsa_next_free_vgpr {NV+NA}
  .amdhsa_next_free_sgpr 102
  .amdhsa_accum_offset {NV}
  .amdhsa_group_segment_fixed_size 0
  .amdhsa_kernarg_size 48
  .amdhsa_user_sgpr_count 2
  .amdhsa_user_sgpr_kernarg_segment_ptr 1
  .amdhsa_system_sgpr_workgroup_id_x 1
.end_amdhsa_kernel""")
    return "\n".join(g.o) + "\n"


def out_store(g, b, rl, opt):
    o, p = O(0, b), O(1, b)
    so = ["0", "s38", "s39"][b]
    for r in range(4): g(f"v_mul_f32 v{o+r}, v{o+r}, v{rl}")
    for r in range(4): g(f"v_mul_f32 v{p+r}, v{p+r}, v{rl}")
    if opt.out4:
        g(f"v_cvt_pk_bf16_f32 v{o}, v{o}, v{o+1}")
        g(f"v_cvt_pk_bf16_f32 v{o+1}, v{o+2}, v{o+3}")
        g(f"v_cvt_pk_bf16_f32 v{o+2}, v{p}, v{p+1}")
        g(f"v_cvt_pk_bf16_f32 v{o+3}, v{p+2}, v{p+3}")
        g("s_nop 0")
        g(f"v_permlane16_swap_b32 v{o}, v{o+2}")
        g(f"v_permlane16_swap_b32 v{o+1}, v{o+3}")
        g("s_nop 0")
        g(f"buffer_store_dwordx4 v[{o}:{o+3}], v132, s[24:27], {so} offen {opt.outpol}")
        return
    for h in range(2):
        o = O(h, b)
        g(f"v_cvt_pk_bf16_f32 v{o}, v{o}, v{o+1}")
        g(f"v_cvt_pk_bf16_f32 v{o+1}, v{o+2}, v{o+3}")
        g(f"buffer_store_dwordx2 v[{o}:{o+1}], v132, s[24:27], {so} offen offset:{32*h} {opt.outpol}")


if __name__ == "__main__":
    ap = argparse.ArgumentParser()
    ap.add_argument("-o", default="standalone__gqa_softmax__near_ridge.s")
    ap.add_argument("--kvpol", default="nt")
    ap.add_argument("--qpol", default="nt")
    ap.add_argument("--stpol", default="")
    ap.add_argument("--ldpol", default="nt")
    ap.add_argument("--outpol", default="sc1")
    ap.add_argument("--ts", type=int, default=0)
    ap.add_argument("--pwe", default="")
    ap.add_argument("--grp", default="")
    ap.add_argument("--cpf_to", default="L_general")
    ap.add_argument("--cpf2", default="")
    ap.add_argument("--hsbyte", type=int, default=0)
    ap.add_argument("--thr", type=int, default=0)
    ap.add_argument("--imin", type=int, default=3)
    ap.add_argument("--pwlite", type=int, default=0)
    ap.add_argument("--sub", type=int, default=0)
    ap.add_argument("--suborder", type=int, default=0)
    ap.add_argument("--qfirst", type=int, default=1)
    ap.add_argument("--stag", type=int, default=0)
    ap.add_argument("--lpf", default="")
    ap.add_argument("--sc1b", type=int, default=1)
    ap.add_argument("--wb", type=int, default=0)
    ap.add_argument("--wbpos", type=int, default=0)
    ap.add_argument("--pw_always", type=int, default=0)
    ap.add_argument("--phases", default="5:121121:ffff:ff,8:1:0:0")
    ap.add_argument("--cpf_from", default="L_loop1")
    ap.add_argument("--cpf", type=int, default=2)
    ap.add_argument("--skew", type=int, default=-1)
    ap.add_argument("--vlast", default="0")
    ap.add_argument("--klast", default="0")
    ap.add_argument("--split", type=int, default=0)
    ap.add_argument("--pad2", type=int, default=0)
    ap.add_argument("--ramp", type=int, default=0)
    ap.add_argument("--rampgap", type=int, default=0)
    ap.add_argument("--pad", type=int, default=0)
    ap.add_argument("--out4", type=int, default=1)
    ap.add_argument("--pw_at", type=int, default=12)
    ap.add_argument("--nt", type=int, default=0)
    ap.add_argument("--sched", default="2,1,1")
    ap.add_argument("--rot", type=int, default=0)
    ap.add_argument("--hs_at", type=int, default=-1)
    ap.add_argument("--probe", type=int, default=0)
    ap.add_argument("--vpol", default=None)
    ap.add_argument("--hs", default="loader")
    ap.add_argument("--setup", default="early")
    ap.add_argument("--tsout", type=int, default=0)
    ap.add_argument("--pts", type=int, default=0)
    ap.add_argument("--exp_x1", type=int, default=0)
    ap.add_argument("--exp_2x", type=int, default=0)
    ap.add_argument("--prewarm", default="")
    ap.add_argument("--linear", type=int, default=0)
    ap.add_argument("--trace", type=int, default=0)
    ap.add_argument("--pollpol", default="nt")
    ap.add_argument("--stalepol", default="")
    ap.add_argument("--dot", type=int, default=1)
    ap.add_argument("--flagpol", default="")
    ap.add_argument("--depth", type=int, default=3)
    ap.add_argument("--init_pairs", type=int, default=2)
    ap.add_argument("--force_slow", type=int, default=0)
    ap.add_argument("--force_fb", type=int, default=0)
    opt = ap.parse_args()
    open(opt.o, "w").write(gen(opt))
```

```python
import sys, argparse, struct, math
from body import *

KN = "standalone__gqa_softmax__near_ridge_kernel"
NSLOT = 8
RING = NSLOT * SLOT
QBASE = RING
QPITCH = 288
QWAVE = 16 * QPITCH
RBASE = QBASE + 4 * QWAVE
RPITCH = 1088
LDS_BYTES = RBASE + 4 * RPITCH

WS_ML = 16 << 20
WS_FLAG = 24 << 20
WS_TS = 32 << 20
C_SCALE = struct.unpack("<I", struct.pack("<f", math.log2(math.e) / math.sqrt(128.0)))[0]
NTS = 16


HEADER = """
GQA attention (B8 Hq32 Hkv8 Sq48 Sk2048 D128, bf16), hand-scheduled via gen/gen.py + gen/body.py.
kernarg: q, k, v, out, debug, ws.  256 workgroups = 64 (batch, kv head) pairs x 4 key chunks of 512 keys.
Waves 0-3 compute (one q head = 48 rows each, S^T = K Q^T and O^T = V^T P^T with 16x16x32 MFMA),
waves 4-7 stream K/V tiles into an 8-slot LDS ring with LDS-DMA.
Softmax reference: row max over the first 16 keys of the pair (same in all 4 chunks); the row sums are
checked at the end and a wave whose reference was unsafe recomputes its chunk with the true online max.
The 4 chunk partials are exchanged through ws (flags tagged against stale contents, hand-shake in debug;
device-scope accesses whenever the four workgroups are not known to share an XCD) and combined in place.
"""


class G:
    def __init__(self, opt):
        self.o = []
        self.opt = opt
    def __call__(self, s):
        if isinstance(s, list):
            for x in s: self(x)
            return
        for l in s.split("\n"):
            l = l.strip()
            if l:
                self.o.append(("" if l.endswith(":") else "    ") + l)
    def ts(self, idx):
        if self.opt.pts and idx >= 9:
            self.seen = getattr(self, "seen", set())
            if idx in self.seen: return
            self.seen.add(idx)
        if self.opt.ts:
            self(f"s_memrealtime s[{64+2*idx}:{65+2*idx}]" if self.opt.ts == 2 else f"s_memtime s[{64+2*idx}:{65+2*idx}]")
    def ts_store(self, widx):
        if not self.opt.ts: return
        self("s_waitcnt vmcnt(0) lgkmcnt(0)")
        if self.opt.probe:
            if widx == 0:
                i = self.opt.probe
                self(f"s_sub_u32 s40, s{64+2*i}, s64\ns_lshl_b32 s40, s40, 3")
                self("L_probe:\ns_sleep 8\ns_memrealtime s[42:43]\ns_waitcnt lgkmcnt(0)\ns_sub_u32 s41, s42, s64\ns_cmp_lt_u32 s41, s40\ns_cbranch_scc1 L_probe")
            return
        if self.opt.tsout:
            self("s_mov_b32 s28, s10\ns_mov_b32 s29, s11\ns_mov_b32 s30, 0x300000\ns_mov_b32 s31, 0x20000")
            self("s_lshl_b32 s42, s2, 3\ns_add_u32 s42, s42, s18\ns_lshl_b32 s42, s42, 6")
            for i in range(1, NTS):
                self(f"s_sub_u32 s{64+2*i}, s{64+2*i}, s64")
            self("v_mov_b32 v1, 0")
            for i in range(NTS):
                self(f"v_writelane_b32 v1, s{64+2*i}, {i}")
            self("v_and_b32 v1, 0x3fff, v1")
            self("v_lshrrev_b32 v2, 6, v1\nv_and_b32 v3, 63, v1\nv_cvt_f32_u32 v2, v2\nv_cvt_f32_u32 v3, v3\nv_cvt_pk_bf16_f32 v2, v2, v3")
            self("v_mbcnt_lo_u32_b32 v4, -1, 0\nv_lshlrev_b32 v4, 2, v4")
            self("s_mov_b64 exec, 0xffff")
            self("buffer_store_dword v2, v4, s[28:31], s42 offen")
            return
        self("s_mov_b32 s28, s14\ns_mov_b32 s29, s15\ns_mov_b32 s30, 0x10000000\ns_mov_b32 s31, 0x20000")
        self("s_lshl_b32 s42, s2, 3")
        self("s_add_u32 s42, s42, s18")
        self("s_lshl_b32 s42, s42, 6")
        self(f"s_add_u32 s42, s42, {WS_TS}")
        for i in range(NTS):
            self(f"v_mov_b32 v1, s{64+2*i}")
            self(f"buffer_store_dword v1, off, s[28:31], s42 offset:{4*i}")
            self("s_nop 1")


def xlane(g, a, t, op):
    g(f"v_mov_b32 v{t}, v{a}")
    g("s_nop 1")
    g(f"v_permlane32_swap_b32 v{a}, v{t}")
    g("s_nop 1")
    g(f"{op} v{a}, v{a}, v{t}")
    g(f"v_mov_b32 v{t}, v{a}")
    g("s_nop 1")
    g(f"v_permlane16_swap_b32 v{a}, v{t}")
    g("s_nop 1")
    g(f"{op} v{a}, v{a}, v{t}")


def xlane3(g, regs, tmps, op):
    for sw in ("v_permlane32_swap_b32", "v_permlane16_swap_b32"):
        for a, t in zip(regs, tmps): g(f"v_mov_b32 v{t}, v{a}")
        g("s_nop 0")
        for a, t in zip(regs, tmps): g(f"{sw} v{a}, v{t}")
        g("s_nop 0")
        for a, t in zip(regs, tmps): g(f"{op} v{a}, v{a}, v{t}")


def slow_path(g, opt):
    g("L_slow:")
    g("s_lshl_b32 s38, s16, 19")
    g("s_lshl_b32 s39, s17, 17")
    g("s_add_u32 s38, s38, s39")
    g("s_add_u32 s20, s6, s38\ns_addc_u32 s21, s7, 0\ns_mov_b32 s22, 0x20000\ns_mov_b32 s23, 0x20000")
    g("s_add_u32 s96, s8, s38\ns_addc_u32 s97, s9, 0\ns_mov_b32 s98, 0x20000\ns_mov_b32 s99, 0x20000")
    g("s_movk_i32 s38, 0x1000\ns_movk_i32 s39, 0x2000")
    g(f"v_mbcnt_lo_u32_b32 v{TMP2}, -1, 0")
    g(f"v_mbcnt_hi_u32_b32 v{TMP2}, -1, v{TMP2}")
    addr_setup(g, TMP2, 96)
    g("s_cmp_eq_u32 s19, 3\ns_cselect_b32 s42, 8, s19")
    g(f"s_mul_i32 s42, s42, {SLOT}")
    g(f"v_add_u32 v{KADDR}, s42, v{KADDR}")
    g(f"v_add_u32 v{VADDR}, s42, v{VADDR}")
    g(f"v_lshlrev_b32 v{TMP2}, 4, v{TMP2}")
    g("s_lshl_b32 s43, s17, 6")
    g(f"v_xor_b32 v{TMP3}, s43, v{TMP2}")
    for i in range(96): g(f"v_mov_b32 v{i}, 0")
    for i in range(6): g(f"v_mov_b32 v{L0+i}, 0")
    for b in range(3): g(f"v_mov_b32 v{C0+4*b}, 0x7f000000")
    g("s_mov_b32 s44, 0")
    g("L_slow_loop:")
    g("s_mov_b32 s45, s44")
    g("s_mov_b32 s46, s42")
    g("L_slow_ld:")
    g("s_mov_b32 m0, s46")
    g(f"s_add_u32 s47, s46, {TILE}")
    g(f"buffer_load_dwordx4 v{TMP2}, s[20:23], s45 offen lds")
    g("s_mov_b32 m0, s47")
    g(f"s_add_u32 s46, s46, {PIECE}")
    g(f"buffer_load_dwordx4 v{TMP3}, s[96:99], s45 offen lds")
    g("s_add_u32 s45, s45, 1024")
    g("s_and_b32 s47, s45, 0x1fff")
    g("s_cbranch_scc1 L_slow_ld")
    g("s_waitcnt vmcnt(0)")
    for i in range(8): g(kread(i, 0))
    for r in range(16): g(vread(r, 0))
    g("s_waitcnt lgkmcnt(0)")
    for b in range(3):
        c = C0 + 4 * b
        s = lambda i: f"v{S(0, i)}"
        for kb in range(2):
            for st in range(4):
                cc = "0" if st == 0 else Sq(0, kb)
                g(f"v_mfma_f32_16x16x32_bf16 {Sq(0,kb)}, {Ka(kb,st)}, {Qa(b,st)}, {cc}")
        g("s_nop 7")
        g(f"v_max3_f32 v{TMP0}, {s(0)}, {s(1)}, {s(2)}")
        g(f"v_max3_f32 v{TMP0}, v{TMP0}, {s(3)}, {s(4)}")
        g(f"v_max3_f32 v{TMP0}, v{TMP0}, {s(5)}, {s(6)}")
        g(f"v_max3_f32 v{TMP0}, v{TMP0}, {s(7)}, -v{c}")
        xlane(g, TMP0, TMP1, "v_max_f32")
        g(f"v_add_f32 v{TMP1}, v{c}, v{TMP0}")
        g(f"v_exp_f32 v{TMP1}, -v{TMP1}")
        g(f"v_sub_f32 v{c}, 0, v{TMP0}")
        for i in range(8): g(f"v_sub_f32 {s(i)}, {s(i)}, v{TMP0}")
        for i in range(8): g(f"v_exp_f32 {s(i)}, {s(i)}")
        g(f"v_mul_f32 v{L0+2*b}, v{L0+2*b}, v{TMP1}")
        for db in range(8):
            for r in range(4): g(f"v_mul_f32 v{O(db,b,r)}, v{O(db,b,r)}, v{TMP1}")
        for i in range(4): g(f"v_cvt_pk_bf16_f32 v{P(0,i)}, {s(2*i)}, {s(2*i+1)}")
        for i in range(8): g(f"v_add_f32 v{L0+2*b}, v{L0+2*b}, {s(i)}")
        for db in range(8):
            g(f"v_mfma_f32_16x16x32_bf16 {Oq(db,b)}, {Va(db)}, {Pq(0)}, {Oq(db,b)}")
    g("s_add_u32 s44, s44, 0x2000")
    g("s_cmp_lt_u32 s44, 0x20000")
    g("s_cbranch_scc1 L_slow_loop")
    g("s_nop 7")
    xlane3(g, [L0, L0 + 2, L0 + 4], [TMP0, TMP1, TMP2], "v_add_f32")
    g(f"v_mbcnt_lo_u32_b32 v{TMP3}, -1, 0")
    g(f"v_mbcnt_hi_u32_b32 v{TMP3}, -1, v{TMP3}")
    g(f"v_lshlrev_b32 v{TMP3}, 4, v{TMP3}")
    g(f"v_and_b32 v{TMP2}, 0xf0, v{TMP3}")
    g(f"v_mov_b32 v{TMP0}, 0")
    g(f"v_mov_b32 v100, v{C0}\nv_mov_b32 v101, v{C0+4}\nv_mov_b32 v102, v{C0+8}\nv_mov_b32 v103, 0")
    g(f"buffer_store_dwordx4 v[100:103], v{TMP2}, s[28:31], s59 offen offset:256 sc1")
    g(f"v_mov_b32 v96, v{L0}\nv_mov_b32 v97, v{L0+2}\nv_mov_b32 v98, v{L0+4}\nv_mov_b32 v99, 1")
    g(f"buffer_store_dwordx4 v[96:99], v{TMP2}, s[28:31], s59 offen sc1")
    for b in range(3):
        for x in range(1, 4):
            g(pack_ops(x, b))
            g(pay_store(x, b, opt))
    g("s_branch L_sent")


def pack_ops(x, b):
    o, p = O(2 * x, b), O(2 * x + 1, b)
    return [f"v_cvt_pk_bf16_f32 v{o}, v{o}, v{o+1}", f"v_cvt_pk_bf16_f32 v{o+1}, v{o+2}, v{o+3}",
            f"v_cvt_pk_bf16_f32 v{o+2}, v{p}, v{p+1}", f"v_cvt_pk_bf16_f32 v{o+3}, v{p+2}, v{p+3}"]

def pay_store(x, b, opt, pol=None):
    if pol is None and (opt.sc1b >> b) & 1: pol = "sc1"
    return f"buffer_store_dwordx4 {Oq(2*x, b)}, v{TMP3}, s[28:31], s{55+x} offen offset:{b*1024} {opt.stpol if pol is None else pol}"


def addr_setup(g, lane, t):
    g(f"v_and_b32 v{t}, 7, v{lane}")
    g(f"v_mul_u32_u24 v{t}, {PIECE}, v{t}")
    g(f"v_bfe_u32 v{t+1}, v{lane}, 3, 1")
    g(f"v_lshlrev_b32 v{t+1}, 8, v{t+1}")
    g(f"v_and_b32 v{t+2}, 48, v{lane}")
    g(f"v_add3_u32 v{KADDR}, v{t}, v{t+1}, v{t+2}")
    g(f"v_bfe_u32 v{t}, v{lane}, 2, 3")
    g(f"v_mul_u32_u24 v{t}, {PIECE}, v{t}")
    g(f"v_lshrrev_b32 v{t+1}, 5, v{lane}")
    g(f"v_lshlrev_b32 v{t+1}, 8, v{t+1}")
    g(f"v_and_b32 v{t+3}, 3, v{lane}")
    g(f"v_lshlrev_b32 v{t+3}, 3, v{t+3}")
    g(f"v_add3_u32 v{VADDR}, v{t}, v{t+1}, v{t+3}")
    g(f"v_add_u32 v{VADDR}, {TILE}, v{VADDR}")


def gen(opt):
    g = G(opt)
    kvpol, qpol = opt.kvpol, opt.qpol
    vpol = opt.vpol if opt.vpol is not None else kvpol
    for l in HEADER.strip().split("\n"): g.o.append("; " + l)
    g.o.append(f"; @launch grid=(256,1,1) block=(512,1,1) lds={LDS_BYTES}")
    g.o.append('.amdgcn_target "amdgcn-amd-amdhsa--gfx950"')
    g.o.append(".text")
    g.o.append(f".globl {KN}")
    g.o.append(".p2align 8")
    g.o.append(f".type {KN},@function")
    g(f"{KN}:")
    g("s_load_dwordx8 s[4:11], s[0:1], 0")
    g("s_load_dwordx4 s[12:15], s[0:1], 32")
    g.ts(0)
    g("s_cmp_ge_u32 s2, 256")
    g("s_cbranch_scc1 L_end")
    g("v_lshrrev_b32 v1, 6, v0")
    g("s_and_b32 s16, s2, 7")
    g("s_lshr_b32 s17, s2, 3")
    g("v_readfirstlane_b32 s18, v1")
    g("s_lshl_b32 s16, s16, 3")
    g("s_lshr_b32 s19, s17, 2")
    g("s_add_u32 s16, s16, s19")
    g("s_and_b32 s17, s17, 3")
    if opt.linear:
        g("s_lshr_b32 s16, s2, 2\ns_and_b32 s17, s2, 3")
    g(f"v_and_b32 v{TMP2}, 63, v0")
    g(f"v_lshlrev_b32 v{TMP3}, 4, v{TMP2}")
    g("s_and_b32 s19, s18, 3")
    g("s_mov_b32 s23, 0x20000")
    g("s_mov_b32 s27, 0x20000")
    g("s_mov_b32 s31, 0x20000")
    if opt.peel:
        QR = lambda li: O(li % 4, 1) if li < 4 else O(li - 4, 2)
    else:
        QR = lambda li: 4 * li
    def q_issue():
        g("s_waitcnt lgkmcnt(0)")
        g("s_add_u32 s20, s4, s37")
        g("s_addc_u32 s21, s5, 0")
        for i in range(12):
            so = ["0", "s38", "s39"][i // 4]
            g(f"buffer_load_dwordx4 v[{QR(i)}:{QR(i)+3}], v{TMP3}, s[20:23], {so} offen offset:{(i%4)*1024} {qpol}")
        g("s_barrier")
    def q_pre():
        g("s_lshl_b32 s36, s16, 2")
        g("s_add_u32 s36, s36, s19")
        g("s_mul_i32 s37, s36, 12288")
        g("s_mov_b32 s22, 12288")
        g("s_movk_i32 s38, 0x1000")
        g("s_movk_i32 s39, 0x2000")
    if opt.qfirst:
        g("s_cmp_ge_u32 s18, 4")
        g("s_cbranch_scc1 L_loader")
        q_pre()
        q_issue()
        g("s_branch L_compute")
        g("L_loader:")
    else:
        g("s_cmp_lt_u32 s18, 4")
        g("s_cbranch_scc1 L_compute")

    g("s_lshl_b32 s36, s19, 11")
    g("s_lshl_b32 s37, s17, 6")
    g(f"v_xor_b32 v2, s37, v{TMP3}")
    g(f"v_add_u32 v1, s36, v{TMP3}")
    g("v_add_u32 v2, s36, v2")
    g("s_lshl_b32 s38, s16, 19")
    g("s_lshl_b32 s39, s17, 17")
    g("s_add_u32 s39, s38, s39")
    g(f"s_mul_i32 s42, s19, {2*PIECE}")
    g("s_mov_b32 s22, 0x20000")
    g("s_mov_b32 s26, 0x20000")
    g("s_movk_i32 s30, 0x1000")
    g(f"s_mul_i32 s44, s19, {RPITCH}")
    g(f"s_add_u32 m0, s44, {RBASE}")
    g(f"v_and_b32 v5, 48, v{TMP2}")
    g(f"v_xor_b32 v5, v5, v{TMP3}")
    g("s_lshl_b32 s45, s19, 10")
    if opt.rot:
        g(f"s_lshr_b32 s41, s2, {opt.rot - 1}\ns_and_b32 s41, s41, 15\ns_lshl_b32 s41, s41, 13")
    else:
        g("s_mov_b32 s41, 0")
    g("s_lshl_b32 s46, s16, 9")
    g("s_lshl_b32 s47, s17, 2")
    g("s_add_u32 s46, s46, s47")
    g(f"s_add_u32 s46, s46, {WS_FLAG}")
    g(f"v_and_b32 v3, 3, v{TMP2}")
    g("v_lshlrev_b32 v3, 7, v3")
    g(f"v_lshlrev_b32 v13, 2, v{TMP2}")
    g("s_mov_b32 s34, 0x10000000")
    g("s_mov_b32 s35, 0x20000")
    g("s_mov_b32 s50, 256")
    g("s_mov_b32 s51, 0x20000")
    if opt.cpf:
        g(f"s_cmp_ge_u32 s2, {8*opt.cpf}")
        g("s_cbranch_scc1 L_nocpf")
        g("s_getpc_b64 s[52:53]")
        g("L_pc:")
        if opt.cpf_from:
            g(f"s_add_u32 s52, s52, {opt.cpf_from}-L_pc")
            g("s_addc_u32 s53, s53, 0")
            g(f"s_mov_b32 s54, {opt.cpf_to}-{opt.cpf_from}")
        else:
            g(f"s_sub_u32 s52, s52, L_pc-{KN}")
            g("s_subb_u32 s53, s53, 0")
            g(f"s_mov_b32 s54, L_code_end-{KN}")
        g("s_mov_b32 s55, 0x20000")
        g("s_lshr_b32 s56, s2, 3\ns_lshl_b32 s56, s56, 2\ns_add_u32 s56, s56, s19\ns_lshl_b32 s56, s56, 10")
        g(f"buffer_load_dwordx4 v[20:23], v{TMP3}, s[52:55], s56 offen")
        if opt.cpf2:
            a, b = opt.cpf2.split(":")
            g(f"s_sub_u32 s52, s52, {opt.cpf_from}-{a}")
            g("s_subb_u32 s53, s53, 0")
            g(f"s_mov_b32 s54, {b}-{a}")
            g(f"buffer_load_dwordx4 v[24:27], v{TMP3}, s[52:55], s56 offen")
        g("L_nocpf:")
    g("s_waitcnt lgkmcnt(0)")
    g("s_add_u32 s28, s6, s38")
    g("s_addc_u32 s29, s7, 0")
    g("buffer_load_dwordx4 v5, s[28:31], s45 offen lds")
    g(f"s_add_u32 m0, s42, {7*SLOT}")
    g("s_add_u32 s20, s6, s39")
    g("s_addc_u32 s21, s7, 0")
    g(f"buffer_load_dwordx4 v1, s[20:23], s41 offen {kvpol} lds")
    g(f"s_add_u32 m0, s42, {7*SLOT+32}")
    g("s_add_u32 s24, s8, s39")
    g("s_addc_u32 s25, s9, 0")
    g(f"buffer_load_dwordx4 v1, s[20:23], s41 offen offset:1024 {kvpol} lds")
    g("s_mov_b32 s32, s14")
    g("s_mov_b32 s33, s15")
    g("s_mov_b32 s48, s12")
    g("s_mov_b32 s49, s13")
    if opt.hs == "loader":
        g("s_cmp_lg_u32 s19, 0")
        g("s_cbranch_scc1 L_nohs1")
        g(f"buffer_load_dword v4, v3, s[32:35], s46 offen {opt.stalepol}")
        g("L_nohs1:")
    g("s_barrier")
    g.ts(1)
    def hs2():
        if opt.hs != "loader": return
        g("s_cmp_lg_u32 s19, 0")
        g("s_cbranch_scc1 L_nohs2")
        g("v_and_b32 v4, 1, v4")
        g("v_cmp_eq_u32 vcc, 0, v4")
        g("s_getreg_b32 s46, hwreg(HW_REG_XCC_ID)")
        g("s_and_b32 s46, s46, 7")
        g("s_lshl_b32 s46, s46, 4")
        g("s_and_b32 s47, vcc_lo, 15")
        g("s_or_b32 s46, s46, s47")
        g("s_or_b32 s46, s46, 0x80")
        if opt.hsbyte:
            g("v_mov_b32 v4, s46")
            g("s_lshl_b32 s47, s16, 2\ns_add_u32 s47, s47, s17")
            g("s_mov_b64 exec, 1")
            g("buffer_store_byte v4, off, s[48:51], s47 sc1")
            g("s_mov_b64 exec, -1")
        else:
            g("s_lshl_b32 s47, s17, 3")
            g("s_lshl_b32 s46, s46, s47")
            g("v_mov_b32 v4, s46")
            g("s_lshl_b32 s47, s16, 2")
            g("s_mov_b64 exec, 1")
            g("buffer_atomic_or v4, off, s[48:51], s47 sc1")
            g("s_mov_b64 exec, -1")
        g("L_nohs2:")
    def pair(u, mid=None):
        slot = (u & 7) * SLOT
        if u < 15:
            g(f"s_add_u32 m0, s42, {slot}")
            g("s_add_u32 s40, s41, 0x2000")
            if opt.rot: g("s_and_b32 s40, s40, 0x1ffff")
        order = opt.suborder
        ld = []
        if u < 15:
            ld.append((slot, f"buffer_load_dwordx4 v1, s[20:23], s40 offen {kvpol} lds"))
            ld.append((slot + 32, f"buffer_load_dwordx4 v1, s[20:23], s40 offen offset:1024 {kvpol} lds"))
        lv = [(slot + TILE, f"buffer_load_dwordx4 v2, s[24:27], s41 offen {vpol} lds"),
              (slot + TILE + 32, f"buffer_load_dwordx4 v2, s[24:27], s41 offen offset:1024 {vpol} lds")]
        ld = lv + ld if order else ld + lv
        for i, (m, ins) in enumerate(ld):
            if mid and i in mid: g("s_barrier")
            if i or order or u == 15:
                g(f"s_add_u32 m0, s42, {m}")
                g("s_nop 0")
            g(ins)
        g("s_mov_b32 s41, s40")
    sched = [int(x) for x in opt.sched.split(",")]
    cnt = [0]
    def tr():
        if not opt.trace: return
        g("s_memrealtime s[60:61]\ns_waitcnt lgkmcnt(0)")
        g(f"v_writelane_b32 v10, s60, {cnt[0]}")
        cnt[0] += 1
    if opt.trace:
        g("s_waitcnt lgkmcnt(0)")
        g("v_writelane_b32 v10, s64, 63")
    issued = [0]
    queue = []
    def issue(n, limit, mid=None):
        for _ in range(n):
            u = issued[0]
            if u >= 16 or u > limit: break
            pair(u, mid); issued[0] += 1
            queue.extend([u] * (4 if u < 15 else 2))
    def wait_for(t):
        n = sum(1 for x in queue if x > t)
        g(f"s_waitcnt vmcnt({n})")
    pwe = [int(x) for x in opt.pwe.split(",")] if opt.pwe else []
    def early_pw(t):
        for i, tt in enumerate(pwe):
            if tt != t: continue
            tag = issued[0] if issued[0] < 16 else 99
            if i == 0:
                g("s_lshl_b32 s57, s16, 2\ns_add_u32 s57, s57, s19\ns_lshl_b32 s57, s57, 2\ns_add_u32 s57, s57, s17")
                g(f"s_lshl_b32 s58, s57, 9\ns_add_u32 s58, s58, {WS_ML}")
                g(f"v_and_b32 v16, 31, v{TMP2}\nv_lshlrev_b32 v16, 6, v16")
                g("buffer_load_dword v12, v13, s[32:35], s58 offen")
                queue.append(tag)
            g(f"s_xor_b32 s58, s57, {i+1}\ns_mul_i32 s58, s58, 9216\ns_add_u32 s58, s58, {i*3072}")
            if opt.pwlite:
                g("buffer_load_dword v17, v16, s[32:35], s58 offen offset:1024")
                queue.append(tag)
            else:
                for k in (1, 2):
                    g(f"buffer_load_dwordx4 v[{28+4*k}:{31+4*k}], v{TMP3}, s[32:35], s58 offen offset:{k*1024}")
                    queue.append(tag)
    issue(sched[0], 6)
    early_pw(-2)
    tr(); g.ts(2)
    wait_for(-1)
    tr(); g.ts(3)
    g("s_barrier")
    tr()
    issue(sched[1], 6)
    early_pw(-1)
    if opt.hs_at < 0: hs2()
    for t in range(16):
        tr()
        assert issued[0] > t
        wait_for(t)
        tr()
        g("s_barrier")
        tr()
        mid = None
        if t < 2 * opt.sub:
            assert sched[min(t + 2, len(sched) - 1)] == 1 and issued[0] < 15
            mid = (2, 3) if t < 2 * opt.sub - 1 else (2,)
        issue(sched[min(t + 2, len(sched) - 1)], t + 7, mid)
        early_pw(t)
        if t == opt.hs_at:
            hs2()
        if opt.prewarm is not None and t == opt.pw_at - 4:
            g("s_lshl_b32 s47, s16, 2")
            g("buffer_load_dword v14, off, s[48:51], s47 sc1")
            queue.append(issued[0] - 1)
        if opt.prewarm is not None and opt.pw_at <= t < opt.pw_at + 3:
            i = t - opt.pw_at
            if i == 0:
                g("v_readfirstlane_b32 s36, v14")
                g("s_lshr_b32 s37, s36, 8\ns_xor_b32 s37, s37, s36\ns_and_b32 s37, s37, 0x00f0f0f0")
                g("s_andn2_b32 s36, 0x80, s36\ns_or_b32 s37, s37, s36")
                if opt.pw_always: g("s_cmp_eq_u32 s37, 0x12345")
                g("s_cselect_b32 s34, 0, s34")
                g("s_lshl_b32 s36, s16, 2\ns_add_u32 s36, s36, s19\ns_lshl_b32 s36, s36, 2\ns_add_u32 s36, s36, s17")
                g(f"s_lshl_b32 s38, s36, 9\ns_add_u32 s38, s38, {WS_ML}")
                g(f"buffer_load_dword v12, v{TMP2}, s[32:35], s38 offen {opt.prewarm}".replace(f"v{TMP2},", "v13,"))
                queue.append(99)
            g(f"s_xor_b32 s37, s36, {i+1}\ns_mul_i32 s37, s37, 9216\ns_add_u32 s37, s37, {i*3072}")
            if opt.pwlite:
                assert opt.sc1b == 1
                if i == 0: g(f"v_and_b32 v16, 31, v{TMP2}\nv_lshlrev_b32 v16, 6, v16")
                g(f"buffer_load_dword v17, v16, s[32:35], s37 offen offset:1024 {opt.prewarm}")
                queue.append(99)
            else:
                for k in range(3):
                    if (opt.sc1b >> k) & 1: continue
                    g(f"buffer_load_dwordx4 v[{16+4*k}:{19+4*k}], v{TMP3}, s[32:35], s37 offen offset:{k*1024} {opt.prewarm}")
                    queue.append(99)
    if opt.trace:
        g("s_mov_b32 s28, s14\ns_mov_b32 s29, s15\ns_mov_b32 s30, 0x10000000\ns_mov_b32 s31, 0x20000")
        g("s_lshl_b32 s42, s2, 2\ns_add_u32 s42, s42, s19\ns_lshl_b32 s42, s42, 8")
        g(f"s_add_u32 s42, s42, {WS_TS + (1<<20)}")
        g(f"v_lshrrev_b32 v11, 2, v{TMP3}")
        g("buffer_store_dword v10, v11, s[28:31], s42 offen")
    if opt.lpf:
        g("s_sub_u32 s37, s37, 9216\ns_add_u32 s38, s37, 3072\ns_add_u32 s39, s37, 6144")
        for i, pt in enumerate(opt.lpf.split(",")):
            g("s_barrier")
            for k in ([i] if len(opt.lpf.split(",")) > 1 else [0, 1]):
                for x in range(3):
                    g(f"buffer_load_dwordx4 v[{16+4*x}:{19+4*x}], v{TMP3}, s[32:35], s{37+x} offen offset:{k*1024}")
    if opt.wb:
        g(f"s_lshr_b32 s36, s2, 3\ns_and_b32 s36, s36, {opt.wb - 1}\ns_or_b32 s36, s36, s19")
        g("s_cbranch_scc1 L_nowb")
        g("s_barrier")
        g("buffer_wbl2 sc1")
        g("L_nowb:")
    g.ts_store(1)
    g("s_endpgm")

    g("L_compute:")
    if not opt.qfirst: q_pre()
    def setup():
        addr_setup(g, TMP2, 100)
        g(f"s_mul_i32 s42, s19, {QWAVE}")
        g(f"s_add_u32 s42, s42, {QBASE}")
        g(f"v_lshrrev_b32 v103, 4, v{TMP2}")
        g(f"v_mul_u32_u24 v105, {QPITCH}, v103")
        g(f"v_and_b32 v107, 15, v{TMP2}")
        g("v_lshlrev_b32 v108, 4, v107")
        g("v_add3_u32 v105, v105, v108, s42")
        g(f"v_mul_u32_u24 v106, {QPITCH}, v107")
        g("v_add3_u32 v106, v106, v102, s42")
        g(f"v_bfe_u32 v107, v{TMP2}, 2, 2")
        g(f"v_mul_u32_u24 v107, {RPITCH}, v107")
        g(f"v_and_b32 v109, 3, v{TMP2}")
        g("v_xor_b32 v110, v109, v103")
        g("v_lshlrev_b32 v110, 4, v110")
        g("v_lshlrev_b32 v109, 8, v109")
        g("v_add3_u32 v107, v107, v109, v110")
        g(f"v_add_u32 v107, {RBASE}, v107")
        g(f"v_and_b32 v111, 3, v{TMP2}")
        g("v_lshlrev_b32 v111, 7, v111")
        g("s_lshl_b32 s46, s16, 9\ns_lshl_b32 s47, s17, 2\ns_add_u32 s46, s46, s47")
        g(f"s_add_u32 s47, s46, {WS_FLAG}")
        g("s_cmp_eq_u32 s19, 0\ns_cselect_b32 s63, 2, 99")
        g(f"v_mov_b32 v{TMP2}, v108")
        if opt.peel:
            g(f"v_mov_b32 v{C0+8}, v105\nv_mov_b32 v{C0+9}, v106\nv_mov_b32 v{C0+10}, v107")
        else:
            for i in range(48, 96): g(f"v_mov_b32 v{i}, 0")
        for i in range(6): g(f"v_mov_b32 v{L0+i}, 0")
        g(f"s_mov_b32 s52, 0x{C_SCALE:08x}")
        g(f"s_mov_b32 s53, 0x{C_SCALE:08x}")
        g("s_mov_b32 s51, 0xffff0000")
        g(f"v_add_u32 v{TMP0}, {7*SLOT}, v{KADDR}")
        g(f"s_mov_b32 s54, {2*SLOT}")
        g("s_mov_b32 s44, 0")
        if opt.thr: g("s_mov_b32 s70, 0\ns_mov_b32 s71, 0")
        g("s_lshl_b32 s40, s36, 2")
        for x in range(1, 4):
            g(f"s_xor_b32 s42, s17, {x}")
            g("s_add_u32 s42, s42, s40")
            g(f"s_mul_i32 s{55+x}, s42, 9216")
            if x > 1: g(f"s_add_u32 s{55+x}, s{55+x}, {(x-1)*3072}")
        g("s_add_u32 s42, s40, s17")
        g("s_lshl_b32 s59, s42, 9")
        g(f"s_add_u32 s59, s59, {WS_ML}")
        g("s_mul_i32 s60, s42, 9216")
        g("s_lshl_b32 s61, s36, 7")
        g(f"s_add_u32 s61, s61, {WS_FLAG}")
        g("s_lshl_b32 s62, s16, 2")
        g("s_mov_b32 s26, 12288")
        g("s_mov_b32 s30, 0x10000000")
        g("s_mov_b32 s34, 256")
        g("s_mov_b32 s35, 0x20000")
        g("s_mov_b32 s48, 0x3f80")
        g("s_mov_b32 s49, 0x3f800000")
    setup()
    g.ts(2)
    if not opt.qfirst: q_issue()
    g.ts(1)
    if opt.tsout:
        g("s_add_u32 s24, s14, s37\ns_addc_u32 s25, s15, 0\ns_add_u32 s24, s24, 0x2800000\ns_addc_u32 s25, s25, 0")
    else:
        g("s_add_u32 s24, s10, s37")
        g("s_addc_u32 s25, s11, 0")
    g("s_mov_b32 s28, s14")
    g("s_mov_b32 s29, s15")
    g("s_mov_b32 s32, s12")
    g("s_mov_b32 s33, s13")
    QX = 0
    if opt.hs == "loop":
        g(f"buffer_load_dword v{TMP1}, v111, s[28:31], s47 offen {opt.stalepol}")
        QX = 1
    def qscale_ops(b):
        out = []
        for i in range(4):
            li = b * 4 + i
            grp = [f"s_waitcnt vmcnt({11-li+QX})"]
            for r in range(4): grp += [f"v_lshlrev_b32 v{112+2*r}, 16, v{4*li+r}", f"v_and_b32 v{113+2*r}, s51, v{4*li+r}"]
            for r in range(4): grp.append(f"v_pk_mul_f32 v[{112+2*r}:{113+2*r}], v[{112+2*r}:{113+2*r}], s[52:53]")
            for r in range(4): grp.append(f"v_cvt_pk_bf16_f32 v{4*li+r}, v{112+2*r}, v{113+2*r}")
            grp.append(f"ds_write_b128 v105, v[{4*li}:{4*li+3}] offset:{i*4*QPITCH}")
            out.append(grp)
        out.append([f"ds_read_b128 {Qa(b,s)}, v106 offset:{64*s}" for s in range(4)])
        return out
    def pp_mfma(b, s):
        c = "0" if s == 0 else Cq(b)
        return f"v_mfma_f32_16x16x32_bf16 {Cq(b)}, {Va(s)}, {Qa(b,s)}, {c}"
    class Lst(list):
        def __call__(self, x): self.append(x)
    def peeled():
        QW, QRD, RF = C0 + 8, C0 + 9, C0 + 10
        def qs(b, temps):
            out = []
            for i in range(4):
                li = b * 4 + i
                x = QR(li)
                grp = [f"s_waitcnt vmcnt({11-li})"]
                for r in range(4): grp += [f"v_lshlrev_b32 v{temps[r]}, 16, v{x+r}", f"v_and_b32 v{temps[r]+1}, s51, v{x+r}"]
                if b == 0:
                    for r in range(4): grp.append(f"v_pk_mul_f32 v[{temps[r]}:{temps[r]+1}], v[{temps[r]}:{temps[r]+1}], s[52:53]")
                else:
                    for r in range(4): grp += [f"v_mul_f32 v{temps[r]}, s52, v{temps[r]}", f"v_mul_f32 v{temps[r]+1}, s52, v{temps[r]+1}"]
                for r in range(4): grp.append(f"v_cvt_pk_bf16_f32 v{x+r}, v{temps[r]}, v{temps[r]+1}")
                grp.append(f"ds_write_b128 v{QW}, v[{x}:{x+3}] offset:{i*4*QPITCH}")
                out.append(grp)
            out.append([f"ds_read_b128 {Qa(b,s)}, v{QRD} offset:{64*s}" for s in range(4)])
            return out
        tP = [112, 114, 116, 118]
        tT = [O(0, 1), O(0, 1) + 2, O(1, 1), O(1, 1) + 2]
        def pp(b): return [f"v_mfma_f32_16x16x32_bf16 {Cq(b)}, {Oq(4+s,1)}, {Qa(b,s)}, {'0' if s == 0 else Cq(b)}" for s in range(4)]
        def qkraw(n): return [m.replace(Cq(n % 3), "0") for m in slot_mfmas(n + 5)[:8]]
        def pv0(ms):
            return [m.rsplit(",", 1)[0] + ", 0" if (m.startswith("v_mfma") and int(m.split("[")[1].split(":")[0]) < 96) else m for m in ms]
        def red(b):
            o = Lst(); c = C0 + 4 * b
            o += [f"v_max3_f32 v{c}, v{c}, v{c+1}, v{c+2}", f"v_max_f32 v{c}, v{c}, v{c+3}"]
            xlane(o, c, c + 1, "v_max_f32")
            return list(o)
        def neg(b): return [f"v_sub_f32 v{C0+4*b+i}, 0, v{C0+4*b}" for i in (1, 2, 3, 0)]
        def subs(n): return [f"v_sub_f32 v{S(n&1,i)}, v{S(n&1,i)}, v{C0+4*(n%3)}" for i in range(8)]
        def sm(n, lo, hi):
            d = softmax_ops(n + 6, "add")
            return sum((d[k] for k in range(lo, hi)), [])
        def inter(mf, fl, first=None):
            for i, m in enumerate(mf):
                g(m)
                if first and i in first: g(first[i])
                g(fl[i * len(fl) // len(mf):(i + 1) * len(fl) // len(mf)])
        for grp in qs(0, tP): g(grp)
        g.ts(4)
        g("L_ba:")
        g("s_barrier")
        g.ts(5)
        for s in range(4): g(f"ds_read_b128 {Oq(4+s,1)}, v{RF} offset:{64*s}")
        for i in range(8): g(f"ds_read_b128 {Ka(i//4,i%4)}, v{TMP0} offset:{(i//4)*512 + (i%4)*64}")
        q1 = qs(1, tP)
        g(q1[0])
        g("s_waitcnt lgkmcnt(1)")
        inter(pp(0) + qkraw(0), q1[1] + q1[2] + q1[3] + q1[4] + red(0))
        g(subs(0))
        g("s_waitcnt lgkmcnt(0)")
        if opt.pts: g.ts(9)
        q2 = qs(2, tT)
        inter(pp(1) + qkraw(1), sm(0, 8, 24) + q2[0])
        if opt.pts: g.ts(10)
        g("s_barrier")
        for r in range(16): g(vread(r, 0))
        g(q2[1])
        g("s_waitcnt lgkmcnt(9)")
        if opt.pts: g.ts(11)
        pv = pv0(slot_mfmas(6)[8:])
        inter(pv[:4], q2[2])
        g("s_waitcnt lgkmcnt(2)")
        inter(pv[4:], q2[3] + q2[4] + red(1))
        g(subs(1))
        g("s_waitcnt lgkmcnt(0)")
        if opt.pts: g.ts(12)
        inter(pp(2) + qkraw(2), sm(1, 8, 24) + neg(0) + neg(1), first={4 + i: kread(i, 0) for i in range(8)})
        if opt.pts: g.ts(13)
        inter(pv0(slot_mfmas(7)[8:]), red(2) + subs(2) + sm(2, 8, 16) + neg(2))
        g([f"v_mov_b32 v{O(0,2)}, v{C0}", f"v_mov_b32 v{O(0,2)+1}, v{C0+4}", f"v_mov_b32 v{O(0,2)+2}, v{C0+8}",
           f"buffer_store_dwordx4 {Oq(0,2)}, v{TMP2}, s[28:31], s59 offen offset:256 sc1"])
        if opt.pts: g.ts(14)
        ph = (opt.phases.split(",")[0].split(":") + ["0"])[:5]
        sl = loop_body("add", rotated=True, vlast=int(ph[2], 16), klast=int(ph[3], 16), run=int(ph[1]))
        g(pv0(sl[2]))
        g.ts(6)
        g("s_branch L_k3")
    if opt.peel:
        peeled()
    else:
        for grp in qscale_ops(0): g(grp)
        g.ts(3)
        for grp in qscale_ops(1): g(grp)
        for grp in qscale_ops(2): g(grp)
        zero = [f"v_mov_b32 v{i}, 0" for i in range(48)]
        g(zero[:32])
        if opt.stag:
            g("s_lshr_b32 s40, s2, 3\ns_and_b32 s40, s40, 7")
            g("L_stag:\ns_cmp_eq_u32 s40, 0\ns_cbranch_scc1 L_stagd")
            g(f"s_sleep {opt.stag}\ns_sub_u32 s40, s40, 1\ns_branch L_stag\nL_stagd:")
        g.ts(4)
        g("L_ba:")
        g("s_barrier")
        g.ts(5)
        for s in range(4):
            g(f"ds_read_b128 {Va(s)}, v107 offset:{64*s}")
        k0r = [f"ds_read_b128 {Ka(kb,s)}, v{TMP0} offset:{kb*512 + s*64}" for kb in range(2) for s in range(4)]
        g(k0r[:4])
        g(zero[32:40])
        g("s_waitcnt lgkmcnt(4)")
        if opt.pts: g.ts(9)
        pm = [pp_mfma(b, s) for b in range(3) for s in range(4)]
        qk0 = [m.replace(Cq(0), "0") for m in slot_mfmas(5)[:8]]
        red = Lst()
        for b in range(3):
            c = C0 + 4 * b
            red += [f"v_max3_f32 v{c}, v{c}, v{c+1}, v{c+2}", f"v_max_f32 v{c}, v{c}, v{c+3}"]
        xlane3(red, [C0, C0 + 4, C0 + 8], [C0 + 1, C0 + 5, C0 + 9], "v_max_f32")
        for i in range(12):
            g(pm[i])
            if i < 4: g(k0r[4 + i])
            elif i < 8: g(zero[40 + 2 * (i - 4):42 + 2 * (i - 4)])
            elif i >= 10: g(red[2 * (i - 10):2 * (i - 10) + 2])
        if opt.pts: g.ts(10)
        g("s_waitcnt lgkmcnt(0)")
        rest = red[4:]
        for i in range(8):
            g(qk0[i])
            if i == 3: g("s_nop 2")
            if i >= 3: g(rest[(i - 3) * len(rest) // 5:(i - 2) * len(rest) // 5])
        if opt.pts: g.ts(11)
        g("s_barrier")
        if opt.pts: g.ts(12)
        for r in range(8): g(vread(r, 0))
        for i in range(8): g(f"v_sub_f32 v{S(0,i)}, v{S(0,i)}, v{C0}")
        smA = softmax_ops(6, "add")
        neg = []
        for b in (1, 2, 0):
            c = C0 + 4 * b
            for i in (1, 2, 3, 0):
                neg.append(f"v_sub_f32 v{c+i}, 0, v{c}")
        side = [f"v_mov_b32 v108, v{C0}", f"v_mov_b32 v109, v{C0+4}", f"v_mov_b32 v110, v{C0+8}",
                f"buffer_store_dwordx4 v[108:111], v{TMP2}, s[28:31], s59 offen offset:256 sc1"]
        for i in range(8):
            g(smA[8 + i])
            g(neg[i * 12 // 8:(i + 1) * 12 // 8])
        g(side)
        g.ts(6)
    if opt.grp:
        bit, tgt = opt.grp.split(":")
        g(f"s_bitcmp1_b32 s2, {bit}")
        g(f"s_cbranch_scc1 L_k0_{tgt}")
    if not opt.peel: g("s_branch L_k0")
    NT = opt.nt
    niter = 8 - NT // 2 if NT else 8
    slots = loop_body("add", rotated=True, niter=niter, vlast=int(opt.vlast, 0), klast=int(opt.klast, 0))
    for pi, ph in enumerate(opt.phases.split(",")):
        e, run, vl, kl, pad = (ph.split(":") + ["0"])[:5]
        e = min(int(e), niter)
        sl = loop_body("add", rotated=True, niter=e, vlast=int(vl, 16), klast=int(kl, 16), run=int(run), sub=(e <= opt.sub), adapt=((opt.thr, opt.imin) if (opt.thr and pi == 0) else None))
        if int(pad):
            for k in sl:
                sl[k] = sum(([l, f"s_nop {int(pad)-1}"] if l.startswith("v_exp") else [l] for l in sl[k]), [])
        g(f"L_loop{pi}:")
        g(sl[4]); g(sl[-1])
        g("L_k0:" if pi == 0 else f"L_k0_{pi}:")
        for k in range(4):
            if pi == 0 and k == 3: g("L_k3:")
            g(sl[k])
        g(f"s_cbranch_scc1 L_loop{pi}")
    assert e == niter
    g("L_tail:")
    g.ts(7)
    T0 = 16 - NT
    TS = 16 - opt.skew if opt.skew >= 0 else T0
    units = [(t, b) for t in range(TS) for b in range(3)] + [(t, b) for t in range(TS, 16) for b in range(2)] + [(t, 2) for t in range(TS, 16)]
    n0 = 6 * (niter - 1) + 4
    base = (2 * (niter - 1)) & 7
    first, last = {}, {}
    kslot0, vslot0 = base + 1, base + 2
    if NT:
        g(f"v_add_u32 v{KADDR}, {SLOT}, v{KADDR}")
        g(f"v_add_u32 v{VADDR}, {2*SLOT}, v{VADDR}")
    g(f"buffer_load_dword v{TMP0}, off, s[32:35], s62 sc1")
    fin = {b: max(n for n in range(48) if units[n][1] == b) for b in range(3)}
    for b in range(2):
        n = fin[b] + 1
        for x in range(1, 4):
            ops = pack_ops(x, b)
            if n < 47:
                gp = {1: (3, 4), 2: (6, 6), 3: (7, 7)}[x]
                last.setdefault((n, gp[0]), []).extend(ops[:2]); last.setdefault((n, gp[1]), []).extend(ops[2:])
                first.setdefault((n, gp[1] + 1), []).append(pay_store(x, b, opt))
            else:
                last.setdefault((n, 2 * x - 1), []).extend(ops + [pay_store(x, b, opt)])
    lred = Lst()
    for b in range(3): lred(f"v_add_f32 v{96+b}, v{L0+2*b}, v{L0+2*b+1}")
    xlane3(lred, [96, 97, 98], [100, 101, 102], "v_add_f32")
    lred("v_mov_b32 v99, 0")
    lred(f"buffer_store_dwordx4 v[96:99], v{TMP2}, s[28:31], s59 offen {opt.stpol}")
    lred(f"v_add_f32 v{TMP1}, v96, v97")
    lred("s_mov_b32 s50, " + ("0x5f800000" if not opt.force_fb else "0x00000000"))
    lred(f"v_add_f32 v{TMP1}, v{TMP1}, v98")
    lred(f"v_cmp_nlt_f32 vcc, v{TMP1}, s50")
    for i in range(5):
        last.setdefault((47, 8 + i), []).extend(lred[i * len(lred) // 5:(i + 1) * len(lred) // 5])
    last.setdefault((47, 13), []).extend(pack_ops(1, 2) + [pay_store(1, 2, opt)])
    last.setdefault((47, 15), []).extend(pack_ops(2, 2) + [pay_store(2, 2, opt)] + pack_ops(3, 2) + [pay_store(3, 2, opt)])
    last.setdefault((47, 7), []).append("s_nop 0")
    if opt.lpf:
        for pt in opt.lpf.split(","):
            n, gp = pt.split(":")
            first.setdefault((int(n), int(gp)), []).append("s_barrier")
    g(tail_slots(n0, units, kslot0, vslot0, 2 * niter - 1, first, last, pv_last=[2, 3, 4, 5, 6, 7, 0, 1]))
    g.ts(8)
    g("s_cbranch_vccz L_sent")
    g("s_waitcnt vmcnt(0)")
    g("s_branch L_slow")
    g("L_sent:")
    g("s_mov_b32 s47, 0x100000")
    g("s_waitcnt vmcnt(10)")
    g("L_hs:")
    g(f"v_readfirstlane_b32 s44, v{TMP0}")
    g("s_and_b32 s45, s44, 0x80808080")
    g("s_cmp_eq_u32 s45, 0x80808080")
    g("s_cbranch_scc0 L_hs_retry")
    g("L_hs_ok:")
    g("s_lshr_b32 s45, s44, 8")
    g("s_xor_b32 s45, s45, s44")
    g("s_and_b32 s45, s45, 0x00707070")
    if opt.force_slow:
        g("s_mov_b32 s45, 1")
    g(f"v_bfe_u32 v100, v{TMP3}, 4, 2")
    g("v_lshlrev_b32 v101, 3, v100")
    g("v_add_u32 v101, s19, v101")
    g("v_lshrrev_b32 v101, v101, s44")
    g("v_and_b32 v101, 1, v101")
    g("v_lshlrev_b32 v100, 2, v100")
    g("s_lshl_b32 s46, s17, 3")
    g("s_add_u32 s46, s46, s19")
    g("s_lshr_b32 s46, s44, s46")
    g("s_and_b32 s46, s46, 1")
    g("v_mov_b32 v102, s46")
    g("s_lshl_b32 s46, s17, 2")
    g("s_add_u32 s46, s46, s61")
    for x in range(1, 4):
        g(f"s_xor_b32 s{19+x}, s59, {x<<9}")
    g("s_add_u32 s40, s60, 3072\ns_add_u32 s41, s60, 6144")
    g("s_mov_b32 s47, 0x100000")
    g("s_cmp_lg_u32 s45, 0")
    g.ts(9)
    g("s_waitcnt vmcnt(0)")
    g.ts(10)
    g("s_cbranch_scc1 L_xcd_flag")
    g(f"buffer_store_dword v102, off, s[28:31], s46 {opt.flagpol}")
    if opt.wb and opt.wbpos == 0: g("s_barrier")
    g("L_poll:")
    g(f"buffer_load_dword v103, v100, s[28:31], s61 offen {opt.pollpol}")
    g("s_waitcnt vmcnt(0)")
    g("v_and_b32 v103, 1, v103")
    g("v_cmp_ne_u32 vcc, v103, v101")
    g("s_cbranch_vccz L_poll_ok")
    g("s_sub_u32 s47, s47, 1")
    g("s_cbranch_scc0 L_poll")
    g("L_poll_ok:")
    g.ts(11)
    LR = lambda x: 100 + 4 * x
    PR = lambda x, b: 24 + ((x - 1) * 3 + b) * 4
    def inbox_loads(lp):
        for x in range(1, 4):
            g(f"buffer_load_dwordx4 v[{LR(x)}:{LR(x)+3}], v{TMP2}, s[28:31], s{19+x} offen {lp}")
        for b in range(3):
            for x in range(1, 4):
                g(f"buffer_load_dwordx4 v[{PR(x,b)}:{PR(x,b)+3}], v{TMP3}, s[28:31], {['s60','s40','s41'][x-1]} offen offset:{b*1024} {lp}")
    inbox_loads(opt.ldpol)
    if opt.wb and opt.wbpos == 1: g("s_barrier")
    g("L_loaded:")
    g(f"v_bfe_u32 v132, v{TMP3}, 4, 4")
    g("v_lshlrev_b32 v132, 8, v132")
    if opt.out4:
        g(f"v_bfe_u32 v133, v{TMP3}, 8, 1\nv_lshlrev_b32 v133, 5, v133")
        g(f"v_bfe_u32 v134, v{TMP3}, 9, 1\nv_lshl_add_u32 v133, v134, 4, v133")
    else:
        g(f"v_lshrrev_b32 v133, 8, v{TMP3}")
        g("v_lshlrev_b32 v133, 3, v133")
    g("s_lshl_b32 s42, s17, 6")
    g("v_add3_u32 v132, v132, v133, s42")
    g("s_waitcnt vmcnt(9)")
    g.ts(12)
    g(f"v_or3_b32 v99, v99, v{LR(1)+3}, v{LR(2)+3}")
    g(f"v_or_b32 v99, v99, v{LR(3)+3}")
    g("v_cmp_ne_u32 vcc, 0, v99")
    g("s_cbranch_vccnz L_general")
    for x in range(1, 4):
        for b in range(3):
            g(f"v_add_f32 v{96+b}, v{96+b}, v{LR(x)+b}")
    for b in range(3): g(f"v_rcp_f32 v{96+b}, v{96+b}")
    def acc_reg(b, i): return O(i // 4, b, i % 4)
    nst = 1 if opt.out4 else 2
    for b in range(3):
        for x in range(1, 4):
            g(f"s_waitcnt vmcnt({9 - (b*3 + x) + b*nst})")
            if x == 3 and b == 2: g.ts(13)
            for r in range(4):
                src = PR(x, b) + r
                g(f"v_dot2c_f32_bf16 v{acc_reg(b,2*r)}, s48, v{src}")
                g(f"v_dot2c_f32_bf16 v{acc_reg(b,2*r+1)}, s49, v{src}")
        out_store(g, b, 96 + b, opt)
    g("L_done:")
    g.ts(14)
    if opt.ts:
        g("s_waitcnt vmcnt(0)")
        g.ts(15)
    g.ts_store(0)
    g("L_end:")
    g("s_endpgm")
    g("L_hs_retry:")
    g("s_sleep 2")
    g(f"buffer_load_dword v{TMP0}, off, s[32:35], s62 sc1")
    g("s_sub_u32 s47, s47, 1")
    g("s_waitcnt vmcnt(0)")
    g("s_cbranch_scc0 L_hs")
    g("s_branch L_hs_ok")
    g("L_xcd_flag:")
    g(f"buffer_store_dwordx4 v[96:99], v{TMP2}, s[28:31], s59 offen sc1")
    for b in range(3):
        for x in range(1, 4):
            g(pay_store(x, b, opt, "sc1"))
    g("s_waitcnt vmcnt(0)")
    g("buffer_store_dword v102, off, s[28:31], s46 sc1")
    g("L_poll2:")
    g("buffer_load_dword v103, v100, s[28:31], s61 offen sc1")
    g("s_waitcnt vmcnt(0)")
    g("v_and_b32 v103, 1, v103")
    g("v_cmp_ne_u32 vcc, v103, v101")
    g("s_cbranch_vccz L_poll2_ok")
    g("s_sub_u32 s47, s47, 1")
    g("s_cbranch_scc0 L_poll2")
    g("L_poll2_ok:")
    inbox_loads("sc1")
    g("s_branch L_loaded")
    g("L_general:")
    CR = lambda x: 60 + 4 * x
    for x in range(1, 4):
        g(f"buffer_load_dwordx4 v[{CR(x)}:{CR(x)+3}], v{TMP2}, s[28:31], s{19+x} offen offset:256 sc1")
    for b in range(3): g(f"v_mov_b32 v{CR(0)+b}, v{C0+4*b}")
    g("s_waitcnt vmcnt(0)")
    for b in range(3):
        g(f"v_min3_f32 v100, v{CR(0)+b}, v{CR(1)+b}, v{CR(2)+b}")
        g(f"v_min_f32 v100, v100, v{CR(3)+b}")
        for x in range(4): g(f"v_sub_f32 v{CR(x)+b}, v100, v{CR(x)+b}")
        for x in range(4): g(f"v_exp_f32 v{CR(x)+b}, v{CR(x)+b}")
        g("s_nop 0")
        g(f"v_mul_f32 v{96+b}, v{96+b}, v{CR(0)+b}")
        for x in range(1, 4): g(f"v_fmac_f32 v{96+b}, v{CR(x)+b}, v{LR(x)+b}")
    for b in range(3): g(f"v_rcp_f32 v{96+b}, v{96+b}")
    for b in range(3):
        for i in range(8): g(f"v_mul_f32 v{acc_reg(b,i)}, v{acc_reg(b,i)}, v{CR(0)+b}")
        for x in range(1, 4):
            for r in range(4):
                src = PR(x, b) + r
                g(f"v_lshlrev_b32 v116, 16, v{src}")
                g(f"v_and_b32 v117, s51, v{src}")
                g(f"v_fmac_f32 v{acc_reg(b,2*r)}, v116, v{CR(x)+b}")
                g(f"v_fmac_f32 v{acc_reg(b,2*r+1)}, v117, v{CR(x)+b}")
        out_store(g, b, 96 + b, opt)
    g("s_branch L_done")
    g("L_code_end:")
    slow_path(g, opt)
    g.o.append(f""".section .rodata,"a"
.p2align 6
.amdhsa_kernel {KN}
  .amdhsa_next_free_vgpr {NV+NA}
  .amdhsa_next_free_sgpr 102
  .amdhsa_accum_offset {NV}
  .amdhsa_group_segment_fixed_size 0
  .amdhsa_kernarg_size 48
  .amdhsa_user_sgpr_count 2
  .amdhsa_user_sgpr_kernarg_segment_ptr 1
  .amdhsa_system_sgpr_workgroup_id_x 1
.end_amdhsa_kernel""")
    return "\n".join(g.o) + "\n"


def out_store(g, b, rl, opt):
    o, p = O(0, b), O(1, b)
    so = ["0", "s38", "s39"][b]
    for r in range(4): g(f"v_mul_f32 v{o+r}, v{o+r}, v{rl}")
    for r in range(4): g(f"v_mul_f32 v{p+r}, v{p+r}, v{rl}")
    if opt.out4:
        g(f"v_cvt_pk_bf16_f32 v{o}, v{o}, v{o+1}")
        g(f"v_cvt_pk_bf16_f32 v{o+1}, v{o+2}, v{o+3}")
        g(f"v_cvt_pk_bf16_f32 v{o+2}, v{p}, v{p+1}")
        g(f"v_cvt_pk_bf16_f32 v{o+3}, v{p+2}, v{p+3}")
        g("s_nop 0")
        g(f"v_permlane16_swap_b32 v{o}, v{o+2}")
        g(f"v_permlane16_swap_b32 v{o+1}, v{o+3}")
        g("s_nop 0")
        g(f"buffer_store_dwordx4 v[{o}:{o+3}], v132, s[24:27], {so} offen {opt.outpol}")
        return
    for h in range(2):
        o = O(h, b)
        g(f"v_cvt_pk_bf16_f32 v{o}, v{o}, v{o+1}")
        g(f"v_cvt_pk_bf16_f32 v{o+1}, v{o+2}, v{o+3}")
        g(f"buffer_store_dwordx2 v[{o}:{o+1}], v132, s[24:27], {so} offen offset:{32*h} {opt.outpol}")


if __name__ == "__main__":
    ap = argparse.ArgumentParser()
    ap.add_argument("-o", default="standalone__gqa_softmax__near_ridge.s")
    ap.add_argument("--kvpol", default="nt")
    ap.add_argument("--qpol", default="nt")
    ap.add_argument("--stpol", default="")
    ap.add_argument("--ldpol", default="nt")
    ap.add_argument("--outpol", default="sc1")
    ap.add_argument("--ts", type=int, default=0)
    ap.add_argument("--peel", type=int, default=0)
    ap.add_argument("--pwe", default="")
    ap.add_argument("--grp", default="")
    ap.add_argument("--cpf_to", default="L_general")
    ap.add_argument("--cpf2", default="")
    ap.add_argument("--hsbyte", type=int, default=0)
    ap.add_argument("--thr", type=int, default=0)
    ap.add_argument("--imin", type=int, default=3)
    ap.add_argument("--pwlite", type=int, default=0)
    ap.add_argument("--sub", type=int, default=0)
    ap.add_argument("--suborder", type=int, default=0)
    ap.add_argument("--qfirst", type=int, default=1)
    ap.add_argument("--stag", type=int, default=0)
    ap.add_argument("--lpf", default="")
    ap.add_argument("--sc1b", type=int, default=1)
    ap.add_argument("--wb", type=int, default=0)
    ap.add_argument("--wbpos", type=int, default=0)
    ap.add_argument("--pw_always", type=int, default=0)
    ap.add_argument("--phases", default="2:8:ffff:ff,3:2:0:0,5:1:ffff:ff,8:1:0:0")
    ap.add_argument("--cpf_from", default="L_nocpf")
    ap.add_argument("--cpf", type=int, default=4)
    ap.add_argument("--skew", type=int, default=-1)
    ap.add_argument("--vlast", default="0")
    ap.add_argument("--klast", default="0")
    ap.add_argument("--split", type=int, default=0)
    ap.add_argument("--pad2", type=int, default=0)
    ap.add_argument("--ramp", type=int, default=0)
    ap.add_argument("--rampgap", type=int, default=0)
    ap.add_argument("--pad", type=int, default=0)
    ap.add_argument("--out4", type=int, default=1)
    ap.add_argument("--pw_at", type=int, default=12)
    ap.add_argument("--nt", type=int, default=0)
    ap.add_argument("--sched", default="2,1,1")
    ap.add_argument("--rot", type=int, default=0)
    ap.add_argument("--hs_at", type=int, default=-1)
    ap.add_argument("--probe", type=int, default=0)
    ap.add_argument("--vpol", default=None)
    ap.add_argument("--hs", default="loader")
    ap.add_argument("--setup", default="early")
    ap.add_argument("--tsout", type=int, default=0)
    ap.add_argument("--pts", type=int, default=0)
    ap.add_argument("--exp_x1", type=int, default=0)
    ap.add_argument("--exp_2x", type=int, default=0)
    ap.add_argument("--prewarm", default="")
    ap.add_argument("--linear", type=int, default=0)
    ap.add_argument("--trace", type=int, default=0)
    ap.add_argument("--pollpol", default="nt")
    ap.add_argument("--stalepol", default="")
    ap.add_argument("--dot", type=int, default=1)
    ap.add_argument("--flagpol", default="")
    ap.add_argument("--depth", type=int, default=3)
    ap.add_argument("--init_pairs", type=int, default=2)
    ap.add_argument("--force_slow", type=int, default=0)
    ap.add_argument("--force_fb", type=int, default=0)
    opt = ap.parse_args()
    open(opt.o, "w").write(gen(opt))
```

```python
import sys, argparse, struct, math
from body import *

KN = "standalone__gqa_softmax__near_ridge_kernel"
NSLOT = 8
RING = NSLOT * SLOT
QBASE = RING
QPITCH = 288
QWAVE = 16 * QPITCH
RBASE = QBASE + 4 * QWAVE
RPITCH = 1088
LDS_BYTES = RBASE + 4 * RPITCH

WS_ML = 16 << 20
WS_FLAG = 24 << 20
WS_TS = 32 << 20
C_SCALE = struct.unpack("<I", struct.pack("<f", math.log2(math.e) / math.sqrt(128.0)))[0]
NTS = 16


HEADER = """
GQA attention (B8 Hq32 Hkv8 Sq48 Sk2048 D128, bf16), hand-scheduled via gen/gen.py + gen/body.py.
kernarg: q, k, v, out, debug, ws.  256 workgroups = 64 (batch, kv head) pairs x 4 key chunks of 512 keys.
Waves 0-3 compute (one q head = 48 rows each, S^T = K Q^T and O^T = V^T P^T with 16x16x32 MFMA),
waves 4-7 stream K/V tiles into an 8-slot LDS ring with LDS-DMA.
Softmax reference: row max over the first 16 keys of the pair (same in all 4 chunks); the row sums are
checked at the end and a wave whose reference was unsafe recomputes its chunk with the true online max.
The 4 chunk partials are exchanged through ws (flags tagged against stale contents, hand-shake in debug;
device-scope accesses whenever the four workgroups are not known to share an XCD) and combined in place.
"""


class G:
    def __init__(self, opt):
        self.o = []
        self.opt = opt
    def __call__(self, s):
        if isinstance(s, list):
            for x in s: self(x)
            return
        for l in s.split("\n"):
            l = l.strip()
            if l:
                self.o.append(("" if l.endswith(":") else "    ") + l)
    def ts(self, idx):
        if self.opt.pts and idx >= 9:
            self.seen = getattr(self, "seen", set())
            if idx in self.seen: return
            self.seen.add(idx)
        if self.opt.ts:
            self(f"s_memrealtime s[{64+2*idx}:{65+2*idx}]" if self.opt.ts == 2 else f"s_memtime s[{64+2*idx}:{65+2*idx}]")
    def ts_store(self, widx):
        if not self.opt.ts: return
        self("s_waitcnt vmcnt(0) lgkmcnt(0)")
        if self.opt.probe:
            if widx == 0:
                i = self.opt.probe
                self(f"s_sub_u32 s40, s{64+2*i}, s64\ns_lshl_b32 s40, s40, 3")
                self("L_probe:\ns_sleep 8\ns_memrealtime s[42:43]\ns_waitcnt lgkmcnt(0)\ns_sub_u32 s41, s42, s64\ns_cmp_lt_u32 s41, s40\ns_cbranch_scc1 L_probe")
            return
        if self.opt.tsout:
            self("s_mov_b32 s28, s10\ns_mov_b32 s29, s11\ns_mov_b32 s30, 0x300000\ns_mov_b32 s31, 0x20000")
            self("s_lshl_b32 s42, s2, 3\ns_add_u32 s42, s42, s18\ns_lshl_b32 s42, s42, 6")
            for i in range(1, NTS):
                self(f"s_sub_u32 s{64+2*i}, s{64+2*i}, s64")
            self("v_mov_b32 v1, 0")
            for i in range(NTS):
                self(f"v_writelane_b32 v1, s{64+2*i}, {i}")
            self("v_and_b32 v1, 0x3fff, v1")
            self("v_lshrrev_b32 v2, 6, v1\nv_and_b32 v3, 63, v1\nv_cvt_f32_u32 v2, v2\nv_cvt_f32_u32 v3, v3\nv_cvt_pk_bf16_f32 v2, v2, v3")
            self("v_mbcnt_lo_u32_b32 v4, -1, 0\nv_lshlrev_b32 v4, 2, v4")
            self("s_mov_b64 exec, 0xffff")
            self("buffer_store_dword v2, v4, s[28:31], s42 offen")
            return
        self("s_mov_b32 s28, s14\ns_mov_b32 s29, s15\ns_mov_b32 s30, 0x10000000\ns_mov_b32 s31, 0x20000")
        self("s_lshl_b32 s42, s2, 3")
        self("s_add_u32 s42, s42, s18")
        self("s_lshl_b32 s42, s42, 6")
        self(f"s_add_u32 s42, s42, {WS_TS}")
        for i in range(NTS):
            self(f"v_mov_b32 v1, s{64+2*i}")
            self(f"buffer_store_dword v1, off, s[28:31], s42 offset:{4*i}")
            self("s_nop 1")


def xlane(g, a, t, op):
    g(f"v_mov_b32 v{t}, v{a}")
    g("s_nop 1")
    g(f"v_permlane32_swap_b32 v{a}, v{t}")
    g("s_nop 1")
    g(f"{op} v{a}, v{a}, v{t}")
    g(f"v_mov_b32 v{t}, v{a}")
    g("s_nop 1")
    g(f"v_permlane16_swap_b32 v{a}, v{t}")
    g("s_nop 1")
    g(f"{op} v{a}, v{a}, v{t}")


def xlane3(g, regs, tmps, op):
    for sw in ("v_permlane32_swap_b32", "v_permlane16_swap_b32"):
        for a, t in zip(regs, tmps): g(f"v_mov_b32 v{t}, v{a}")
        g("s_nop 0")
        for a, t in zip(regs, tmps): g(f"{sw} v{a}, v{t}")
        g("s_nop 0")
        for a, t in zip(regs, tmps): g(f"{op} v{a}, v{a}, v{t}")


def slow_path(g, opt):
    g("L_slow:")
    g("s_lshl_b32 s38, s16, 19")
    g("s_lshl_b32 s39, s17, 17")
    g("s_add_u32 s38, s38, s39")
    g("s_add_u32 s20, s6, s38\ns_addc_u32 s21, s7, 0\ns_mov_b32 s22, 0x20000\ns_mov_b32 s23, 0x20000")
    g("s_add_u32 s96, s8, s38\ns_addc_u32 s97, s9, 0\ns_mov_b32 s98, 0x20000\ns_mov_b32 s99, 0x20000")
    g("s_movk_i32 s38, 0x1000\ns_movk_i32 s39, 0x2000")
    g(f"v_mbcnt_lo_u32_b32 v{TMP2}, -1, 0")
    g(f"v_mbcnt_hi_u32_b32 v{TMP2}, -1, v{TMP2}")
    addr_setup(g, TMP2, 96)
    g("s_cmp_eq_u32 s19, 3\ns_cselect_b32 s42, 8, s19")
    g(f"s_mul_i32 s42, s42, {SLOT}")
    g(f"v_add_u32 v{KADDR}, s42, v{KADDR}")
    g(f"v_add_u32 v{VADDR}, s42, v{VADDR}")
    g(f"v_lshlrev_b32 v{TMP2}, 4, v{TMP2}")
    g("s_lshl_b32 s43, s17, 6")
    g(f"v_xor_b32 v{TMP3}, s43, v{TMP2}")
    for i in range(96): g(f"v_mov_b32 v{i}, 0")
    for i in range(6): g(f"v_mov_b32 v{L0+i}, 0")
    for b in range(3): g(f"v_mov_b32 v{C0+4*b}, 0x7f000000")
    g("s_mov_b32 s44, 0")
    g("L_slow_loop:")
    g("s_mov_b32 s45, s44")
    g("s_mov_b32 s46, s42")
    g("L_slow_ld:")
    g("s_mov_b32 m0, s46")
    g(f"s_add_u32 s47, s46, {TILE}")
    g(f"buffer_load_dwordx4 v{TMP2}, s[20:23], s45 offen lds")
    g("s_mov_b32 m0, s47")
    g(f"s_add_u32 s46, s46, {PIECE}")
    g(f"buffer_load_dwordx4 v{TMP3}, s[96:99], s45 offen lds")
    g("s_add_u32 s45, s45, 1024")
    g("s_and_b32 s47, s45, 0x1fff")
    g("s_cbranch_scc1 L_slow_ld")
    g("s_waitcnt vmcnt(0)")
    for i in range(8): g(kread(i, 0))
    for r in range(16): g(vread(r, 0))
    g("s_waitcnt lgkmcnt(0)")
    for b in range(3):
        c = C0 + 4 * b
        s = lambda i: f"v{S(0, i)}"
        for kb in range(2):
            for st in range(4):
                cc = "0" if st == 0 else Sq(0, kb)
                g(f"v_mfma_f32_16x16x32_bf16 {Sq(0,kb)}, {Ka(kb,st)}, {Qa(b,st)}, {cc}")
        g("s_nop 7")
        g(f"v_max3_f32 v{TMP0}, {s(0)}, {s(1)}, {s(2)}")
        g(f"v_max3_f32 v{TMP0}, v{TMP0}, {s(3)}, {s(4)}")
        g(f"v_max3_f32 v{TMP0}, v{TMP0}, {s(5)}, {s(6)}")
        g(f"v_max3_f32 v{TMP0}, v{TMP0}, {s(7)}, -v{c}")
        xlane(g, TMP0, TMP1, "v_max_f32")
        g(f"v_add_f32 v{TMP1}, v{c}, v{TMP0}")
        g(f"v_exp_f32 v{TMP1}, -v{TMP1}")
        g(f"v_sub_f32 v{c}, 0, v{TMP0}")
        for i in range(8): g(f"v_sub_f32 {s(i)}, {s(i)}, v{TMP0}")
        for i in range(8): g(f"v_exp_f32 {s(i)}, {s(i)}")
        g(f"v_mul_f32 v{L0+2*b}, v{L0+2*b}, v{TMP1}")
        for db in range(8):
            for r in range(4): g(f"v_mul_f32 v{O(db,b,r)}, v{O(db,b,r)}, v{TMP1}")
        for i in range(4): g(f"v_cvt_pk_bf16_f32 v{P(0,i)}, {s(2*i)}, {s(2*i+1)}")
        for i in range(8): g(f"v_add_f32 v{L0+2*b}, v{L0+2*b}, {s(i)}")
        for db in range(8):
            g(f"v_mfma_f32_16x16x32_bf16 {Oq(db,b)}, {Va(db)}, {Pq(0)}, {Oq(db,b)}")
    g("s_add_u32 s44, s44, 0x2000")
    g("s_cmp_lt_u32 s44, 0x20000")
    g("s_cbranch_scc1 L_slow_loop")
    g("s_nop 7")
    xlane3(g, [L0, L0 + 2, L0 + 4], [TMP0, TMP1, TMP2], "v_add_f32")
    g(f"v_mbcnt_lo_u32_b32 v{TMP3}, -1, 0")
    g(f"v_mbcnt_hi_u32_b32 v{TMP3}, -1, v{TMP3}")
    g(f"v_lshlrev_b32 v{TMP3}, 4, v{TMP3}")
    g(f"v_and_b32 v{TMP2}, 0xf0, v{TMP3}")
    g(f"v_mov_b32 v{TMP0}, 0")
    g(f"v_mov_b32 v100, v{C0}\nv_mov_b32 v101, v{C0+4}\nv_mov_b32 v102, v{C0+8}\nv_mov_b32 v103, 0")
    g(f"buffer_store_dwordx4 v[100:103], v{TMP2}, s[28:31], s59 offen offset:256 sc1")
    g(f"v_mov_b32 v96, v{L0}\nv_mov_b32 v97, v{L0+2}\nv_mov_b32 v98, v{L0+4}\nv_mov_b32 v99, 1")
    g(f"buffer_store_dwordx4 v[96:99], v{TMP2}, s[28:31], s59 offen sc1")
    for b in range(3):
        for x in range(1, 4):
            g(pack_ops(x, b))
            g(pay_store(x, b, opt))
    g("s_branch L_sent")


def pack_ops(x, b):
    o, p = O(2 * x, b), O(2 * x + 1, b)
    return [f"v_cvt_pk_bf16_f32 v{o}, v{o}, v{o+1}", f"v_cvt_pk_bf16_f32 v{o+1}, v{o+2}, v{o+3}",
            f"v_cvt_pk_bf16_f32 v{o+2}, v{p}, v{p+1}", f"v_cvt_pk_bf16_f32 v{o+3}, v{p+2}, v{p+3}"]

def pay_store(x, b, opt, pol=None):
    if pol is None and (opt.sc1b >> b) & 1: pol = "sc1"
    return f"buffer_store_dwordx4 {Oq(2*x, b)}, v{TMP3}, s[28:31], s{55+x} offen offset:{b*1024} {opt.stpol if pol is None else pol}"


def addr_setup(g, lane, t):
    g(f"v_and_b32 v{t}, 7, v{lane}")
    g(f"v_mul_u32_u24 v{t}, {PIECE}, v{t}")
    g(f"v_bfe_u32 v{t+1}, v{lane}, 3, 1")
    g(f"v_lshlrev_b32 v{t+1}, 8, v{t+1}")
    g(f"v_and_b32 v{t+2}, 48, v{lane}")
    g(f"v_add3_u32 v{KADDR}, v{t}, v{t+1}, v{t+2}")
    g(f"v_bfe_u32 v{t}, v{lane}, 2, 3")
    g(f"v_mul_u32_u24 v{t}, {PIECE}, v{t}")
    g(f"v_lshrrev_b32 v{t+1}, 5, v{lane}")
    g(f"v_lshlrev_b32 v{t+1}, 8, v{t+1}")
    g(f"v_and_b32 v{t+3}, 3, v{lane}")
    g(f"v_lshlrev_b32 v{t+3}, 3, v{t+3}")
    g(f"v_add3_u32 v{VADDR}, v{t}, v{t+1}, v{t+3}")
    g(f"v_add_u32 v{VADDR}, {TILE}, v{VADDR}")


def gen(opt):
    g = G(opt)
    kvpol, qpol = opt.kvpol, opt.qpol
    vpol = opt.vpol if opt.vpol is not None else kvpol
    for l in HEADER.strip().split("\n"): g.o.append("; " + l)
    g.o.append(f"; @launch grid=(256,1,1) block=(512,1,1) lds={LDS_BYTES}")
    g.o.append('.amdgcn_target "amdgcn-amd-amdhsa--gfx950"')
    g.o.append(".text")
    g.o.append(f".globl {KN}")
    g.o.append(".p2align 8")
    g.o.append(f".type {KN},@function")
    g(f"{KN}:")
    g("s_load_dwordx8 s[4:11], s[0:1], 0")
    g("s_load_dwordx4 s[12:15], s[0:1], 32")
    g.ts(0)
    g("s_cmp_ge_u32 s2, 256")
    g("s_cbranch_scc1 L_end")
    g("v_lshrrev_b32 v1, 6, v0")
    g("s_and_b32 s16, s2, 7")
    g("s_lshr_b32 s17, s2, 3")
    g("v_readfirstlane_b32 s18, v1")
    g("s_lshl_b32 s16, s16, 3")
    g("s_lshr_b32 s19, s17, 2")
    g("s_add_u32 s16, s16, s19")
    g("s_and_b32 s17, s17, 3")
    if opt.linear:
        g("s_lshr_b32 s16, s2, 2\ns_and_b32 s17, s2, 3")
    g(f"v_and_b32 v{TMP2}, 63, v0")
    g(f"v_lshlrev_b32 v{TMP3}, 4, v{TMP2}")
    g("s_and_b32 s19, s18, 3")
    g("s_mov_b32 s23, 0x20000")
    g("s_mov_b32 s27, 0x20000")
    g("s_mov_b32 s31, 0x20000")
    if opt.peel:
        QR = lambda li: O(li % 4, 1) if li < 4 else O(li - 4, 2)
    else:
        QR = lambda li: 4 * li
    def q_issue():
        g("s_waitcnt lgkmcnt(0)")
        g("s_add_u32 s20, s4, s37")
        g("s_addc_u32 s21, s5, 0")
        for i in range(4 if opt.qoff else 12):
            so = ["0", "s38", "s39"][i // 4]
            g(f"buffer_load_dwordx4 v[{QR(i)}:{QR(i)+3}], v{TMP3}, s[20:23], {so} offen offset:{(i%4)*1024} {qpol}")
        g("s_barrier")
    def q_pre():
        g("s_lshl_b32 s36, s16, 2")
        g("s_add_u32 s36, s36, s19")
        g("s_mul_i32 s37, s36, 12288")
        g("s_mov_b32 s22, 12288")
        g("s_movk_i32 s38, 0x1000")
        g("s_movk_i32 s39, 0x2000")
    if opt.qfirst:
        g("s_cmp_ge_u32 s18, 4")
        g("s_cbranch_scc1 L_loader")
        q_pre()
        q_issue()
        g("s_branch L_compute")
        g("L_loader:")
    else:
        g("s_cmp_lt_u32 s18, 4")
        g("s_cbranch_scc1 L_compute")

    g("s_lshl_b32 s36, s19, 11")
    g("s_lshl_b32 s37, s17, 6")
    g(f"v_xor_b32 v2, s37, v{TMP3}")
    g(f"v_add_u32 v1, s36, v{TMP3}")
    g("v_add_u32 v2, s36, v2")
    g("s_lshl_b32 s38, s16, 19")
    g("s_lshl_b32 s39, s17, 17")
    g("s_add_u32 s39, s38, s39")
    g(f"s_mul_i32 s42, s19, {2*PIECE}")
    g("s_mov_b32 s22, 0x20000")
    g("s_mov_b32 s26, 0x20000")
    g("s_movk_i32 s30, 0x1000")
    g(f"s_mul_i32 s44, s19, {RPITCH}")
    g(f"s_add_u32 m0, s44, {RBASE}")
    g(f"v_and_b32 v5, 48, v{TMP2}")
    g(f"v_xor_b32 v5, v5, v{TMP3}")
    g("s_lshl_b32 s45, s19, 10")
    if opt.rot:
        g(f"s_lshr_b32 s41, s2, {opt.rot - 1}\ns_and_b32 s41, s41, 15\ns_lshl_b32 s41, s41, 13")
    else:
        g("s_mov_b32 s41, 0")
    g("s_lshl_b32 s46, s16, 9")
    g("s_lshl_b32 s47, s17, 2")
    g("s_add_u32 s46, s46, s47")
    g(f"s_add_u32 s46, s46, {WS_FLAG}")
    g(f"v_and_b32 v3, 3, v{TMP2}")
    g("v_lshlrev_b32 v3, 7, v3")
    g(f"v_lshlrev_b32 v13, 2, v{TMP2}")
    g("s_mov_b32 s34, 0x10000000")
    g("s_mov_b32 s35, 0x20000")
    g("s_mov_b32 s50, 256")
    g("s_mov_b32 s51, 0x20000")
    if opt.cpf:
        g(f"s_cmp_ge_u32 s2, {8*opt.cpf}")
        g("s_cbranch_scc1 L_nocpf")
        g("s_getpc_b64 s[52:53]")
        g("L_pc:")
        if opt.cpf_from:
            g(f"s_add_u32 s52, s52, {opt.cpf_from}-L_pc")
            g("s_addc_u32 s53, s53, 0")
            g(f"s_mov_b32 s54, {opt.cpf_to}-{opt.cpf_from}")
        else:
            g(f"s_sub_u32 s52, s52, L_pc-{KN}")
            g("s_subb_u32 s53, s53, 0")
            g(f"s_mov_b32 s54, L_code_end-{KN}")
        g("s_mov_b32 s55, 0x20000")
        g("s_lshr_b32 s56, s2, 3\ns_lshl_b32 s56, s56, 2\ns_add_u32 s56, s56, s19\ns_lshl_b32 s56, s56, 10")
        g(f"buffer_load_dwordx4 v[20:23], v{TMP3}, s[52:55], s56 offen")
        if opt.cpf2:
            a, b = opt.cpf2.split(":")
            g(f"s_sub_u32 s52, s52, {opt.cpf_from}-{a}")
            g("s_subb_u32 s53, s53, 0")
            g(f"s_mov_b32 s54, {b}-{a}")
            g(f"buffer_load_dwordx4 v[24:27], v{TMP3}, s[52:55], s56 offen")
        g("L_nocpf:")
    g("s_waitcnt lgkmcnt(0)")
    g("s_add_u32 s28, s6, s38")
    g("s_addc_u32 s29, s7, 0")
    g("buffer_load_dwordx4 v5, s[28:31], s45 offen lds")
    g(f"s_add_u32 m0, s42, {7*SLOT}")
    g("s_add_u32 s20, s6, s39")
    g("s_addc_u32 s21, s7, 0")
    g(f"buffer_load_dwordx4 v1, s[20:23], s41 offen {kvpol} lds")
    g(f"s_add_u32 m0, s42, {7*SLOT+32}")
    g("s_add_u32 s24, s8, s39")
    g("s_addc_u32 s25, s9, 0")
    g(f"buffer_load_dwordx4 v1, s[20:23], s41 offen offset:1024 {kvpol} lds")
    g("s_mov_b32 s32, s14")
    g("s_mov_b32 s33, s15")
    g("s_mov_b32 s48, s12")
    g("s_mov_b32 s49, s13")
    if opt.hs == "loader":
        g("s_cmp_lg_u32 s19, 0")
        g("s_cbranch_scc1 L_nohs1")
        g(f"buffer_load_dword v4, v3, s[32:35], s46 offen {opt.stalepol}")
        g("L_nohs1:")
    if opt.qoff:
        g("s_lshl_b32 s36, s16, 2\ns_add_u32 s36, s36, s19\ns_mul_i32 s36, s36, 12288")
        g("s_add_u32 s56, s4, s36\ns_addc_u32 s57, s5, 0\ns_mov_b32 s58, 12288\ns_mov_b32 s59, 0x20000")
        g("s_movk_i32 s36, 0x1000\ns_movk_i32 s37, 0x2000")
        for i in range(8):
            g(f"buffer_load_dwordx4 v[{32+4*i}:{35+4*i}], v{TMP3}, s[56:59], {['s36','s37'][i//4]} offen offset:{(i%4)*1024} {qpol}")
    g("s_barrier")
    g.ts(1)
    def qoff_scale(b):
        if b == 1:
            g(f"v_lshrrev_b32 v18, 4, v{TMP2}\nv_mul_u32_u24 v18, {QPITCH}, v18\nv_and_b32 v19, 0xf0, v{TMP3}")
            g(f"s_mul_i32 s36, s19, {2*QWAVE}\ns_add_u32 s36, s36, {4*SLOT}\nv_add3_u32 v18, v18, v19, s36")
            g(f"s_mov_b32 s60, 0x{C_SCALE:08x}\ns_mov_b32 s61, 0x{C_SCALE:08x}\ns_mov_b32 s62, 0xffff0000")
        for i in range(4):
            li = (b - 1) * 4 + i
            x = 32 + 4 * li
            g(f"s_waitcnt vmcnt({len(queue) - 1 - li})")
            for r in range(4): g(f"v_lshlrev_b32 v{64+2*r}, 16, v{x+r}\nv_and_b32 v{65+2*r}, s62, v{x+r}")
            for r in range(4): g(f"v_pk_mul_f32 v[{64+2*r}:{65+2*r}], v[{64+2*r}:{65+2*r}], s[60:61]")
            for r in range(4): g(f"v_cvt_pk_bf16_f32 v{x+r}, v{64+2*r}, v{65+2*r}")
            g(f"ds_write_b128 v18, v[{x}:{x+3}] offset:{(b-1)*QWAVE + i*4*QPITCH}")
        g("s_waitcnt lgkmcnt(0)")
    def hs2():
        if opt.hs != "loader": return
        g("s_cmp_lg_u32 s19, 0")
        g("s_cbranch_scc1 L_nohs2")
        g("v_and_b32 v4, 1, v4")
        g("v_cmp_eq_u32 vcc, 0, v4")
        g("s_getreg_b32 s46, hwreg(HW_REG_XCC_ID)")
        g("s_and_b32 s46, s46, 7")
        g("s_lshl_b32 s46, s46, 4")
        g("s_and_b32 s47, vcc_lo, 15")
        g("s_or_b32 s46, s46, s47")
        g("s_or_b32 s46, s46, 0x80")
        if opt.hsbyte:
            g("v_mov_b32 v4, s46")
            g("s_lshl_b32 s47, s16, 2\ns_add_u32 s47, s47, s17")
            g("s_mov_b64 exec, 1")
            g("buffer_store_byte v4, off, s[48:51], s47 sc1")
            g("s_mov_b64 exec, -1")
        else:
            g("s_lshl_b32 s47, s17, 3")
            g("s_lshl_b32 s46, s46, s47")
            g("v_mov_b32 v4, s46")
            g("s_lshl_b32 s47, s16, 2")
            g("s_mov_b64 exec, 1")
            g("buffer_atomic_or v4, off, s[48:51], s47 sc1")
            g("s_mov_b64 exec, -1")
        g("L_nohs2:")
    def pair(u, mid=None):
        slot = (u & 7) * SLOT
        if u < 15:
            g(f"s_add_u32 m0, s42, {slot}")
            g("s_add_u32 s40, s41, 0x2000")
            if opt.rot: g("s_and_b32 s40, s40, 0x1ffff")
        order = opt.suborder
        ld = []
        if u < 15:
            ld.append((slot, f"buffer_load_dwordx4 v1, s[20:23], s40 offen {kvpol} lds"))
            ld.append((slot + 32, f"buffer_load_dwordx4 v1, s[20:23], s40 offen offset:1024 {kvpol} lds"))
        lv = [(slot + TILE, f"buffer_load_dwordx4 v2, s[24:27], s41 offen {vpol} lds"),
              (slot + TILE + 32, f"buffer_load_dwordx4 v2, s[24:27], s41 offen offset:1024 {vpol} lds")]
        ld = lv + ld if order else ld + lv
        for i, (m, ins) in enumerate(ld):
            if mid and i in mid: g("s_barrier")
            if i or order or u == 15:
                g(f"s_add_u32 m0, s42, {m}")
                g("s_nop 0")
            g(ins)
        g("s_mov_b32 s41, s40")
    sched = [int(x) for x in opt.sched.split(",")]
    cnt = [0]
    def tr():
        if not opt.trace: return
        g("s_memrealtime s[60:61]\ns_waitcnt lgkmcnt(0)")
        g(f"v_writelane_b32 v10, s60, {cnt[0]}")
        cnt[0] += 1
    if opt.trace:
        g("s_waitcnt lgkmcnt(0)")
        g("v_writelane_b32 v10, s64, 63")
    issued = [0]
    queue = [-0.5] * 8 if opt.qoff else []
    def issue(n, limit, mid=None):
        for _ in range(n):
            u = issued[0]
            if u >= 16 or u > limit: break
            pair(u, mid); issued[0] += 1
            queue.extend([u] * (4 if u < 15 else 2))
    def wait_for(t):
        n = sum(1 for x in queue if x > t)
        g(f"s_waitcnt vmcnt({n})")
    pwe = [int(x) for x in opt.pwe.split(",")] if opt.pwe else []
    def early_pw(t):
        for i, tt in enumerate(pwe):
            if tt != t: continue
            tag = issued[0] if issued[0] < 16 else 99
            if i == 0:
                g("s_lshl_b32 s57, s16, 2\ns_add_u32 s57, s57, s19\ns_lshl_b32 s57, s57, 2\ns_add_u32 s57, s57, s17")
                g(f"s_lshl_b32 s58, s57, 9\ns_add_u32 s58, s58, {WS_ML}")
                g(f"v_and_b32 v16, 31, v{TMP2}\nv_lshlrev_b32 v16, 6, v16")
                g("buffer_load_dword v12, v13, s[32:35], s58 offen")
                queue.append(tag)
            g(f"s_xor_b32 s58, s57, {i+1}\ns_mul_i32 s58, s58, 9216\ns_add_u32 s58, s58, {i*3072}")
            if opt.pwlite:
                g("buffer_load_dword v17, v16, s[32:35], s58 offen offset:1024")
                queue.append(tag)
            else:
                for k in (1, 2):
                    g(f"buffer_load_dwordx4 v[{28+4*k}:{31+4*k}], v{TMP3}, s[32:35], s58 offen offset:{k*1024}")
                    queue.append(tag)
    issue(sched[0], 6)
    early_pw(-2)
    tr(); g.ts(2)
    wait_for(-1)
    tr(); g.ts(3)
    g("s_barrier")
    tr()
    if opt.qoff:
        qoff_scale(1)
        g("s_barrier")
        qoff_scale(2)
    issue(sched[1], 6)
    early_pw(-1)
    if opt.hs_at < 0: hs2()
    for t in range(16):
        tr()
        assert issued[0] > t
        wait_for(t)
        tr()
        g("s_barrier")
        tr()
        mid = None
        if t < 2 * opt.sub:
            assert sched[min(t + 2, len(sched) - 1)] == 1 and issued[0] < 15
            mid = (2, 3) if t < 2 * opt.sub - 1 else (2,)
        issue(sched[min(t + 2, len(sched) - 1)], t + 7, mid)
        early_pw(t)
        if t == opt.hs_at:
            hs2()
        if opt.prewarm is not None and t == opt.pw_at - 4:
            g("s_lshl_b32 s47, s16, 2")
            g("buffer_load_dword v14, off, s[48:51], s47 sc1")
            queue.append(issued[0] - 1)
        if opt.prewarm is not None and opt.pw_at <= t < opt.pw_at + 3:
            i = t - opt.pw_at
            if i == 0:
                g("v_readfirstlane_b32 s36, v14")
                g("s_lshr_b32 s37, s36, 8\ns_xor_b32 s37, s37, s36\ns_and_b32 s37, s37, 0x00f0f0f0")
                g("s_andn2_b32 s36, 0x80, s36\ns_or_b32 s37, s37, s36")
                if opt.pw_always: g("s_cmp_eq_u32 s37, 0x12345")
                g("s_cselect_b32 s34, 0, s34")
                g("s_lshl_b32 s36, s16, 2\ns_add_u32 s36, s36, s19\ns_lshl_b32 s36, s36, 2\ns_add_u32 s36, s36, s17")
                g(f"s_lshl_b32 s38, s36, 9\ns_add_u32 s38, s38, {WS_ML}")
                g(f"buffer_load_dword v12, v{TMP2}, s[32:35], s38 offen {opt.prewarm}".replace(f"v{TMP2},", "v13,"))
                queue.append(99)
            g(f"s_xor_b32 s37, s36, {i+1}\ns_mul_i32 s37, s37, 9216\ns_add_u32 s37, s37, {i*3072}")
            if opt.pwlite:
                assert opt.sc1b == 1
                if i == 0: g(f"v_and_b32 v16, 31, v{TMP2}\nv_lshlrev_b32 v16, 6, v16")
                g(f"buffer_load_dword v17, v16, s[32:35], s37 offen offset:1024 {opt.prewarm}")
                queue.append(99)
            else:
                for k in range(3):
                    if (opt.sc1b >> k) & 1: continue
                    g(f"buffer_load_dwordx4 v[{16+4*k}:{19+4*k}], v{TMP3}, s[32:35], s37 offen offset:{k*1024} {opt.prewarm}")
                    queue.append(99)
    if opt.trace:
        g("s_mov_b32 s28, s14\ns_mov_b32 s29, s15\ns_mov_b32 s30, 0x10000000\ns_mov_b32 s31, 0x20000")
        g("s_lshl_b32 s42, s2, 2\ns_add_u32 s42, s42, s19\ns_lshl_b32 s42, s42, 8")
        g(f"s_add_u32 s42, s42, {WS_TS + (1<<20)}")
        g(f"v_lshrrev_b32 v11, 2, v{TMP3}")
        g("buffer_store_dword v10, v11, s[28:31], s42 offen")
    if opt.lpf:
        g("s_sub_u32 s37, s37, 9216\ns_add_u32 s38, s37, 3072\ns_add_u32 s39, s37, 6144")
        for i, pt in enumerate(opt.lpf.split(",")):
            g("s_barrier")
            for k in ([i] if len(opt.lpf.split(",")) > 1 else [0, 1]):
                for x in range(3):
                    g(f"buffer_load_dwordx4 v[{16+4*x}:{19+4*x}], v{TMP3}, s[32:35], s{37+x} offen offset:{k*1024}")
    if opt.wb:
        g(f"s_lshr_b32 s36, s2, 3\ns_and_b32 s36, s36, {opt.wb - 1}\ns_or_b32 s36, s36, s19")
        g("s_cbranch_scc1 L_nowb")
        g("s_barrier")
        g("buffer_wbl2 sc1")
        g("L_nowb:")
    g.ts_store(1)
    g("s_endpgm")

    g("L_compute:")
    if not opt.qfirst: q_pre()
    def setup():
        addr_setup(g, TMP2, 100)
        g(f"s_mul_i32 s42, s19, {QWAVE}")
        g(f"s_add_u32 s42, s42, {QBASE}")
        g(f"v_lshrrev_b32 v103, 4, v{TMP2}")
        g(f"v_mul_u32_u24 v105, {QPITCH}, v103")
        g(f"v_and_b32 v107, 15, v{TMP2}")
        g("v_lshlrev_b32 v108, 4, v107")
        g("v_add3_u32 v105, v105, v108, s42")
        g(f"v_mul_u32_u24 v106, {QPITCH}, v107")
        g("v_add3_u32 v106, v106, v102, s42")
        g(f"v_bfe_u32 v107, v{TMP2}, 2, 2")
        g(f"v_mul_u32_u24 v107, {RPITCH}, v107")
        g(f"v_and_b32 v109, 3, v{TMP2}")
        g("v_xor_b32 v110, v109, v103")
        g("v_lshlrev_b32 v110, 4, v110")
        g("v_lshlrev_b32 v109, 8, v109")
        g("v_add3_u32 v107, v107, v109, v110")
        g(f"v_add_u32 v107, {RBASE}, v107")
        g(f"v_and_b32 v111, 3, v{TMP2}")
        g("v_lshlrev_b32 v111, 7, v111")
        g("s_lshl_b32 s46, s16, 9\ns_lshl_b32 s47, s17, 2\ns_add_u32 s46, s46, s47")
        g(f"s_add_u32 s47, s46, {WS_FLAG}")
        g("s_cmp_eq_u32 s19, 0\ns_cselect_b32 s63, 2, 99")
        g(f"v_mov_b32 v{TMP2}, v108")
        if opt.peel:
            g(f"v_mov_b32 v{C0+8}, v105\nv_mov_b32 v{C0+9}, v106\nv_mov_b32 v{C0+10}, v107")
        else:
            for i in range(48, 96): g(f"v_mov_b32 v{i}, 0")
        for i in range(6): g(f"v_mov_b32 v{L0+i}, 0")
        g(f"s_mov_b32 s52, 0x{C_SCALE:08x}")
        g(f"s_mov_b32 s53, 0x{C_SCALE:08x}")
        g("s_mov_b32 s51, 0xffff0000")
        g(f"v_add_u32 v{TMP0}, {7*SLOT}, v{KADDR}")
        g(f"s_mov_b32 s54, {2*SLOT}")
        g("s_mov_b32 s44, 0")
        if opt.thr: g("s_mov_b32 s70, 0\ns_mov_b32 s71, 0")
        g("s_lshl_b32 s40, s36, 2")
        for x in range(1, 4):
            g(f"s_xor_b32 s42, s17, {x}")
            g("s_add_u32 s42, s42, s40")
            g(f"s_mul_i32 s{55+x}, s42, 9216")
            if x > 1: g(f"s_add_u32 s{55+x}, s{55+x}, {(x-1)*3072}")
        g("s_add_u32 s42, s40, s17")
        g("s_lshl_b32 s59, s42, 9")
        g(f"s_add_u32 s59, s59, {WS_ML}")
        g("s_mul_i32 s60, s42, 9216")
        g("s_lshl_b32 s61, s36, 7")
        g(f"s_add_u32 s61, s61, {WS_FLAG}")
        g("s_lshl_b32 s62, s16, 2")
        g("s_mov_b32 s26, 12288")
        g("s_mov_b32 s30, 0x10000000")
        g("s_mov_b32 s34, 256")
        g("s_mov_b32 s35, 0x20000")
        g("s_mov_b32 s48, 0x3f80")
        g("s_mov_b32 s49, 0x3f800000")
    setup()
    g.ts(2)
    if not opt.qfirst: q_issue()
    g.ts(1)
    if opt.tsout:
        g("s_add_u32 s24, s14, s37\ns_addc_u32 s25, s15, 0\ns_add_u32 s24, s24, 0x2800000\ns_addc_u32 s25, s25, 0")
    else:
        g("s_add_u32 s24, s10, s37")
        g("s_addc_u32 s25, s11, 0")
    g("s_mov_b32 s28, s14")
    g("s_mov_b32 s29, s15")
    g("s_mov_b32 s32, s12")
    g("s_mov_b32 s33, s13")
    QX = 0
    if opt.hs == "loop":
        g(f"buffer_load_dword v{TMP1}, v111, s[28:31], s47 offen {opt.stalepol}")
        QX = 1
    def qscale_ops(b):
        out = []
        for i in range(4):
            li = b * 4 + i
            grp = [f"s_waitcnt vmcnt({11-li+QX})"]
            for r in range(4): grp += [f"v_lshlrev_b32 v{112+2*r}, 16, v{4*li+r}", f"v_and_b32 v{113+2*r}, s51, v{4*li+r}"]
            for r in range(4): grp.append(f"v_pk_mul_f32 v[{112+2*r}:{113+2*r}], v[{112+2*r}:{113+2*r}], s[52:53]")
            for r in range(4): grp.append(f"v_cvt_pk_bf16_f32 v{4*li+r}, v{112+2*r}, v{113+2*r}")
            grp.append(f"ds_write_b128 v105, v[{4*li}:{4*li+3}] offset:{i*4*QPITCH}")
            out.append(grp)
        out.append([f"ds_read_b128 {Qa(b,s)}, v106 offset:{64*s}" for s in range(4)])
        return out
    def pp_mfma(b, s):
        c = "0" if s == 0 else Cq(b)
        return f"v_mfma_f32_16x16x32_bf16 {Cq(b)}, {Va(s)}, {Qa(b,s)}, {c}"
    class Lst(list):
        def __call__(self, x): self.append(x)
    def peel_end(pv0):
        g([f"v_mov_b32 v{O(0,2)}, v{C0}", f"v_mov_b32 v{O(0,2)+1}, v{C0+4}", f"v_mov_b32 v{O(0,2)+2}, v{C0+8}",
           f"buffer_store_dwordx4 {Oq(0,2)}, v{TMP2}, s[28:31], s59 offen offset:256 sc1"])
        if opt.pts: g.ts(14)
        ph = (opt.phases.split(",")[0].split(":") + ["0"])[:5]
        sl = loop_body("add", rotated=True, vlast=int(ph[2], 16), klast=int(ph[3], 16), run=int(ph[1]))
        g(pv0(sl[2]))
        g.ts(6)
        g("s_branch L_k3")
    def peeled():
        QW, QRD, RF = C0 + 8, C0 + 9, C0 + 10
        def qs(b, temps):
            out = []
            for i in range(4):
                li = b * 4 + i
                x = QR(li)
                grp = [f"s_waitcnt vmcnt({(3 if opt.qoff else 11)-li})"]
                for r in range(4): grp += [f"v_lshlrev_b32 v{temps[r]}, 16, v{x+r}", f"v_and_b32 v{temps[r]+1}, s51, v{x+r}"]
                if b == 0:
                    for r in range(4): grp.append(f"v_pk_mul_f32 v[{temps[r]}:{temps[r]+1}], v[{temps[r]}:{temps[r]+1}], s[52:53]")
                else:
                    for r in range(4): grp += [f"v_mul_f32 v{temps[r]}, s52, v{temps[r]}", f"v_mul_f32 v{temps[r]+1}, s52, v{temps[r]+1}"]
                for r in range(4): grp.append(f"v_cvt_pk_bf16_f32 v{x+r}, v{temps[r]}, v{temps[r]+1}")
                grp.append(f"ds_write_b128 v{QW}, v[{x}:{x+3}] offset:{i*4*QPITCH}")
                out.append(grp)
            out.append([f"ds_read_b128 {Qa(b,s)}, v{QRD} offset:{64*s}" for s in range(4)])
            return out
        tP = [112, 114, 116, 118]
        tT = [O(0, 1), O(0, 1) + 2, O(1, 1), O(1, 1) + 2]
        def pp(b): return [f"v_mfma_f32_16x16x32_bf16 {Cq(b)}, {Oq(4+s,1)}, {Qa(b,s)}, {'0' if s == 0 else Cq(b)}" for s in range(4)]
        def qkraw(n): return [m.replace(Cq(n % 3), "0") for m in slot_mfmas(n + 5)[:8]]
        def pv0(ms):
            return [m.rsplit(",", 1)[0] + ", 0" if (m.startswith("v_mfma") and int(m.split("[")[1].split(":")[0]) < 96) else m for m in ms]
        def red(b):
            o = Lst(); c = C0 + 4 * b
            o += [f"v_max3_f32 v{c}, v{c}, v{c+1}, v{c+2}", f"v_max_f32 v{c}, v{c}, v{c+3}"]
            xlane(o, c, c + 1, "v_max_f32")
            return list(o)
        def neg(b): return [f"v_sub_f32 v{C0+4*b+i}, 0, v{C0+4*b}" for i in (1, 2, 3, 0)]
        def subs(n): return [f"v_sub_f32 v{S(n&1,i)}, v{S(n&1,i)}, v{C0+4*(n%3)}" for i in range(8)]
        def sm(n, lo, hi):
            d = softmax_ops(n + 6, "add")
            return sum((d[k] for k in range(lo, hi)), [])
        def inter(mf, fl, first=None):
            for i, m in enumerate(mf):
                g(m)
                if first and i in first: g(first[i])
                g(fl[i * len(fl) // len(mf):(i + 1) * len(fl) // len(mf)])
        for grp in qs(0, tP): g(grp)
        g.ts(4)
        g("L_ba:")
        g("s_barrier")
        g.ts(5)
        for s in range(4): g(f"ds_read_b128 {Oq(4+s,1)}, v{RF} offset:{64*s}")
        for i in range(8): g(f"ds_read_b128 {Ka(i//4,i%4)}, v{TMP0} offset:{(i//4)*512 + (i%4)*64}")
        if opt.qoff:
            QX = C0 + 11
            g(f"s_mul_i32 s40, s19, {QWAVE}\ns_sub_u32 s40, s40, {QBASE - 4*SLOT}")
            g(f"v_add_u32 v{QX}, s40, v{QRD}")
            qrd = lambda b: [f"ds_read_b128 {Qa(b,s)}, v{QX} offset:{(b-1)*QWAVE + 64*s}" for s in range(4)]
            g("s_waitcnt lgkmcnt(8)")
            g(pp(0))
            g("s_waitcnt lgkmcnt(0)")
            q0 = qkraw(0)
            g(q0[:6])
            inter(q0[6:], red(0))
            g("s_barrier")
            g(qrd(1))
            g("s_nop 1")
            g(subs(0) + sm(0, 8, 16))
            g("s_waitcnt lgkmcnt(0)")
            if opt.pts: g.ts(9)
            inter(pp(1) + qkraw(1), sm(0, 16, 24) + neg(0) + red(1))
            if opt.pts: g.ts(10)
            g("s_barrier")
            g(qrd(2))
            for r in range(16): g(vread(r, 0))
            g(subs(1) + sm(1, 8, 16))
            g("s_waitcnt lgkmcnt(8)")
            if opt.pts: g.ts(11)
            pv = pv0(slot_mfmas(6)[8:])
            inter(pv[:4], sm(1, 16, 20))
            g("s_waitcnt lgkmcnt(0)")
            inter(pv[4:], sm(1, 20, 24) + neg(1))
            if opt.pts: g.ts(12)
            q2m = qkraw(2)
            inter(pp(2) + q2m[:4], [], first={4 + i: kread(i, 0) for i in range(4)})
            inter(q2m[4:], red(2), first={i: kread(4 + i, 0) for i in range(4)})
            if opt.pts: g.ts(13)
            pv = pv0(slot_mfmas(7)[8:])
            g(pv[:3])
            inter(pv[3:], subs(2) + sm(2, 8, 16) + neg(2))
            peel_end(pv0)
            return
        q1 = qs(1, tP)
        g(q1[0])
        g("s_waitcnt lgkmcnt(1)")
        inter(pp(0) + qkraw(0), q1[1] + q1[2] + q1[3] + q1[4] + red(0))
        g(subs(0))
        g("s_waitcnt lgkmcnt(0)")
        if opt.pts: g.ts(9)
        q2 = qs(2, tT)
        inter(pp(1) + qkraw(1), sm(0, 8, 24) + q2[0])
        if opt.pts: g.ts(10)
        g("s_barrier")
        for r in range(16): g(vread(r, 0))
        g(q2[1])
        g("s_waitcnt lgkmcnt(9)")
        if opt.pts: g.ts(11)
        pv = pv0(slot_mfmas(6)[8:])
        inter(pv[:4], q2[2])
        g("s_waitcnt lgkmcnt(2)")
        inter(pv[4:], q2[3] + q2[4] + red(1))
        g(subs(1))
        g("s_waitcnt lgkmcnt(0)")
        if opt.pts: g.ts(12)
        inter(pp(2) + qkraw(2), sm(1, 8, 24) + neg(0) + neg(1), first={4 + i: kread(i, 0) for i in range(8)})
        if opt.pts: g.ts(13)
        inter(pv0(slot_mfmas(7)[8:]), red(2) + subs(2) + sm(2, 8, 16) + neg(2))
        peel_end(pv0)
    if opt.peel:
        peeled()
    else:
        for grp in qscale_ops(0): g(grp)
        g.ts(3)
        for grp in qscale_ops(1): g(grp)
        for grp in qscale_ops(2): g(grp)
        zero = [f"v_mov_b32 v{i}, 0" for i in range(48)]
        g(zero[:32])
        if opt.stag:
            g("s_lshr_b32 s40, s2, 3\ns_and_b32 s40, s40, 7")
            g("L_stag:\ns_cmp_eq_u32 s40, 0\ns_cbranch_scc1 L_stagd")
            g(f"s_sleep {opt.stag}\ns_sub_u32 s40, s40, 1\ns_branch L_stag\nL_stagd:")
        g.ts(4)
        g("L_ba:")
        g("s_barrier")
        g.ts(5)
        for s in range(4):
            g(f"ds_read_b128 {Va(s)}, v107 offset:{64*s}")
        k0r = [f"ds_read_b128 {Ka(kb,s)}, v{TMP0} offset:{kb*512 + s*64}" for kb in range(2) for s in range(4)]
        g(k0r[:4])
        g(zero[32:40])
        g("s_waitcnt lgkmcnt(4)")
        if opt.pts: g.ts(9)
        pm = [pp_mfma(b, s) for b in range(3) for s in range(4)]
        qk0 = [m.replace(Cq(0), "0") for m in slot_mfmas(5)[:8]]
        red = Lst()
        for b in range(3):
            c = C0 + 4 * b
            red += [f"v_max3_f32 v{c}, v{c}, v{c+1}, v{c+2}", f"v_max_f32 v{c}, v{c}, v{c+3}"]
        xlane3(red, [C0, C0 + 4, C0 + 8], [C0 + 1, C0 + 5, C0 + 9], "v_max_f32")
        for i in range(12):
            g(pm[i])
            if i < 4: g(k0r[4 + i])
            elif i < 8: g(zero[40 + 2 * (i - 4):42 + 2 * (i - 4)])
            elif i >= 10: g(red[2 * (i - 10):2 * (i - 10) + 2])
        if opt.pts: g.ts(10)
        g("s_waitcnt lgkmcnt(0)")
        rest = red[4:]
        for i in range(8):
            g(qk0[i])
            if i == 3: g("s_nop 2")
            if i >= 3: g(rest[(i - 3) * len(rest) // 5:(i - 2) * len(rest) // 5])
        if opt.pts: g.ts(11)
        g("s_barrier")
        if opt.pts: g.ts(12)
        for r in range(8): g(vread(r, 0))
        for i in range(8): g(f"v_sub_f32 v{S(0,i)}, v{S(0,i)}, v{C0}")
        smA = softmax_ops(6, "add")
        neg = []
        for b in (1, 2, 0):
            c = C0 + 4 * b
            for i in (1, 2, 3, 0):
                neg.append(f"v_sub_f32 v{c+i}, 0, v{c}")
        side = [f"v_mov_b32 v108, v{C0}", f"v_mov_b32 v109, v{C0+4}", f"v_mov_b32 v110, v{C0+8}",
                f"buffer_store_dwordx4 v[108:111], v{TMP2}, s[28:31], s59 offen offset:256 sc1"]
        for i in range(8):
            g(smA[8 + i])
            g(neg[i * 12 // 8:(i + 1) * 12 // 8])
        g(side)
        g.ts(6)
    if opt.grp:
        bit, tgt = opt.grp.split(":")
        g(f"s_bitcmp1_b32 s2, {bit}")
        g(f"s_cbranch_scc1 L_k0_{tgt}")
    if not opt.peel: g("s_branch L_k0")
    NT = opt.nt
    niter = 8 - NT // 2 if NT else 8
    slots = loop_body("add", rotated=True, niter=niter, vlast=int(opt.vlast, 0), klast=int(opt.klast, 0))
    for pi, ph in enumerate(opt.phases.split(",")):
        e, run, vl, kl, pad = (ph.split(":") + ["0"])[:5]
        e = min(int(e), niter)
        sl = loop_body("add", rotated=True, niter=e, vlast=int(vl, 16), klast=int(kl, 16), run=int(run), sub=(e <= opt.sub), adapt=((opt.thr, opt.imin) if (opt.thr and pi == 0) else None))
        if int(pad):
            for k in sl:
                sl[k] = sum(([l, f"s_nop {int(pad)-1}"] if l.startswith("v_exp") else [l] for l in sl[k]), [])
        g(f"L_loop{pi}:")
        g(sl[4]); g(sl[-1])
        g("L_k0:" if pi == 0 else f"L_k0_{pi}:")
        for k in range(4):
            if pi == 0 and k == 3: g("L_k3:")
            g(sl[k])
        g(f"s_cbranch_scc1 L_loop{pi}")
    assert e == niter
    g("L_tail:")
    g.ts(7)
    T0 = 16 - NT
    TS = 16 - opt.skew if opt.skew >= 0 else T0
    units = [(t, b) for t in range(TS) for b in range(3)] + [(t, b) for t in range(TS, 16) for b in range(2)] + [(t, 2) for t in range(TS, 16)]
    n0 = 6 * (niter - 1) + 4
    base = (2 * (niter - 1)) & 7
    first, last = {}, {}
    kslot0, vslot0 = base + 1, base + 2
    if NT:
        g(f"v_add_u32 v{KADDR}, {SLOT}, v{KADDR}")
        g(f"v_add_u32 v{VADDR}, {2*SLOT}, v{VADDR}")
    g(f"buffer_load_dword v{TMP0}, off, s[32:35], s62 sc1")
    fin = {b: max(n for n in range(48) if units[n][1] == b) for b in range(3)}
    for b in range(2):
        n = fin[b] + 1
        for x in range(1, 4):
            ops = pack_ops(x, b)
            if n < 47:
                gp = {1: (3, 4), 2: (6, 6), 3: (7, 7)}[x]
                last.setdefault((n, gp[0]), []).extend(ops[:2]); last.setdefault((n, gp[1]), []).extend(ops[2:])
                first.setdefault((n, gp[1] + 1), []).append(pay_store(x, b, opt))
            else:
                last.setdefault((n, 2 * x - 1), []).extend(ops + [pay_store(x, b, opt)])
    lred = Lst()
    for b in range(3): lred(f"v_add_f32 v{96+b}, v{L0+2*b}, v{L0+2*b+1}")
    xlane3(lred, [96, 97, 98], [100, 101, 102], "v_add_f32")
    lred("v_mov_b32 v99, 0")
    lred(f"buffer_store_dwordx4 v[96:99], v{TMP2}, s[28:31], s59 offen {opt.stpol}")
    lred(f"v_add_f32 v{TMP1}, v96, v97")
    lred("s_mov_b32 s50, " + ("0x5f800000" if not opt.force_fb else "0x00000000"))
    lred(f"v_add_f32 v{TMP1}, v{TMP1}, v98")
    lred(f"v_cmp_nlt_f32 vcc, v{TMP1}, s50")
    for i in range(5):
        last.setdefault((47, 8 + i), []).extend(lred[i * len(lred) // 5:(i + 1) * len(lred) // 5])
    last.setdefault((47, 13), []).extend(pack_ops(1, 2) + [pay_store(1, 2, opt)])
    last.setdefault((47, 15), []).extend(pack_ops(2, 2) + [pay_store(2, 2, opt)] + pack_ops(3, 2) + [pay_store(3, 2, opt)])
    last.setdefault((47, 7), []).append("s_nop 0")
    if opt.lpf:
        for pt in opt.lpf.split(","):
            n, gp = pt.split(":")
            first.setdefault((int(n), int(gp)), []).append("s_barrier")
    g(tail_slots(n0, units, kslot0, vslot0, 2 * niter - 1, first, last, pv_last=[2, 3, 4, 5, 6, 7, 0, 1]))
    g.ts(8)
    g("s_cbranch_vccz L_sent")
    g("s_waitcnt vmcnt(0)")
    g("s_branch L_slow")
    g("L_sent:")
    g("s_mov_b32 s47, 0x100000")
    g("s_waitcnt vmcnt(10)")
    g("L_hs:")
    g(f"v_readfirstlane_b32 s44, v{TMP0}")
    g("s_and_b32 s45, s44, 0x80808080")
    g("s_cmp_eq_u32 s45, 0x80808080")
    g("s_cbranch_scc0 L_hs_retry")
    g("L_hs_ok:")
    g("s_lshr_b32 s45, s44, 8")
    g("s_xor_b32 s45, s45, s44")
    g("s_and_b32 s45, s45, 0x00707070")
    if opt.force_slow:
        g("s_mov_b32 s45, 1")
    g(f"v_bfe_u32 v100, v{TMP3}, 4, 2")
    g("v_lshlrev_b32 v101, 3, v100")
    g("v_add_u32 v101, s19, v101")
    g("v_lshrrev_b32 v101, v101, s44")
    g("v_and_b32 v101, 1, v101")
    g("v_lshlrev_b32 v100, 2, v100")
    g("s_lshl_b32 s46, s17, 3")
    g("s_add_u32 s46, s46, s19")
    g("s_lshr_b32 s46, s44, s46")
    g("s_and_b32 s46, s46, 1")
    g("v_mov_b32 v102, s46")
    g("s_lshl_b32 s46, s17, 2")
    g("s_add_u32 s46, s46, s61")
    for x in range(1, 4):
        g(f"s_xor_b32 s{19+x}, s59, {x<<9}")
    g("s_add_u32 s40, s60, 3072\ns_add_u32 s41, s60, 6144")
    g("s_mov_b32 s47, 0x100000")
    g("s_cmp_lg_u32 s45, 0")
    g.ts(9)
    g("s_waitcnt vmcnt(0)")
    g.ts(10)
    g("s_cbranch_scc1 L_xcd_flag")
    g(f"buffer_store_dword v102, off, s[28:31], s46 {opt.flagpol}")
    if opt.wb and opt.wbpos == 0: g("s_barrier")
    g("L_poll:")
    g(f"buffer_load_dword v103, v100, s[28:31], s61 offen {opt.pollpol}")
    g("s_waitcnt vmcnt(0)")
    g("v_and_b32 v103, 1, v103")
    g("v_cmp_ne_u32 vcc, v103, v101")
    g("s_cbranch_vccz L_poll_ok")
    g("s_sub_u32 s47, s47, 1")
    g("s_cbranch_scc0 L_poll")
    g("L_poll_ok:")
    g.ts(11)
    LR = lambda x: 100 + 4 * x
    PR = lambda x, b: 24 + ((x - 1) * 3 + b) * 4
    def inbox_loads(lp):
        for x in range(1, 4):
            g(f"buffer_load_dwordx4 v[{LR(x)}:{LR(x)+3}], v{TMP2}, s[28:31], s{19+x} offen {lp}")
        for b in range(3):
            for x in range(1, 4):
                g(f"buffer_load_dwordx4 v[{PR(x,b)}:{PR(x,b)+3}], v{TMP3}, s[28:31], {['s60','s40','s41'][x-1]} offen offset:{b*1024} {lp}")
    inbox_loads(opt.ldpol)
    if opt.wb and opt.wbpos == 1: g("s_barrier")
    g("L_loaded:")
    g(f"v_bfe_u32 v132, v{TMP3}, 4, 4")
    g("v_lshlrev_b32 v132, 8, v132")
    if opt.out4:
        g(f"v_bfe_u32 v133, v{TMP3}, 8, 1\nv_lshlrev_b32 v133, 5, v133")
        g(f"v_bfe_u32 v134, v{TMP3}, 9, 1\nv_lshl_add_u32 v133, v134, 4, v133")
    else:
        g(f"v_lshrrev_b32 v133, 8, v{TMP3}")
        g("v_lshlrev_b32 v133, 3, v133")
    g("s_lshl_b32 s42, s17, 6")
    g("v_add3_u32 v132, v132, v133, s42")
    g("s_waitcnt vmcnt(9)")
    g.ts(12)
    g(f"v_or3_b32 v99, v99, v{LR(1)+3}, v{LR(2)+3}")
    g(f"v_or_b32 v99, v99, v{LR(3)+3}")
    g("v_cmp_ne_u32 vcc, 0, v99")
    g("s_cbranch_vccnz L_general")
    for x in range(1, 4):
        for b in range(3):
            g(f"v_add_f32 v{96+b}, v{96+b}, v{LR(x)+b}")
    for b in range(3): g(f"v_rcp_f32 v{96+b}, v{96+b}")
    def acc_reg(b, i): return O(i // 4, b, i % 4)
    nst = 1 if opt.out4 else 2
    for b in range(3):
        for x in range(1, 4):
            g(f"s_waitcnt vmcnt({9 - (b*3 + x) + b*nst})")
            if x == 3 and b == 2: g.ts(13)
            for r in range(4):
                src = PR(x, b) + r
                g(f"v_dot2c_f32_bf16 v{acc_reg(b,2*r)}, s48, v{src}")
                g(f"v_dot2c_f32_bf16 v{acc_reg(b,2*r+1)}, s49, v{src}")
        out_store(g, b, 96 + b, opt)
    g("L_done:")
    g.ts(14)
    if opt.ts:
        g("s_waitcnt vmcnt(0)")
        g.ts(15)
    g.ts_store(0)
    g("L_end:")
    g("s_endpgm")
    g("L_hs_retry:")
    g("s_sleep 2")
    g(f"buffer_load_dword v{TMP0}, off, s[32:35], s62 sc1")
    g("s_sub_u32 s47, s47, 1")
    g("s_waitcnt vmcnt(0)")
    g("s_cbranch_scc0 L_hs")
    g("s_branch L_hs_ok")
    g("L_xcd_flag:")
    g(f"buffer_store_dwordx4 v[96:99], v{TMP2}, s[28:31], s59 offen sc1")
    for b in range(3):
        for x in range(1, 4):
            g(pay_store(x, b, opt, "sc1"))
    g("s_waitcnt vmcnt(0)")
    g("buffer_store_dword v102, off, s[28:31], s46 sc1")
    g("L_poll2:")
    g("buffer_load_dword v103, v100, s[28:31], s61 offen sc1")
    g("s_waitcnt vmcnt(0)")
    g("v_and_b32 v103, 1, v103")
    g("v_cmp_ne_u32 vcc, v103, v101")
    g("s_cbranch_vccz L_poll2_ok")
    g("s_sub_u32 s47, s47, 1")
    g("s_cbranch_scc0 L_poll2")
    g("L_poll2_ok:")
    inbox_loads("sc1")
    g("s_branch L_loaded")
    g("L_general:")
    CR = lambda x: 60 + 4 * x
    for x in range(1, 4):
        g(f"buffer_load_dwordx4 v[{CR(x)}:{CR(x)+3}], v{TMP2}, s[28:31], s{19+x} offen offset:256 sc1")
    for b in range(3): g(f"v_mov_b32 v{CR(0)+b}, v{C0+4*b}")
    g("s_waitcnt vmcnt(0)")
    for b in range(3):
        g(f"v_min3_f32 v100, v{CR(0)+b}, v{CR(1)+b}, v{CR(2)+b}")
        g(f"v_min_f32 v100, v100, v{CR(3)+b}")
        for x in range(4): g(f"v_sub_f32 v{CR(x)+b}, v100, v{CR(x)+b}")
        for x in range(4): g(f"v_exp_f32 v{CR(x)+b}, v{CR(x)+b}")
        g("s_nop 0")
        g(f"v_mul_f32 v{96+b}, v{96+b}, v{CR(0)+b}")
        for x in range(1, 4): g(f"v_fmac_f32 v{96+b}, v{CR(x)+b}, v{LR(x)+b}")
    for b in range(3): g(f"v_rcp_f32 v{96+b}, v{96+b}")
    for b in range(3):
        for i in range(8): g(f"v_mul_f32 v{acc_reg(b,i)}, v{acc_reg(b,i)}, v{CR(0)+b}")
        for x in range(1, 4):
            for r in range(4):
                src = PR(x, b) + r
                g(f"v_lshlrev_b32 v116, 16, v{src}")
                g(f"v_and_b32 v117, s51, v{src}")
                g(f"v_fmac_f32 v{acc_reg(b,2*r)}, v116, v{CR(x)+b}")
                g(f"v_fmac_f32 v{acc_reg(b,2*r+1)}, v117, v{CR(x)+b}")
        out_store(g, b, 96 + b, opt)
    g("s_branch L_done")
    g("L_code_end:")
    slow_path(g, opt)
    g.o.append(f""".section .rodata,"a"
.p2align 6
.amdhsa_kernel {KN}
  .amdhsa_next_free_vgpr {NV+NA}
  .amdhsa_next_free_sgpr 102
  .amdhsa_accum_offset {NV}
  .amdhsa_group_segment_fixed_size 0
  .amdhsa_kernarg_size 48
  .amdhsa_user_sgpr_count 2
  .amdhsa_user_sgpr_kernarg_segment_ptr 1
  .amdhsa_system_sgpr_workgroup_id_x 1
.end_amdhsa_kernel""")
    return "\n".join(g.o) + "\n"


def out_store(g, b, rl, opt):
    o, p = O(0, b), O(1, b)
    so = ["0", "s38", "s39"][b]
    for r in range(4): g(f"v_mul_f32 v{o+r}, v{o+r}, v{rl}")
    for r in range(4): g(f"v_mul_f32 v{p+r}, v{p+r}, v{rl}")
    if opt.out4:
        g(f"v_cvt_pk_bf16_f32 v{o}, v{o}, v{o+1}")
        g(f"v_cvt_pk_bf16_f32 v{o+1}, v{o+2}, v{o+3}")
        g(f"v_cvt_pk_bf16_f32 v{o+2}, v{p}, v{p+1}")
        g(f"v_cvt_pk_bf16_f32 v{o+3}, v{p+2}, v{p+3}")
        g("s_nop 0")
        g(f"v_permlane16_swap_b32 v{o}, v{o+2}")
        g(f"v_permlane16_swap_b32 v{o+1}, v{o+3}")
        g("s_nop 0")
        g(f"buffer_store_dwordx4 v[{o}:{o+3}], v132, s[24:27], {so} offen {opt.outpol}")
        return
    for h in range(2):
        o = O(h, b)
        g(f"v_cvt_pk_bf16_f32 v{o}, v{o}, v{o+1}")
        g(f"v_cvt_pk_bf16_f32 v{o+1}, v{o+2}, v{o+3}")
        g(f"buffer_store_dwordx2 v[{o}:{o+1}], v132, s[24:27], {so} offen offset:{32*h} {opt.outpol}")


if __name__ == "__main__":
    ap = argparse.ArgumentParser()
    ap.add_argument("-o", default="standalone__gqa_softmax__near_ridge.s")
    ap.add_argument("--kvpol", default="nt")
    ap.add_argument("--qpol", default="nt")
    ap.add_argument("--stpol", default="")
    ap.add_argument("--ldpol", default="nt")
    ap.add_argument("--outpol", default="sc1")
    ap.add_argument("--ts", type=int, default=0)
    ap.add_argument("--qoff", type=int, default=0)
    ap.add_argument("--peel", type=int, default=1)
    ap.add_argument("--pwe", default="")
    ap.add_argument("--grp", default="")
    ap.add_argument("--cpf_to", default="L_general")
    ap.add_argument("--cpf2", default="")
    ap.add_argument("--hsbyte", type=int, default=0)
    ap.add_argument("--thr", type=int, default=0)
    ap.add_argument("--imin", type=int, default=3)
    ap.add_argument("--pwlite", type=int, default=0)
    ap.add_argument("--sub", type=int, default=0)
    ap.add_argument("--suborder", type=int, default=0)
    ap.add_argument("--qfirst", type=int, default=1)
    ap.add_argument("--stag", type=int, default=0)
    ap.add_argument("--lpf", default="")
    ap.add_argument("--sc1b", type=int, default=1)
    ap.add_argument("--wb", type=int, default=0)
    ap.add_argument("--wbpos", type=int, default=0)
    ap.add_argument("--pw_always", type=int, default=0)
    ap.add_argument("--phases", default="2:8:ffff:ff,3:2:0:0,5:1:ffff:ff,8:1:0:0")
    ap.add_argument("--cpf_from", default="L_nocpf")
    ap.add_argument("--cpf", type=int, default=4)
    ap.add_argument("--skew", type=int, default=-1)
    ap.add_argument("--vlast", default="0")
    ap.add_argument("--klast", default="0")
    ap.add_argument("--split", type=int, default=0)
    ap.add_argument("--pad2", type=int, default=0)
    ap.add_argument("--ramp", type=int, default=0)
    ap.add_argument("--rampgap", type=int, default=0)
    ap.add_argument("--pad", type=int, default=0)
    ap.add_argument("--out4", type=int, default=1)
    ap.add_argument("--pw_at", type=int, default=12)
    ap.add_argument("--nt", type=int, default=0)
    ap.add_argument("--sched", default="2,1,1")
    ap.add_argument("--rot", type=int, default=0)
    ap.add_argument("--hs_at", type=int, default=-1)
    ap.add_argument("--probe", type=int, default=0)
    ap.add_argument("--vpol", default=None)
    ap.add_argument("--hs", default="loader")
    ap.add_argument("--setup", default="early")
    ap.add_argument("--tsout", type=int, default=0)
    ap.add_argument("--pts", type=int, default=0)
    ap.add_argument("--exp_x1", type=int, default=0)
    ap.add_argument("--exp_2x", type=int, default=0)
    ap.add_argument("--prewarm", default="")
    ap.add_argument("--linear", type=int, default=0)
    ap.add_argument("--trace", type=int, default=0)
    ap.add_argument("--pollpol", default="nt")
    ap.add_argument("--stalepol", default="")
    ap.add_argument("--dot", type=int, default=1)
    ap.add_argument("--flagpol", default="")
    ap.add_argument("--depth", type=int, default=3)
    ap.add_argument("--init_pairs", type=int, default=2)
    ap.add_argument("--force_slow", type=int, default=0)
    ap.add_argument("--force_fb", type=int, default=0)
    opt = ap.parse_args()
    open(opt.o, "w").write(gen(opt))
```
